```python
import torch

def _softmax(x, axis=-1):
    return torch.softmax(x, dim=axis)
def _gelu(x):
    return torch.nn.functional.gelu(x, approximate="tanh")
def _silu(x):
    return torch.nn.functional.silu(x)
def _sigmoid(x):
    return torch.sigmoid(x)
def _layernorm(x, axis=-1, eps=1e-5):
    m = x.mean(dim=axis, keepdim=True)
    v = x.var(dim=axis, keepdim=True, unbiased=False)
    return (x - m) / torch.sqrt(v + eps)
def _scatter_add(tgt, idx, src, axis=0):
    return tgt.clone().index_add_(axis, idx, src)
def _segment_sum(src, seg, n):
    out = torch.zeros((n,) + src.shape[1:], dtype=src.dtype)
    return out.index_add_(0, seg, src)
def _pad(x, pw):
    flat = tuple(v for pair in reversed(pw) for v in pair)
    return torch.nn.functional.pad(x, flat)

kernel_name = 'gated_mix__compressed_kv_cla__dense_activation_silu__prompt'

def setup_inputs():

    _w = (lambda a: (lambda t: t.to(torch.bfloat16) if t.is_floating_point() else t)(torch.as_tensor(a)))
    def _A_setup():
        B, H, Sq, Sk, D, M = 1, 32, 2048, 2048, 128, 576
        Dc = 4 * D
        return {
            "x": _w((lambda *s: torch.randn(*s, dtype=torch.bfloat16) * 0.1)(B, Sq, M)),
            "c_kv": _w((lambda *s: torch.randn(*s, dtype=torch.bfloat16) * 0.8)(B, Sk, Dc)),
            "w_q": _w((lambda *s: torch.randn(*s, dtype=torch.bfloat16) * 6.4)(M, H, D) * (M ** -0.5)),
            "w_uk": _w((lambda *s: torch.randn(*s, dtype=torch.bfloat16) * 6.4)(Dc, H, D) * (Dc ** -0.5)),
            "w_uv": _w((lambda *s: torch.randn(*s, dtype=torch.bfloat16) * 0.8)(Dc, H, D) * (Dc ** -0.5)),
            "w_o": _w((lambda *s: torch.randn(*s, dtype=torch.bfloat16) * 0.8)(H, D, M) * ((H * D) ** -0.5)),
        }
    _A_in = _A_setup()

    def _B_setup():
        B, S, D, F = 1, 2048, 576, 4608
        return {
            "x": _w((lambda *s: torch.randn(*s, dtype=torch.bfloat16) * 0.1)(B, S, D)),
            "w1": _w((lambda *s: torch.randn(*s, dtype=torch.bfloat16) * 3.2)(D, F) * (D ** -0.5)),
            "w2": _w((lambda *s: torch.randn(*s, dtype=torch.bfloat16) * 3.2)(F, D) * (F ** -0.5)),
        }
    _B_in = _B_setup()

    return {
        "A_x": _A_in["x"],
        "A_c_kv": _A_in["c_kv"],
        "A_w_q": _A_in["w_q"],
        "A_w_uk": _A_in["w_uk"],
        "A_w_uv": _A_in["w_uv"],
        "A_w_o": _A_in["w_o"],
        "B_x": _B_in["x"],
        "B_w1": _B_in["w1"],
        "B_w2": _B_in["w2"],
        "gate_w": _w((lambda *s: torch.randn(*s, dtype=torch.bfloat16) * 0.1)(576) * 16.0),
    }

def reference(A_x, A_c_kv, A_w_q, A_w_uk, A_w_uv, A_w_o, B_x, B_w1, B_w2, gate_w):
    def _A_ref(x, c_kv, w_q, w_uk, w_uv, w_o):
        B, Sq, M = x.shape[0], x.shape[1], x.shape[2]
        Sk = c_kv.shape[1]
        H, D = w_q.shape[1], w_q.shape[2]
        q = torch.einsum("bqm,mhd->bhqd", x, w_q)
        k = torch.einsum("bkc,chd->bhkd", c_kv, w_uk)
        v = torch.einsum("bkc,chd->bhkd", c_kv, w_uv)
        scores = torch.einsum("bhqd,bhkd->bhqk", q, k) * (D ** -0.5)
        off = Sk - Sq
        qi = torch.arange(Sq)[:, None]
        kj = torch.arange(Sk)[None, :]
        cmask = kj <= (qi + off)
        scores = torch.where(cmask[None, None], scores, -1e9)
        p = _softmax(scores, axis=-1)
        ctx = torch.einsum("bhqk,bhkd->bhqd", p, v)
        return torch.einsum("bhqd,hdm->bqm", ctx, w_o)

    def _B_ref(x, w1, w2):
        h = torch.einsum("bsd,df->bsf", x, w1)
        h = _silu(h)
        out = torch.einsum("bsf,fd->bsd", h, w2)
        return out

    x = A_x
    g = _sigmoid((x * gate_w).sum(-1, keepdims=True))
    a = _A_ref(x, A_c_kv, A_w_q, A_w_uk, A_w_uv, A_w_o)
    b = _B_ref(x, B_w1, B_w2)
    return g * a + (1 - g) * b
```

```python
import re

TRANS = ("v_exp_f32", "v_log_f32", "v_rcp_f32", "v_rsq_f32", "v_sqrt_f32")

def regs_of(tok):
    tok = tok.strip()
    if tok.startswith("-"): tok = tok[1:]
    if tok.startswith("abs(") : tok = tok[4:-1]
    if tok.startswith("|"): tok = tok.strip("|")
    m = re.fullmatch(r"([vas])(\d+)", tok)
    if m: return [(m.group(1), int(m.group(2)))]
    m = re.fullmatch(r"([vas])\[(\d+):(\d+)\]", tok)
    if m: return [(m.group(1), i) for i in range(int(m.group(2)), int(m.group(3)) + 1)]
    if tok in ("vcc", "vcc_lo", "vcc_hi"): return [("x", "vcc")]
    if tok == "exec": return [("x", "exec")]
    if tok == "m0": return [("x", "m0")]
    return []

class I:
    __slots__ = ("text", "mn", "kind", "rd", "wr", "ctr", "slots", "srcC", "srcAB", "tok", "waitfor",
                 "earliest", "deadline", "deps", "pos", "pre", "tag", "data", "nop", "grp", "sub", "span", "maxlag")
    def __init__(self, text, **kw):
        self.text = text
        self.tok = None; self.waitfor = None; self.earliest = 0; self.deadline = None
        self.deps = []; self.pos = None; self.pre = []; self.tag = None; self.data = []; self.nop = 0
        self.srcC = []; self.srcAB = []; self.ctr = None; self.grp = None; self.sub = None; self.span = 0; self.maxlag = None
        self._parse()
        for k, v in kw.items(): setattr(self, k, v)
    def _parse(self):
        t = self.text.split(";")[0].strip()
        if t.startswith("TICK"):
            self.mn = "TICK"; self.kind = "label"; self.rd = []; self.wr = []; self.slots = 0; return
        if t.endswith(":") or t.startswith("."):
            self.mn = "label"; self.kind = "label"; self.rd = []; self.wr = []; self.slots = 0; return
        parts = t.split(None, 1)
        mn = parts[0]; self.mn = mn
        rest = parts[1] if len(parts) > 1 else ""
        ops = [o.strip() for o in rest.split(",")] if rest else []
        mods = ""
        if ops:
            sp = ops[-1].split(None, 1)
            ops[-1] = sp[0]
            mods = sp[1] if len(sp) > 1 else ""
        R = [regs_of(o) for o in ops]
        flat = lambda L: [r for x in L for r in x]
        rd, wr = [], []
        if mn.startswith("v_mfma"):
            self.kind = "mfma"; wr = R[0]; rd = flat(R[1:]); self.srcAB = R[1] + R[2]; self.srcC = R[3]; self.slots = 1
        elif mn.startswith("v_"):
            self.kind = "trans" if mn.replace("_e32","").replace("_e64","") in TRANS else "valu"
            self.slots = 2 if self.kind == "trans" else 1
            if mn.startswith("v_permlane") or mn.startswith("v_swap"):
                wr = R[0] + R[1]; rd = R[0] + R[1]
            elif mn.startswith("v_add_co") or mn.startswith("v_addc_co") or mn.startswith("v_sub_co"):
                wr = R[0] + R[1]; rd = flat(R[2:])
            else:
                wr = R[0]; rd = flat(R[1:])
                if mn.startswith(("v_fmac", "v_dot2c", "v_writelane")) or "dpp" in mn or "row_" in mods or "quad_perm" in mods: rd = rd + R[0]
            if mn.startswith("v_nop"): rd, wr = [], []
        elif mn.startswith("ds_read") or mn.startswith("ds_bpermute") or mn.startswith("ds_swizzle"):
            self.kind = "ds"; self.ctr = "lgkm"; wr = R[0]; rd = flat(R[1:]); self.slots = 2
        elif mn.startswith("ds_"):
            self.kind = "ds"; self.ctr = "lgkm"; rd = flat(R); self.slots = 3
            if "rtn" in mn: wr = R[0]; rd = flat(R[1:])
        elif mn.startswith(("buffer_load", "global_load")):
            self.kind = "vmem"; self.ctr = "vm"; self.slots = 3
            if " lds" in (" " + mods) or "_lds_" in mn:
                rd = flat(R) + [("x", "m0")]; self.tag = "dma"
            else:
                wr = R[0]; rd = flat(R[1:])
        elif mn.startswith(("buffer_store", "global_store")):
            self.kind = "vmem"; self.ctr = "vm"; rd = flat(R); self.slots = 7 if "x4" in mn else 5
            self.data = R[0] if mn.startswith("buffer") else R[1]
        elif mn.startswith(("buffer_atomic", "global_atomic")):
            self.kind = "vmem"; self.ctr = "vm"; rd = flat(R); self.slots = 4
            if "sc0" in mods: wr = R[0]
        elif mn.startswith(("buffer_inv", "buffer_wbl2")):
            self.kind = "vmem"; self.ctr = "vm"; self.slots = 3
        elif mn.startswith(("s_load", "s_memtime", "s_memrealtime", "s_buffer_load")):
            self.kind = "smem"; self.ctr = "smem"; wr = R[0]; rd = flat(R[1:]); self.slots = 1
        elif mn == "s_waitcnt" or mn == "WAIT":
            self.kind = "wait"; self.slots = 1
        elif mn == "s_barrier":
            self.kind = "bar"; self.slots = 1
        elif mn == "s_nop":
            self.kind = "nop"; self.nop = int(ops[0], 0); self.slots = 1 + self.nop // 4
        elif mn.startswith(("s_cbranch", "s_branch", "s_endpgm", "s_setpc", "s_sleep", "s_setprio")):
            self.kind = "branch"; self.slots = 1
            if "vcc" in mn: rd = [("x", "vcc")]
            if "scc" in mn: rd = [("x", "scc")]
        elif mn.startswith("s_"):
            self.kind = "salu"; self.slots = 1
            if mn.startswith(("s_cmp", "s_bitcmp")):
                rd = flat(R); wr = [("x", "scc")]
            else:
                wr = R[0]; rd = flat(R[1:])
                if mn.startswith(("s_addk", "s_mulk", "s_bitset")): rd = rd + R[0]
                if mn.startswith(("s_cselect", "s_addc", "s_subb", "s_cmov")): rd = rd + [("x", "scc")]
                if not mn.startswith(("s_mov", "s_cselect", "s_mul_", "s_movk", "s_getreg", "s_getpc", "s_cmov", "s_bfm")): wr = wr + [("x", "scc")]
                if "saveexec" in mn: wr = wr + [("x", "exec")]; rd = rd + [("x", "exec")]
        else:
            raise Exception("unknown instr " + t)
        self.rd = rd; self.wr = wr
    def __repr__(self): return self.text

def WAITVM(*toks):
    i = I("WAIT vm"); i.waitfor = list(toks); return i
def WAITLGKM(*toks):
    i = I("WAIT lgkm"); i.waitfor = list(toks); return i

def Bundle(subs, **kw):
    b = I("s_nop 0", **kw); b.sub = list(subs); b.kind = "bar"; b.text = "BUNDLE " + " | ".join(x.text for x in subs)
    b.rd = [r for x in subs for r in x.rd]; b.wr = [r for x in subs for r in x.wr]
    b.slots = sum(x.slots for x in subs)
    return b
def flat(ins):
    out = []
    for i in ins:
        if i.sub: out += i.sub
        else: out.append(i)
    return out
def TICK(name, n=1):
    i = I("TICK " + name); i.grp = (name, n); return i
def WAITG(name, off, **kw):
    i = I("WAIT g", **kw); i.grp = (name, off); i.waitfor = []; return i

def gap_cost(ops):
    t = 0; seen_valu = False
    for o in flat(ops):
        if o.kind == "label": continue
        if o.kind in ("valu", "trans"):
            if t < 1: t = 1
            t += o.slots; seen_valu = True
        elif o.kind in ("ds", "vmem"):
            if seen_valu: t += 1
            t += o.slots; seen_valu = False
        else:
            t += o.slots
    return t

def schedule(spine, streams, tail_ok=True, verbose=None, nprio=1):
    n = len(spine)
    gaps = [[] for _ in range(n)]
    heads = [0] * len(streams)
    def ready(o, p):
        if p < o.earliest: return False
        for d, dist in o.deps:
            if d.pos is None or p < d.pos + dist: return False
        return True
    def order(ops):
        return ops
    def conflicts(a, b):
        sa_w, sb_w = set(a.wr), set(b.wr)
        return bool(sa_w & (set(b.rd) | sb_w)) or bool(sb_w & set(a.rd))
    def try_insert(g, o):
        if o.kind in ("valu", "trans"): return g + [o]
        k = len(g)
        while k > 0 and g[k-1].kind in ("valu", "trans") and not conflicts(g[k-1], o) and o.kind not in ("bar", "branch", "nop"): k -= 1
        return g[:k] + [o] + g[k:]
    for i, m in enumerate(spine):
        if m is not None: m.pos = i
    import bisect
    wr_at = {}; rd_at = {}
    for i, m in enumerate(spine):
        if m is None: continue
        for r in m.wr: wr_at.setdefault(r, []).append(i)
        for r in m.rd: rd_at.setdefault(r, []).append(i)
    def nxt(tab, r, e):
        Lp = tab.get(r)
        if not Lp: return None
        k = bisect.bisect_right(Lp, e)
        return Lp[k] if k < len(Lp) else None
    for st in streams:
        e = 0
        for o in st:
            e = max(e, o.earliest)
            qs = [nxt(wr_at, r, e) for r in o.rd] + [nxt(wr_at, r, e) for r in o.wr] + [nxt(rd_at, r, e) for r in o.wr]
            qs = [q for q in qs if q is not None]
            if qs:
                dl = min(qs) - 2
                if dl < e:
                    if min(qs) - 1 < e: raise Exception(f"auto deadline before earliest: {o} e={e} q={min(qs)}")
                    dl = e
                o.deadline = dl if o.deadline is None else min(o.deadline, dl)
    eff = {}
    for st in streams:
        e = 0
        for o in st: e = max(e, o.earliest); eff[id(o)] = e
    changed = True
    while changed:
        changed = False
        for st in streams:
            nd = None
            for o in reversed(st):
                if nd is not None:
                    c = max(nd - o.span, min(nd, eff[id(o)] + 4))
                    if o.deadline is None or c < o.deadline: o.deadline = c; changed = True
                if o.deadline is not None:
                    nd = o.deadline
                    for d, dist in o.deps:
                        if d.kind != "mfma" and id(d) in eff and (d.deadline is None or d.deadline > nd - dist):
                            d.deadline = nd - dist; changed = True
    n0 = n; spine = list(spine); p = -1
    while True:
        p += 1
        if p >= n:
            if not tail_ok or all(heads[si] >= len(st) for si, st in enumerate(streams)): break
            if p > n0 + 3000: raise Exception("tail does not terminate")
            spine.append(None); gaps.append([]); n += 1
        cap = 3 if spine[p] is not None else 4
        def attempt(mode):
            for si, st in enumerate(streams):
                if heads[si] >= len(st): continue
                o = st[heads[si]]
                if not ready(o, p): continue
                forced = o.deadline is not None and o.deadline <= p
                if o.maxlag is not None:
                    rp = max([o.earliest] + [d.pos + dist for d, dist in o.deps] + ([st[heads[si]-1].pos] if heads[si] else []))
                    if p >= rp + o.maxlag and not any(x.kind == "ds" for x in gaps[p]): forced = True
                if mode == 0 and not (forced or si < nprio): continue
                if mode == 1 and o.slots < 3: continue
                cand = try_insert(gaps[p], o)
                c = gap_cost(cand)
                big = o.slots > cap and gap_cost(gaps[p]) == 0
                if c <= cap or forced or big:
                    gaps[p] = cand; o.pos = p; heads[si] += 1
                    return True
            return False
        while attempt(0) or attempt(1) or attempt(2): pass
        for si, st in enumerate(streams):
            if heads[si] < len(st):
                o = st[heads[si]]
                if o.deadline is not None and o.deadline <= p:
                    raise Exception(f"deadline miss at gap {p}: {o} deps={[(str(d),d.pos,x) for d,x in o.deps]} earliest={o.earliest}")
    left = []
    for si, st in enumerate(streams):
        for o in st[heads[si]:]:
            o.pos = n; left.append(o)
    if left and not tail_ok: raise Exception(f"{len(left)} ops left unscheduled, first {left[0]}")
    out = []
    for p in range(n):
        if spine[p] is not None: out.append(spine[p])
        out += gaps[p]
    over = sum(max(0, gap_cost(g) - (3 if spine[p] is not None else 4)) for p, g in enumerate(gaps))
    if verbose: print(f"[sched {verbose}] mfma={sum(1 for m in spine if m is not None)} gaps={n} overflow_slots={over} tail_slots={sum(o.slots for g in gaps[n0:] for o in g)}")
    return flat(out + left)

class Block:
    def __init__(self, name, ins): self.name = name; self.ins = ins

class Inst:
    __slots__ = ("ins", "g")
    def __init__(self, ins, g): self.ins = ins; self.g = g

def _sim_waits(path, need, final=False):
    q = {"vm": [], "lgkm": []}
    smem = []
    pend = {}
    cnt = {}
    errs = []
    def drain(ctr, n):
        L = q[ctr]
        while len(L) > n:
            o = L.pop(0)
            for r in o.ins.wr:
                if pend.get(r) is o: del pend[r]
    def drain_smem():
        for o in smem:
            for r in o.ins.wr:
                if pend.get(r) is o: del pend[r]
        smem.clear()
    def req_of_wait(ins):
        req = {}
        for c in q:
            for k, o in enumerate(q[c]):
                hit = any(o.ins is t for t in (ins.waitfor or []))
                if ins.grp and o.g and o.g[0] == ins.grp[0] and o.g[1] <= cnt.get(ins.grp[0], 0) + ins.grp[1]: hit = True
                if hit: req[c] = min(req.get(c, 999), len(q[c]) - 1 - k)
        return req
    for ins in path:
        if ins.mn == "TICK":
            cnt[ins.grp[0]] = cnt.get(ins.grp[0], 0) + ins.grp[1]; continue
        if ins.kind == "label": continue
        if ins.mn == "s_waitcnt":
            m = re.search(r"vmcnt\((\d+)\)", ins.text)
            if m: drain("vm", int(m.group(1)))
            m = re.search(r"lgkmcnt\((\d+)\)", ins.text)
            if m:
                nn = int(m.group(1))
                if smem and nn == 0: drain_smem()
                if not smem: drain("lgkm", nn)
            continue
        req = {}
        if ins.mn == "WAIT":
            req = req_of_wait(ins)
        else:
            for r in list(ins.rd) + list(ins.wr):
                o = pend.get(r)
                if o is None: continue
                if o.ins.ctr == "smem": req["lgkm"] = 0
                else:
                    c = o.ins.ctr
                    nn = len(q[c]) - 1 - q[c].index(o)
                    req[c] = min(req.get(c, 999), nn)
        if req:
            if smem and "lgkm" in req: req["lgkm"] = 0
            if final: errs.append(f"missing wait {req} before {ins}")
            d = need.setdefault(id(ins), {})
            for c, nn in req.items():
                d[c] = min(d.get(c, 999), nn, 62 if c == "vm" else 14)
        d = need.get(id(ins)) if not final else None
        if d:
            for c, nn in d.items():
                if c == "lgkm" and nn == 0: drain_smem()
                drain(c, nn)
        if ins.ctr == "smem":
            o = Inst(ins, None); smem.append(o)
            for r in ins.wr: pend[r] = o
        elif ins.ctr:
            g = (ins.grp[0], cnt.get(ins.grp[0], 0) + ins.grp[1]) if ins.grp else None
            o = Inst(ins, g)
            q[ins.ctr].append(o)
            for r in ins.wr: pend[r] = o
    return errs

def insert_waits(blocks, paths, hoist=4):
    need = {}
    for it in range(3):
        for p in paths:
            _sim_waits([i for b in p for i in blocks[b].ins], need)
    for b in blocks.values():
        out = []
        for ins in b.ins:
            d = need.get(id(ins))
            if ins.mn == "WAIT":
                if d: out.append(_mkwait(d))
                ins.slots = 0; out.append(ins)
                continue
            if d:
                _place_wait(out, d, hoist)
            out.append(ins)
        b.ins = out
    errs = []
    for p in paths:
        errs += _sim_waits([i for b in p for i in blocks[b].ins], {}, final=True)
    if errs: raise Exception("wait verification failed:\n" + "\n".join(errs[:20]))
    for b in blocks.values():
        b.ins = [i for i in b.ins if i.mn not in ("WAIT", "TICK")]

def _mkwait(d):
    s = "s_waitcnt"
    if "vm" in d: s += f" vmcnt({min(d['vm'],63)})"
    if "lgkm" in d: s += f" lgkmcnt({min(d['lgkm'],15)})"
    return I(s)

def _place_wait(out, d, hoist):
    def gap_after(k):
        g = []
        for o in out[k+1:]:
            if o.kind == "mfma": break
            g.append(o)
        return g
    idx = [k for k in range(len(out)-1, -1, -1) if out[k].kind == "mfma"][:hoist]
    w = _mkwait(d)
    if idx:
        g = gap_after(idx[0])
        if gap_cost(g + [w]) <= max(3, gap_cost(g)):
            out.append(w); return
    for k in idx:
        g = gap_after(k)
        for j in range(len(g), -1, -1):
            pos = k + 1 + j
            if any(o.kind in ("label", "bar", "branch") for o in out[pos:]): continue
            dd = dict(d); ok = True
            for c in dd:
                later = sum(1 for o in out[pos:] if o.ctr == c or (c == "lgkm" and o.ctr == "smem"))
                dd[c] -= later
                if dd[c] < 0: ok = False
            if not ok: continue
            ww = _mkwait(dd)
            if gap_cost(g[:j] + [ww] + g[j:]) <= max(3, gap_cost(g)):
                out.insert(pos, ww); return
    out.append(w)

def passes(i):
    return 8 if "32x32" in i.mn else 4

def check_hazards(path):
    errs = []
    seq = [i for i in path if i.kind != "label"]
    n = len(seq)
    for a in range(n):
        A = seq[a]
        W = set(A.wr)
        isvalu = A.kind in ("valu", "trans")
        maxd = 0
        if A.kind == "mfma": maxd = 12
        elif isvalu: maxd = 5
        elif A.kind == "salu" and ("x", "m0") in W: maxd = 1
        elif A.data and len(A.data) >= 3: maxd = 2
        if not maxd: continue
        dist = 0
        for b in range(a + 1, n):
            if dist >= maxd: break
            B = seq[b]
            req = 0
            Br, Bw = set(B.rd), set(B.wr)
            bvalu = B.kind in ("valu", "trans")
            if A.kind == "mfma":
                P = passes(A)
                big = 12 if P == 8 else 8
                if B.kind == "mfma":
                    if W & set(B.srcAB): req = big
                    if W & set(B.srcC) and list(B.srcC) != list(A.wr): req = max(req, big - 2)
                    if W & Bw and list(B.wr) != list(A.wr): req = max(req, big - 2)
                    if W & Bw and list(B.srcC) != list(A.wr): req = max(req, big - 2)
                elif bvalu or B.kind in ("ds", "vmem"):
                    if W & (Br | Bw): req = big
                if bvalu and set(A.srcC) & Bw: req = max(req, 7 if P == 8 else 3)
            elif isvalu:
                vw = {r for r in W if r[0] in "va"}
                sw = {r for r in W if r[0] == "s" or r == ("x", "vcc")}
                if B.kind == "mfma" and vw & Br: req = 2
                if A.kind == "trans" and B.kind == "valu" and vw & Br: req = max(req, 1)
                if bvalu and sw & Br: req = max(req, 4 if B.mn.startswith(("v_readlane", "v_writelane")) else 2)
                if B.kind == "vmem" and sw & Br: req = max(req, 5)
                if B.mn.startswith(("v_readfirstlane", "v_readlane")) and vw & Br: req = max(req, 1)
                if (B.mn.startswith("v_permlane") or "dpp" in B.text or "row_" in B.text or "quad_perm" in B.text) and vw & Br: req = max(req, 2)
                if B.kind == "branch" and ("x", "vcc") in (sw & Br): req = max(req, 5)
                if B.kind in ("salu",) and sw & Br: req = max(req, 1)
            elif A.kind == "salu":
                if B.tag == "dma": req = 1
            if A.data and len(A.data) >= 3 and set(A.data) & Bw: req = max(req, 2 if bvalu else 1)
            if dist < req: errs.append(f"hazard: need {req} have {dist}: [{A}] -> [{B}]")
            dist += (B.nop + 1) if B.kind == "nop" else 1
    return errs

def fix_hazards(ins):
    out = []
    for i in ins:
        out.append(i)
        while True:
            tail = out[-14:]
            e = [x for x in check_hazards(tail) if x.endswith(f"-> [{i}]")]
            if not e: break
            need = max(int(re.match(r"hazard: need (\d+) have (\d+)", x).group(1)) - int(re.match(r"hazard: need (\d+) have (\d+)", x).group(2)) for x in e)
            out.insert(len(out) - 1, I(f"s_nop {need-1}"))
    return out

def est_cycles(ins):
    t = 0; g = []; have = False
    for o in ins:
        if o.kind == "mfma":
            if have: t += 4 * (1 + max(3, gap_cost(g)))
            else: t += 4 * gap_cost(g)
            g = []; have = True
        else: g.append(o)
    t += 4 * (1 + max(3, gap_cost(g))) if have else 4 * gap_cost(g)
    return t

def wait_ages(path, thr=128):
    q = []; n = 0; out = []
    for i in path:
        if i.kind == "mfma": n += 1
        elif i.ctr == "vm": q.append((n, i))
        elif i.mn == "s_waitcnt":
            m = re.search(r"vmcnt\((\d+)\)", i.text)
            if m:
                k = int(m.group(1))
                if len(q) > k:
                    y = q[len(q) - k - 1]
                    if n - y[0] < thr: out.append(f"{n}:{n-y[0]}")
                    q = q[len(q) - k:] if k else []
    return " ".join(out)
```

```python
from front import *

VK, VV = 18, 19
VBAD, VGL = 43, 44
VNL, VLS = 10, 14
VX = 46
SB = [[U(1), U(3)], [U(6), U(7)]]
PB = [U(5), U(8)]
NEGM, MK = U(10), U(11)
A_L, A_K, A_V, A_ONE = 128, 144, 176, 208
def a_o(db, a): return 16 * db + 4 * a
S_DM0, S_DSO, S_CNT, S_ACT2, S_EO = 67, 68, 69, 7, 49
RING_A, RING_B, STASH = 0x10000, 0, 0x20000
LSUM = 0x4000
ALL = [0, 1, 2, 3]

class Per:
    def __init__(self, ph, qk=ALL, mask=None, pv=ALL, first=False, dma=(1, 1), dph=None, kph=None, vph=None, kread=True, vread=True,
                 amajor=None, vregs=A_V, bar=True, kregs=A_K, pad=0, early=False):
        self.ph = ph
        self.qk = qk; self.mask = mask; self.pv = pv; self.first = first
        self.dma = dma
        self.dph = ph if dph is None else dph
        self.kph = (ph + 1) % 4 if kph is None else kph
        self.vph = ph if vph is None else vph
        self.kread = kread; self.vread = vread; self.amajor = amajor; self.vregs = vregs; self.bar = bar
        self.kregs = kregs; self.pad = pad; self.early = early

NSPLIT = 5
def seq(name, pers, par0, carry_in=True, carry_out=True, extra=None, tail=None, tail_ok=False):
    spine = []; info = []
    for n, P in enumerate(pers):
        par = (par0 + n) & 1
        d = dict(start=len(spine), sdone={}, odone={}, vlast={}, klast={})
        order = [(kvb, ds) for kvb in range(2) for ds in range(4)] if len(P.qk) > 1 else [(kvb, ds) for ds in range(4) for kvb in range(2)]
        for kvb, ds in order:
            for a in P.qk:
                D = r4("v", SB[par][kvb] + 4 * a)
                C = D if ds else (r4("v", MK + 8 + 4 * kvb) if a == P.mask else r4("v", NEGM + 4 * a))
                spine.append(I(f"{MF} {D}, {r4('a', P.kregs + 16 * kvb + 4 * ds)}, {r4('v', q_reg(a, ds))}, {C}"))
                d["sdone"][(kvb, a)] = len(spine) - 1
        d["qkend"] = len(spine)
        spine += [None] * P.pad
        d["mid"] = len(spine)
        pp = PB[par ^ 1]
        def summ(a):
            D = r4("a", A_L + 4 * a)
            spine.append(I(f"{MF} {D}, {r4('a', A_ONE)}, {r4('v', pp + 4 * a)}, {'0' if P.first else D}"))
        def pv(db, a):
            D = r4("a", a_o(db, a))
            spine.append(I(f"{MF} {D}, {r4('a', P.vregs + 4 * db)}, {r4('v', pp + 4 * a)}, {'0' if P.first else D}"))
            d["odone"][a] = len(spine) - 1; d["vlast"][db] = len(spine) - 1
        if P.amajor:
            for a in P.amajor:
                summ(a)
                for db in range(8): pv(db, a)
        else:
            for a in P.pv: summ(a)
            for db in range(8):
                for a in P.pv: pv(db, a)
        d["end"] = len(spine)
        info.append(d)
    ds = []; vm = []; ex = []; cv = []; mk = []
    def softmax(par, tiles, done, dl=None):
        for (kvb, a) in tiles:
            e = done(kvb, a); b = SB[par][kvb] + 4 * a
            es = [I(f"v_exp_f32 v{b+r}, v{b+r}", earliest=e) for r in range(4)]
            ex.extend(es)
            for k in range(2):
                c = I(f"v_cvt_pk_bf16_f32 v{PB[par] + 4 * a + 2 * kvb + k}, v{b+2*k}, v{b+2*k+1}", earliest=e, deps=[(es[2 * k + 1], 1)])
                if dl is not None: c.deadline = dl
                cv.append(c)
    full = [(kvb, a) for kvb in range(2) for a in ALL]
    if carry_in: softmax(par0 ^ 1, full[NSPLIT:], lambda k, a: 0)
    bars = []
    for n, P in enumerate(pers):
        d = info[n]; par = (par0 + n) & 1
        if P.mask is not None and n > 0:
            e = max(d["start"] - 12, info[n - 1]["qkend"] - 4)
            for kvb in range(2):
                for r in range(4):
                    mk.append(I(f"v_add_f32 v{MK + 8 + 4 * kvb + r}, v{MK + 4 * kvb + r}, v{NEGM + 4 * P.mask}", earliest=e))
            d["mk"] = mk[-8:]
        lastv = None
        if P.vread and (P.pv or P.amajor):
            nq = d["mid"] - d["start"]
            for db in range(8):
                x = I(f"ds_read_b128 {r4('a', P.vregs + 4 * db)}, v{VV} offset:{P.vph * 16384 + db * 1024}")
                if P.vregs == A_V:
                    x.earliest = d["start"] + (db * max(nq - 10, 0)) // 10
                    if n and db in info[n - 1]["vlast"] and nq < 24: x.earliest = max(info[n - 1]["vlast"][db], info[n - 1]["klastpos"] + 1)
                else: x.earliest = info[n - 1]["mid"] + 2 * db
                ds.append(x); lastv = x; d.setdefault("vreads", []).append(x)
        if P.bar:
            e = d["mid"] - 1 if not P.early else d["start"] + 6
            w = [WAITG("kv", n + 1), I("s_barrier")]
            if lastv is not None: w.insert(0, WAITLGKM(lastv))
            if P.early: w.insert(0, I("s_waitcnt lgkmcnt(0)"))
            for x in w: x.earliest = max(e - 1, d["start"]); x.deadline = max(e, d["start"])
            ds += w; d["bar"] = w[-1]; d["barwait"] = w[0]
        d["klastpos"] = d["mid"]
        if P.kread:
            npv = d["end"] - d["mid"]
            for f in range(8):
                kvb, dsi = (f >> 2, f & 3) if (n + 1 >= len(pers) or len(pers[n + 1].qk) > 1) else (f & 1, f >> 1)
                kr = pers[n + 1].kregs if n + 1 < len(pers) else A_K
                x = I(f"ds_read_b128 {r4('a', kr + 16 * kvb + 4 * dsi)}, v{VK} offset:{P.kph * 16384 + 8192 + (4 * kvb + dsi) * 1024}")
                x.earliest = d["mid"] - 1 + (f * max(npv - 12, 0)) // 10 if not P.early else d["start"] + 7 + 2 * f
                d.setdefault("kreads", []).append(x)
                ds.append(x); d["klastpos"] = x.earliest
        def dmas(slot, h, goff, e0, span, dep):
            o = L(f"s_add_u32 m0, s{S_DM0}, {slot * 16384 + 4096 * h}")
            for k in range(4):
                x = I(f"buffer_load_dwordx4 v{VST}, s[{SRD_WS}:{SRD_WS+3}], s{S_DSO} offen offset:{1024 * k} sc1 lds"); x.grp = ("kv", goff)
                x.earliest = e0 + (k * span) // 4; x.maxlag = 4
                o.append(x)
            o += L(f"s_add_u32 s{S_DSO}, s{S_DSO}, {12288 if h else 4096}")
            o[0].earliest = e0; o[0].deps = [dep] if dep else []; o[1].deps = [(o[0], 1)]
            return o
        if P.dma[0]:
            o = dmas((P.dph + 3) % 4, 1, n + 3, d["start"], d["mid"] - d["start"] - 4, None)
            o[-2].deadline = d["end"] - 1
            vm += o
        if P.dma[1]:
            e0 = d["mid"] if not P.early else d["start"] + 8
            o = dmas(P.dph, 0, n + 4, e0, d["end"] - e0 - 4, (d["bar"], 0))
            o[-2].deadline = o[-1].deadline = d["end"] - 1
            vm += o
        tiles = [(kvb, a) for kvb in range(2) for a in P.qk]
        last = n == len(pers) - 1
        if last and carry_out:
            assert P.qk == ALL
            softmax(par, tiles[:NSPLIT], lambda k, a: d["sdone"][(k, a)] + 8, dl=d["end"] - 1)
        else:
            nx = pers[n + 1] if not last else None
            if nx is not None and nx.amajor: tiles = [(kvb, a) for kvb in range(2) for a in nx.amajor]
            softmax(par, tiles, lambda k, a: d["sdone"][(k, a)] + SLAG(P))
    xs = extra(info) if extra else []
    st = [ds, vm, mk, ex, cv] + xs
    if tail:
        tail.earliest = tail.deadline = len(spine) - 1
        st.append([tail])
    out = schedule(spine, st, verbose=name, tail_ok=tail_ok)
    out = fix_hazards(out)
    tk = [TICK("kv", len(pers))]
    if tail: return out[:-1] + tk + out[-1:]
    return out + tk

def SLAG(P): return 8 if len(P.qk) >= 3 else 4

A_K2 = 212
EG = [FR, FR + 8]
VL = 40
def store_ctx(b, sbase, ds, a):
    o = []
    if ds: o += L(f"s_add_u32 s{S_EO}, s{sbase}, {ds * 8192}")
    o += L(f"buffer_store_dwordx4 {r4('v', b)}, v{VST2 if a >= 2 else VST}, s[{SRD_WS}:{SRD_WS+3}], s{S_EO if ds else sbase} offen offset:{(a & 1) * 2048} sc1")
    return o
def scale_ops(vl, vg):
    return L(f"""v_subrev_u32 v{vl+1}, 0x1f800000, v{vl}
      v_rcp_f32 v{vl}, v{vl}
      v_max_u32 v{VBAD}, v{VBAD}, v{vl+1}
      v_mul_f32 v{vl}, v{vl}, v{vg}""")
egc = [0]
def epi_own(a, e):
    o = L(f"v_accvgpr_read_b32 v{VL}, a{A_L + 4 * a}") + scale_ops(VL, VC + 2 * a)
    for ds in range(4):
        t = EG[egc[0] & 1]; egc[0] += 1
        for k in range(2):
            for r in range(4): o += L(f"v_accvgpr_read_b32 v{t+4*k+r}, a{a_o(2*ds+k, a)+r}")
            for r in range(4): o += L(f"v_mul_f32 v{t+4*k+r}, v{VL}, v{t+4*k+r}")
            o += L(f"v_cvt_pk_bf16_f32 v{t+2*k}, v{t+4*k}, v{t+4*k+1}", f"v_cvt_pk_bf16_f32 v{t+2*k+1}, v{t+4*k+2}, v{t+4*k+3}")
        st = store_ctx(t, S_ACT, ds, a); st[-1].maxlag = 2
        o += st
    for x in o: x.earliest = e
    return o

HL = []
def front_tail(ctx):
    S, misc, vm, bars, barpos = ctx["S"], ctx["misc"], ctx["vm"], ctx["bars"], ctx["barpos"]
    HL.append(ctx["h_last"])
    pl = poll("kv", VT + 10, L(f"s_lshl_b32 s{S_PO}, s{S_H}, 2", f"s_add_u32 s{S_PO}, s{S_PO}, {DBG_KV}"), 8, S[106], S[116])
    misc += pl
    su = L(f"""s_mul_i32 s{S_DSO}, s{S_H}, {hex(KV_HEAD)}
      s_add_u32 s{S_DSO}, s{S_DSO}, {hex(KV_BASE - 8192)}
      s_add_u32 s{S_CNT}, s{S_DSO}, s{S_WM0}""")
    misc += su
    o = []
    for sl in range(4):
        u = L(f"s_add_u32 m0, s{S_WM0}, {RING_A + sl * 16384}", f"s_add_u32 s{S_DT}, s{S_CNT}, {sl * 16384}")
        for k in range(4):
            x = I(f"buffer_load_dwordx4 v{VST}, s[{SRD_WS}:{SRD_WS+3}], s{S_DT} offen offset:{1024 * k} sc1 lds"); x.grp = ("kv", sl); u.append(x)
        o += u
    o[0].deps = [(su[-1], 0)]
    for x in o: x.earliest = S[123]
    assert vm[-1].earliest < S[123] + 16
    vm += o; ctx["cur"][0] = None
    su2 = L(f"""s_and_b32 s{S_PT}, s{S_W}, 1
      s_lshl_b32 s{S_PT}, s{S_PT}, 13
      s_add_u32 s{S_DSO}, s{S_DSO}, s{S_PT}""")
    su2 += [Bundle(L(f"s_cmp_lt_u32 s{S_W}, 2", f"s_cselect_b32 s{S_DM0}, {RING_A}, {RING_B}", f"s_cselect_b32 s{S_PO}, 4, 34"))]
    su2 += L(f"""s_lshl_b32 s{S_PO}, s{S_PO}, 14
      s_add_u32 s{S_DM0}, s{S_DM0}, s{S_PT}
      s_add_u32 s{S_DSO}, s{S_DSO}, s{S_PO}
      s_lshl_b32 s{S_PO}, s{S_J}, 1
      s_sub_u32 s{S_PO}, 15, s{S_PO}
      s_mul_i32 s{S_PO}, s{S_PO}, {hex(ACT_RB)}
      s_add_u32 s{S_ACT2}, s{S_ACT}, s{S_PO}
      v_add_u32 v{VK}, {RING_A}, v{VST}
      v_add_u32 v{VV}, {RING_A}, v{VST}
      v_mov_b32 v{VBAD}, 0
      s_lshl_b32 s{S_PT}, s{S_PT}, 1
      v_add_u32 v{VX}, s{S_PT}, v{VST}
      s_lshr_b32 s{S_PT}, s{S_PT}, 4
      v_add_u32 v{VLS}, s{S_PT}, v{VST}""")
    misc += su2
    t = VT + 8
    mk = L(f"""v_and_b32 v{t}, 15, v0
      v_lshrrev_b32 v{t+1}, 4, v0
      v_lshlrev_b32 v{t+1}, 2, v{t+1}
      v_sub_u32 v{t}, v{t}, v{t+1}
      s_and_b32 s{S_PT}, s{S_W}, 1
      s_lshl_b32 s{S_PT}, s{S_PT}, 4
      v_add_u32 v{t}, s{S_PT}, v{t}
      v_mov_b32 v{t+1}, 0xff800000""")
    for kvb in range(2):
        for r in range(4):
            mk += [Bundle(L(f"v_cmp_le_i32 vcc, {16 * kvb + r}, v{t}", "s_nop 1", f"v_cndmask_b32 v{MK + 4 * kvb + r}, v{t+1}, 0, vcc".replace(", 0, vcc", f", v{VBAD}, vcc")))]
    for x in mk: x.earliest = S[121]
    misc += mk
    ng = L(*[f"v_mov_b32 v{NEGM + r}, 0" for r in range(16)]) + L(*[f"v_mov_b32 v{VNL + r}, 0" for r in range(4)])
    ng += L(*[f"v_mov_b32 v{MK + 8 + r}, v{MK + r}" for r in range(8)])
    for x in ng: x.earliest = S[121]
    misc += ng
    w = [WAITG("kv", 0), I("s_barrier")]
    w[0].deps = [(o[5], 100)]
    for f in range(8): w.append(I(f"ds_read_b128 {r4('a', A_K + 4 * f)}, v{VK} offset:{8192 + f * 1024}"))
    for x in w: x.earliest = S[134] + 4
    w[2].deps = [(su2[-1], 1)]
    return [w]

def ones():
    return L(f"v_mov_b32 v{VT}, 0x3f803f80") + L(*[f"v_accvgpr_write_b32 a{A_ONE + r}, v{VT}" for r in range(4)])

def head(isL):
    D = (1, 1) if isL else (0, 0)
    pers = [Per(0, pv=[], dma=(0, D[1]), early=True), Per(1, first=True, dma=D, kregs=A_K2), Per(2, dma=D), Per(3, dma=D)]
    def extra(info):
        xs = [ones()]
        info[3]["barwait"].waitfor.append(HL[0])
        if isL:
            from back import sig_group, flag_addr, sig_store
            sg = sig_group(0) + [Bundle(flag_addr(VL, 11, 4, None))] + [sig_store(VL)]
            sg[-1].deps = [(info[3]["bar"], 0)]
            xs.append(sg)
            st = [I(f"ds_write_b128 v{VX+1}, {r4('v', q_reg(a, ds))} offset:{(4 * a + ds) * 1024}") for a in range(4) for ds in range(4)]
            st = L(f"v_add_u32 v{VX+1}, {STASH}, v{VX}") + st
            st[1].deps = [(info[0]["bar"], 0)]
            info[1]["barwait"].waitfor.append(st[-1]); info[1]["barwait"].deps.append((st[-1], 2))
            xs.append(st)
        cnt = L(f"s_mov_b32 s{S_CNT}, 7") if isL else L(f"s_sub_u32 s{S_CNT}, s{S_J}, 1")
        xs.append(cnt)
        return xs
    return seq("head" + "SL"[isL], pers, 0, carry_in=False, extra=extra)

def loop(dma, label):
    D = (1, 1) if dma else (0, 0)
    pers = [Per(i, dma=D) for i in range(4)]
    tail = Bundle(L(f"s_cmp_lg_u32 s{S_CNT}, 0", f"s_cbranch_scc1 {label}"))
    out = seq("loop" + "ND"[dma], pers, 0, extra=lambda info: [L(f"s_sub_u32 s{S_CNT}, s{S_CNT}, 1")], tail=tail)
    return L(label + ":") + out

def gl_load():
    return L(f"""v_and_b32 v{VL+2}, 15, v0
        v_lshlrev_b32 v{VL+2}, 3, v{VL+2}
        s_sub_u32 s{S_PO}, 15, s{S_J}
        s_lshl_b32 s{S_PO}, s{S_PO}, 3
        s_and_b32 s{S_PT}, s{S_W}, 1
        s_add_u32 s{S_PO}, s{S_PO}, s{S_PT}
        s_lshl_b32 s{S_PO}, s{S_PO}, 7
        s_add_u32 s{S_PO}, s{S_PO}, {hex(G_BASE)}
        buffer_load_dword v{VGL}, v{VL+2}, s[{SRD_WS}:{SRD_WS+3}], s{S_PO} offen offset:512 sc1
        buffer_load_dword v{VGL+1}, v{VL+2}, s[{SRD_WS}:{SRD_WS+3}], s{S_PO} offen offset:768 sc1""")

def switch(j0):
    p0 = Per(0, mask=0, dma=(0, 1), dph=2) if not j0 else Per(0, mask=0, pv=[], dma=(0, 1), dph=2, early=True)
    pers = [p0,
            Per(1, qk=[1, 2, 3], mask=1, dph=3, pad=8, first=j0, kregs=A_K2 if j0 else A_K),
            Per(2, qk=[2, 3], mask=2, pv=[1, 2, 3], dph=0, pad=16),
            Per(3, qk=[3], mask=3, pv=[2, 3], dph=1, kph=2, pad=32),
            Per(2, pv=[3], vph=0, pad=18),
            Per(3, first=True, amajor=[0, 1, 2, 3], pad=26)]
    def extra(info):
        ep = []
        for a in range(4): ep += epi_own(a, info[a + 1]["odone"][a] + 8)
        q = L(f"v_add_u32 v{VX+1}, {STASH}, v{VX}")
        for a in range(4):
            for ds in range(4):
                q.append(I(f"ds_read_b128 {r4('v', q_reg(a, ds))}, v{VX+1} offset:{(4 * a + ds) * 1024}", earliest=max(info[a]["qkend"], info[2]["mid"])))
        sw = [I(f"v_add_u32 v{VK}, {RING_B - RING_A}, v{VK}", deps=[(info[2]["kreads"][-1], 0)]),
              I(f"v_add_u32 v{VV}, {RING_B - RING_A}, v{VV}", deps=[(info[4]["vreads"][-1], 0)])]
        info[3]["kreads"][0].deps.append((sw[0], 1)); info[5]["vreads"][0].deps.append((sw[1], 1))
        ng = []
        for a in range(4):
            for r in range(4): ng.append(I(f"v_mov_b32 v{NEGM + 4 * a + r}, v{VNL + a}", earliest=info[a]["qkend"] + 2))
        for r in range(8): ng.append(I(f"v_add_f32 v{MK + 8 + r}, v{MK + r}, v{NEGM}"))
        xs = [sw, q, ng, ep, gl_load() + L(f"s_sub_u32 s{S_CNT}, 6, s{S_J}")]
        if j0: xs.insert(0, ones()); info[3]["barwait"].waitfor.append(HL[0])
        return xs
    pre = []
    return seq("switch0" if j0 else "switch", pers, 0, carry_in=not j0, extra=extra, tail_ok=True)

def final(j7):
    pers = [Per(0, mask=0, dma=(1, 1)),
            Per(1, qk=[1, 2, 3], mask=1, dma=(1, 0), pad=0 if j7 else 8),
            Per(2, qk=[2, 3], mask=2, pv=[1, 2, 3], dma=(0, 0), pad=0 if j7 else 16),
            Per(3, qk=[3], mask=3, pv=[2, 3], dma=(0, 0), kread=False, pad=0 if j7 else 32),
            Per(0, qk=[], pv=[3], dma=(0, 0), kread=False, bar=False, vregs=A_K)]
    def extra(info):
        if j7:
            ep = []
            for a in range(4): ep += epi_own(a, info[a + 1]["odone"][a] + 8)
            return [ep]
        x = L(f"v_add_u32 v{VX+1}, {STASH}, v{VX}")
        for a in range(2):
            e = info[a + 1]["odone"][a] + 8
            for db in range(8): x.append(I(f"ds_write_b128 v{VX+1}, {r4('a', a_o(db, a))} offset:{(8 * a + db) * 1024}", earliest=e))
            x.append(I(f"ds_write_b32 v{VLS}, a{A_L + 4 * a} offset:{LSUM + 4 * a}", earliest=e, deps=[(info[1]["bar"], 0)]))
        info[3]["barwait"].waitfor.append(x[-1]); info[3]["barwait"].deps.append((x[-1], 2))
        m = []
        for a in (2, 3):
            e = max(info[a + 1]["odone"][a] + 8, info[3]["qkend"] + 1)
            for db in range(8):
                for r in range(4): m.append(I(f"v_accvgpr_read_b32 v{mreg(a - 2, db) + r}, a{a_o(db, a) + r}", earliest=e))
            m.append(I(f"v_accvgpr_read_b32 v{VL + 2 * (a - 2)}, a{A_L + 4 * a}", earliest=e))
        return [x, m]
    return seq("final7" if j7 else "final", pers, 0, carry_out=False, extra=extra, tail_ok=True)

def mreg(a2, db): return U(Q_UNITS[2 * a2 + (db >> 2)]) + 4 * (db & 3)
def nreg(a2, db): return SB[a2][db >> 2] + 4 * (db & 3)
VL2 = VT + 8

def finalize(isL):
    o = []
    for a2 in range(2):
        a = a2 if isL else a2 + 2
        vl = VL + 2 * a2
        sc = VT + 2 * a2
        o += L(f"v_add_f32 v{sc}, v{vl}, v{VL2 + a2}") + scale_ops(sc, VC + 2 * a if isL else VGL + a2) + L(f"v_mov_b32 v{sc+1}, v{sc}")
        for ds in range(4):
            for k in range(2):
                m, n = mreg(a2, 2 * ds + k), nreg(a2, 2 * ds + k)
                if isL:
                    for r in range(4): o += L(f"v_accvgpr_read_b32 v{n+r}, a{a_o(2*ds+k, a)+r}")
                for r in (0, 2): o += L(f"v_pk_add_f32 {r2('v', m+r)}, {r2('v', m+r)}, {r2('v', n+r)}")
                for r in (0, 2): o += L(f"v_pk_mul_f32 {r2('v', m+r)}, {r2('v', m+r)}, {r2('v', sc)}")
            m0, m1 = mreg(a2, 2 * ds), mreg(a2, 2 * ds + 1)
            o += L(f"v_cvt_pk_bf16_f32 v{m0}, v{m0}, v{m0+1}", f"v_cvt_pk_bf16_f32 v{m0+1}, v{m0+2}, v{m0+3}",
                   f"v_cvt_pk_bf16_f32 v{m0+2}, v{m1}, v{m1+1}", f"v_cvt_pk_bf16_f32 v{m0+3}, v{m1+2}, v{m1+3}")
            o += store_ctx(m0, S_ACT if isL else S_ACT2, ds, a)
    return o

def ltail():
    pers = [Per(0, dma=(0, 0)), Per(1, dma=(0, 0), kread=False),
            Per(2, qk=[], amajor=[2, 3, 0, 1], dma=(0, 0), kread=False, bar=False, vregs=A_K)]
    def extra(info):
        rd = L(f"v_add_u32 v{VX+1}, {STASH}, v{VX}")
        for a2 in range(2):
            for db in range(8): rd.append(I(f"ds_read_b128 {r4('v', mreg(a2, db))}, v{VX+1} offset:{(8 * a2 + db) * 1024}", earliest=info[1]["mid"] + 18))
            rd.append(I(f"ds_read_b32 v{VL2 + a2}, v{VLS} offset:{LSUM + 4 * a2}"))
        rd[1].deps = [(info[1]["bar"], 0)]
        x = rd + L(f"v_add_u32 v{VX+1}, {RING_A}, v{VX}")
        for a in (2, 3):
            e = info[2]["odone"][a] + 5
            x.append(I(f"ds_write_b32 v{VLS}, a{A_L + 4 * a} offset:{LSUM + 4 * a}", earliest=e))
            for db in range(8): x.append(I(f"ds_write_b128 v{VX+1}, {r4('a', a_o(db, a))} offset:{(8 * (a - 2) + db) * 1024}", earliest=e - 7 + db))
        x += [WAITLGKM(x[-1]), I("s_barrier")]
        return [x]
    o = seq("ltail", pers, 0, carry_out=False, extra=extra, tail_ok=True)
    o += L(f"v_accvgpr_read_b32 v{VL}, a{A_L}", f"v_accvgpr_read_b32 v{VL+2}, a{A_L+4}") + finalize(True)
    return fix_hazards(o)

def smerge():
    o = L("s_barrier", f"v_add_u32 v{VX+1}, {RING_A}, v{VX}")
    for a2 in range(2):
        o += L(f"ds_read_b32 v{VL2 + a2}, v{VLS} offset:{LSUM + 4 * (a2 + 2)}")
        for db in range(8): o += L(f"ds_read_b128 {r4('v', nreg(a2, db))}, v{VX+1} offset:{(8 * a2 + db) * 1024}")
    return fix_hazards(o + finalize(False))

def k12(name, p4):
    K = Kernel(name, 256, 163840)
    pro, main = front(front_tail)
    K.add("pro", stamp(0) + entry("Lexit1") + pro)
    K.add("front", main + stamp(10) + L(f"s_cmp_ge_u32 s{S_W}, 2", "s_cbranch_scc1 LS"))
    K.add("headL", head(True))
    K.add("loopD", loop(True, "LloopD"))
    K.add("afterD", L(f"s_cmp_eq_u32 s{S_J}, 7", "s_cbranch_scc1 Lfinal7", f"s_cmp_ge_u32 s{S_W}, 2", "s_cbranch_scc1 Lfinal"))
    K.add("ltail", ltail() + L("s_branch Ldone"))
    K.add("S0", L("LS:", f"s_cmp_eq_u32 s{S_J}, 0", "s_cbranch_scc1 Lswitch0"))
    K.add("headS", head(False) + L(f"s_cmp_eq_u32 s{S_CNT}, 0", "s_cbranch_scc1 Lswitch"))
    K.add("loopN", loop(False, "LloopN"))
    K.add("afterN", L(f"s_cmp_eq_u32 s{S_J}, 7", "s_cbranch_scc1 Lfinal7"))
    K.add("switch", L("Lswitch:") + switch(False) + L(f"s_cmp_lg_u32 s{S_CNT}, 0", "s_cbranch_scc1 LloopD"))
    K.add("final", L("Lfinal:") + final(False) + smerge() + L("s_branch Ldone"))
    K.add("switch0", L("Lswitch0:") + switch(True) + L("s_branch LloopD"))
    K.add("final7", L("Lfinal7:") + final(True))
    K.add("bar7", L(f"s_cmp_lt_u32 s{S_W}, 2", "s_cbranch_scc1 Ldone", "s_barrier", "s_barrier", "s_barrier", "s_barrier"))
    a, b, c = p4()
    K.add("done", L("Ldone:") + stamp(11) + a + b + c + prof_out(0, 15) + L("Lexit1:", "s_endpgm"))
    pf = ["pro", "front"]
    K.paths = [pf + ["headL", "loopD", "loopD", "loopD", "afterD", "ltail", "done"],
               pf + ["headL", "loopD", "loopD", "afterD", "final7", "bar7", "done"],
               pf + ["S0", "headS", "switch", "loopD", "loopD", "afterD", "final", "done"],
               pf + ["S0", "headS", "loopN", "loopN", "afterN", "switch", "final", "done"],
               pf + ["S0", "headS", "loopN", "afterN", "switch", "loopD", "afterD", "final", "done"],
               pf + ["S0", "headS", "loopN", "loopN", "afterN", "final7", "bar7", "done"],
               pf + ["S0", "switch0", "loopD", "loopD", "afterD", "final", "done"]]
    K.add("slow", [i for b in slow_blocks for i in b])
    K.finish()
    return K
```

```python
from attn import *

SRD_W2, SRD_WO, SRD_OUT = 8, 12, 16
S_WS, S_AB, S_AT, S_M0 = 44, 45, 46, 47
S_P0 = 50
S_IB = 54
S_RB, S_OB = 55, 56
ACC, WF, VD, VA = 64, 208, 232, 241
VF = 245
NF = 6
STG = [4, 4, 4, 4, 2, 4, 4, 4, 4]
SLOT = 36864
AR = 12
def acc(mt, a): return ACC + 16 * mt + 4 * a
def bact(ks, a): return r4("a", 16 * (ks % AR) + 4 * a)

def flag_addr(v, lane_shift, nl, word_ops):
    return L(f"""v_cmp_gt_u32 vcc, {nl}, v0
      v_lshlrev_b32 v{v}, {lane_shift}, v0
      v_mov_b32 v{v+1}, 1
      v_cndmask_b32 v{v}, -1, v{v}, vcc""")

def sig_group(word):
    o = L(f"""s_and_b32 s{S_PO}, s2, 0xe7
      s_lshl_b32 s{S_PO}, s{S_PO}, 6
      s_lshr_b32 s{S_PT}, s{S_H}, 3
      s_add_u32 s{S_PO}, s{S_PO}, s{S_PT}
      s_lshl_b32 s{S_PO}, s{S_PO}, 2
      s_add_u32 s{S_PO}, s{S_PO}, {hex(INBOX + 4 * word)}
      s_lshl_b32 s{S_PT}, s{S_SIG}, 20
      s_add_u32 s{S_PO}, s{S_PO}, s{S_PT}""")
    return o
def sig_store(v): return I(f"buffer_store_dword v{v+1}, v{v}, s[{SRD_WS}:{SRD_WS+3}], s{S_PO} offen sc1")

def poll2(tag, v, word, nw, t_issue=0, t_check=0):
    ld = f"buffer_load_dword v{v+1}, v{v}, s[{SRD_WS}:{SRD_WS+3}], s{S_IB} offen offset:{4 * word} sc1"
    a = L(f"v_and_b32 v{v}, {nw - 1}, v0", f"v_lshlrev_b32 v{v}, 2, v{v}", ld)
    for x in a: x.earliest = t_issue
    a[-1].deadline = t_issue + 8
    b = Bundle(L(f"v_cmp_ne_u32 vcc, 1, v{v+1}", "s_nop 4", f"s_cbranch_vccnz Lpoll_{tag}", f"Lback_{tag}:"), earliest=t_check)
    slow_blocks.append(L(f"""Lpoll_{tag}:
      {ld}
      s_waitcnt vmcnt(0)
      v_cmp_ne_u32 vcc, 1, v{v+1}
      s_nop 4
      s_cbranch_vccz Lback_{tag}
      s_branch Lpoll_{tag}"""))
    return a, b

def p4_setup():
    t = VF
    o = L(f"""s_load_dwordx2 s[{SRD_W2}:{SRD_W2+1}], s[0:1], 64
      s_load_dwordx2 s[{SRD_WO}:{SRD_WO+1}], s[0:1], 40
      s_load_dwordx2 s[{SRD_OUT}:{SRD_OUT+1}], s[0:1], 80
      s_lshl_b32 s{S_IB}, s2, 8
      s_add_u32 s{S_IB}, s{S_IB}, {hex(INBOX)}
      s_cmp_lg_u32 s{S_W}, 0
      s_cselect_b32 s{S_SIG}, 256, 0
      s_mul_i32 s{S_M0}, s{S_W}, 9216
      s_lshr_b32 s{S_AT}, s{S_H}, 3
      s_lshl_b32 s{S_AB}, s{S_AT}, 15
      s_sub_u32 s{S_AB}, s{S_ACT}, s{S_AB}
      s_sub_u32 s{S_AB}, s{S_AB}, {18 * 8192}
      s_mul_i32 s{S_AT}, s{S_AT}, 288
      s_and_b32 s{S_PT}, s{S_H}, 7
      s_mul_i32 s{S_WS}, s{S_PT}, 18
      s_add_u32 s{S_WS}, s{S_WS}, s{S_W}
      s_mul_i32 s{S_WS}, s{S_WS}, {32 * 1152}
      s_add_u32 s{S_WS}, s{S_WS}, s{S_AT}""")
    o += srd(SRD_W2, SRD_W2, 4608 * 1152) + srd(SRD_WO, SRD_WO, 4096 * 1152) + srd(SRD_OUT, SRD_OUT, 2048 * 1152)
    for n in range(9):
        o += L(f"""v_add_u32 v{t}, {64 * n}, v0
          v_mul_u32_u24 v{t}, 3641, v{t}
          v_lshrrev_b32 v{t}, 16, v{t}
          v_mul_u32_u24 v{t}, 864, v{t}
          v_add_u32 v{VD+n}, v{t}, v{VST}""")
        if n >> 2: o += L(f"v_add_u32 v{VD+n}, {4096 * (n >> 2)}, v{VD+n}")
    o += L(f"""v_lshrrev_b32 v{t}, 2, v0
      v_mul_u32_u24 v{t}, 288, v{t}
      v_and_b32 v{t+1}, 3, v0
      v_lshl_add_u32 v{VA}, v{t+1}, 3, v{t}""")
    for s in range(1, 4): o += L(f"v_add_u32 v{VA+s}, {SLOT * s}, v{VA}")
    return o

def p4():
    DA = int(os.environ.get("DA", "8")); DC = int(os.environ.get("DC", "6"))
    st_of = [s for s, n in enumerate(STG) for _ in range(n)]; sub_of = [q for n in STG for q in range(n)]
    spine = []; frags = []; done = {}
    for ks in range(34):
        for mt in range(9):
            w = r4("v", WF + 4 * (len(frags) % NF))
            for a in range(4):
                d = r4("v", acc(mt, a))
                spine.append(I(f"{MF} {d}, {w}, {bact(ks, a)}, {d if ks else '0'}")); done[(mt, a)] = len(spine) - 1
            frags.append((ks, mt, len(spine) - 1))
    ds = []; pro_ds = []; bars = {}; barpos = {0: 0}; shift = 0
    for f, (ks, mt, b) in enumerate(frags):
        s = st_of[ks]
        e = frags[f - NF][2] if f >= NF else None
        if mt == 0 and sub_of[ks] == 0:
            w = [WAITG("w", s), I("s_barrier")]
            if f:
                w.insert(0, WAITLGKM(ds[-1])); barpos[s] = e + 4
                for x in w: x.earliest = e + 3; x.deadline = e + 4
                ds += w
            else: pro_ds += w
            bars[s] = w[-1]
        for jj in range(2):
            x = I(f"ds_read_b64_tr_b16 {r2('v', WF + 4 * (f % NF) + 2 * jj)}, v{VA + s % 4} offset:{sub_of[ks] * 9216 + jj * 4608 + mt * 32}")
            if e is None: pro_ds.append(x)
            else:
                x.earliest = e + 2 * jj; x.deadline = e + 10 + 2 * jj; ds.append(x)
    def wdma(s):
        o = []
        if s == 5: o += L(f"""s_and_b32 s{S_DT}, s{S_H}, 7
              s_mul_i32 s{S_DT}, s{S_DT}, {(18 - 4) * 32 * 1152}
              s_sub_u32 s{S_WS}, s{S_WS}, s{S_DT}
              s_sub_u32 s{S_WS}, s{S_WS}, {4 * 128 * 1152}""")
        elif s: o += L(f"s_add_u32 s{S_WS}, s{S_WS}, {(128 if s < 5 else 1024) * 1152}")
        sr = SRD_W2 if s < 5 else SRD_WO
        for n in range(9):
            if n % 4 == 0: o += L(f"s_add_u32 m0, s{S_M0}, {(s % 4) * SLOT + 1024 * n}")
            x = I(f"buffer_load_dwordx4 v{VD+n}, s[{sr}:{sr+3}], s{S_WS} offen" + (f" offset:{1024 * (n & 3)}" if n & 3 else "") + " lds"); x.grp = ("w", s)
            if n % 4 == 0: x.deps = [(o[-1], 1)]
            o.append(x)
        return o
    def aload(ks):
        o = L(f"s_add_u32 s{S_AT}, s{S_AB}, {ks * 8192}")
        for a in range(4):
            o += L(f"buffer_load_dwordx4 {bact(ks, a)}, v{VST2 if a >= 2 else VST}, s[{SRD_WS}:{SRD_WS+3}], s{S_AT} offen offset:{(a & 1) * 2048} sc1")
        return o
    al = {ks: aload(ks) for ks in range(34)}
    pro_vm = wdma(0) + al[0] + al[1] + al[2] + al[3] + wdma(1) + [x for k in range(4, DA) for x in al[k]] + wdma(2)
    vm = []
    for s in range(3, 9):
        o = wdma(s)
        t0 = barpos[s - 3] + 1
        for k, x in enumerate(o): x.earliest = t0 + 5 * k
        if s > 3: o[0].deps = [(bars[s - 3], 0)]
        vm += o
    av = []; aw = []
    pa, pb = poll2("ctx", VF + 2, 4, 4, 36 * (18 - DC) - 100, 36 * (18 - DC) - 4)
    for ks in range(DA, 34):
        t0 = 36 * (ks - (DA if ks < 18 else DC))
        for k, x in enumerate(al[ks]): x.earliest = t0 + 8 * k
        if ks == 18: al[ks][0].deps = [(pb, 0)]
        av += al[ks]
    for ks in range(1, 34):
        w = WAITVM(al[ks][-1]); w.earliest = 36 * ks - 4; w.deadline = 36 * ks - 1; aw.append(w)
    for x in vm + av: x.maxlag = 6
    misc = sig_group(4) + [Bundle(flag_addr(VF, 11, 4, None))] + [sig_store(VF)]
    misc[-1].deps = [(bars[1], 0)]
    misc += pa + [pb]
    misc += L(f"""s_lshr_b32 s{S_PT}, s2, 3
      s_mul_i32 s{S_RB}, s{S_PT}, {64 * 9216}
      s_add_u32 s{S_RB}, s{S_RB}, {hex(PART_BASE)}
      s_and_b32 s{S_PT}, s{S_H}, 7
      s_lshl_b32 s{S_PO}, s{S_W}, 4
      s_add_u32 s{S_PO}, s{S_PO}, s{S_PT}
      s_mul_i32 s{S_PO}, s{S_PO}, 9216
      s_add_u32 s{S_P0}, s{S_RB}, s{S_PO}
      s_add_u32 s{S_P0+1}, s{S_P0}, 8192
      s_add_u32 s{S_P0+2}, s{S_P0}, {8 * 9216}
      s_add_u32 s{S_P0+3}, s{S_P0}, {8 * 9216 + 8192}
      s_mul_i32 s{S_PO}, s{S_PT}, {8 * 9216}
      s_add_u32 s{S_RB}, s{S_RB}, s{S_PO}""")
    misc += L(f"""s_and_b32 s{S_PO}, s2, 0xf8
      s_lshl_b32 s{S_OB}, s{S_W}, 1
      s_add_u32 s{S_PO}, s{S_PO}, s{S_OB}
      s_lshl_b32 s{S_PO}, s{S_PO}, 6
      s_add_u32 s{S_PO}, s{S_PO}, s{S_PT}
      s_lshl_b32 s{S_PO}, s{S_PO}, 2
      s_add_u32 s{S_PO}, s{S_PO}, {hex(INBOX + 32)}""") + [Bundle(flag_addr(VF, 8, 2, None))]
    misc += L(f"s_sub_u32 s{S_OB}, 15, s{S_J}") + [Bundle(L(f"s_cmp_lt_u32 s{S_PT}, 4", f"s_cselect_b32 s{S_OB}, s{S_OB}, s{S_J}"))]
    misc += L(f"""s_lshl_b32 s{S_OB}, s{S_OB}, 3
      s_bfe_u32 s{S_CNT}, s{S_PT}, 0x10001
      s_add_u32 s{S_OB}, s{S_OB}, s{S_CNT}
      s_and_b32 s{S_CNT}, s{S_PT}, 1
      s_lshl_b32 s{S_CNT}, s{S_CNT}, 2
      s_add_u32 s{S_OB}, s{S_OB}, s{S_CNT}
      s_mul_i32 s{S_OB}, s{S_OB}, {16 * 1152}
      s_lshr_b32 s{S_CNT}, s{S_H}, 3
      s_mul_i32 s{S_CNT}, s{S_CNT}, 288
      s_add_u32 s{S_OB}, s{S_OB}, s{S_CNT}""")
    R0, R1, O0, O1, T = 28, 29, 30, 31, 32
    misc += L(f"""s_lshl_b32 s{S_CNT}, s{S_W}, 11
      v_add_u32 v{R0}, s{S_CNT}, v{VST}
      s_lshl_b32 s{S_CNT}, s{S_W}, 8
      s_add_u32 s{S_CNT}, s{S_CNT}, 8192
      v_lshl_add_u32 v{R1}, v0, 2, s{S_CNT}
      v_and_b32 v{T}, 15, v0
      v_mul_u32_u24 v{T}, 1152, v{T}
      v_lshrrev_b32 v{T+1}, 4, v0
      v_lshl_add_u32 v{T}, v{T+1}, 3, v{T}
      s_lshl_b32 s{S_CNT}, s{S_W}, 6
      v_add_u32 v{O0}, s{S_CNT}, v{T}
      v_lshrrev_b32 v{T}, 2, v0
      v_bfe_u32 v{T+1}, v0, 1, 1
      v_lshl_add_u32 v{T}, v{T+1}, 5, v{T}
      v_mul_u32_u24 v{T}, 1152, v{T}
      v_and_b32 v{T+1}, 1, v0
      v_lshl_add_u32 v{T}, v{T+1}, 2, v{T}
      s_lshl_b32 s{S_CNT}, s{S_W}, 3
      s_add_u32 s{S_CNT}, s{S_CNT}, 256
      v_add_u32 v{O1}, s{S_CNT}, v{T}
      v_mov_b32 v{T}, 0x3f80
      v_mov_b32 v{T+1}, 0x3f800000""")
    pr, prb = poll2("red", VF + 2, 8, 8)
    misc += pr[:2]; pr[0].earliest = pr[1].earliest = 0
    misc[-1].deadline = len(spine) - 40
    epi = []
    for mt in range(9):
        for ap in range(2):
            b0, b1 = acc(mt, 2 * ap), acc(mt, 2 * ap + 1)
            o = L(f"v_cvt_pk_bf16_f32 v{b0}, v{b0}, v{b0+1}", f"v_cvt_pk_bf16_f32 v{b0+1}, v{b0+2}, v{b0+3}",
                  f"v_cvt_pk_bf16_f32 v{b0+2}, v{b1}, v{b1+1}", f"v_cvt_pk_bf16_f32 v{b0+3}, v{b1+2}, v{b1+3}",
                  f"buffer_store_dwordx4 {r4('v', b0)}, v{VST2 if mt & 4 else VST}, s[{SRD_WS}:{SRD_WS+3}], s{S_P0 + 2 * ap + (mt >> 3)} offen offset:{(mt & 3) * 1024} sc1")
            for x in o: x.earliest = done[(mt, 2 * ap + 1)] + 5
            epi += o
    main = fix_hazards(schedule(spine, [ds, aw, vm, av, misc, epi], verbose="p4", nprio=2))
    if PROF:
        mf = [i for i, x in enumerate(main) if x.kind == "mfma"]
        main[mf[648]:mf[648]] = stamp(13)
    red = stamp(14) + L("s_waitcnt vmcnt(0)") + [sig_store(VF)] + [pr[2]] + flat([prb])
    D0 = 64
    for p in range(8):
        b = D0 + 12 * p
        if p: red += L(f"s_add_u32 s{S_RB}, s{S_RB}, 9216")
        red += L(f"""buffer_load_dwordx4 {r4('v', b)}, v{R0}, s[{SRD_WS}:{SRD_WS+3}], s{S_RB} offen sc1
          buffer_load_dwordx4 {r4('v', b+4)}, v{R0}, s[{SRD_WS}:{SRD_WS+3}], s{S_RB} offen offset:1024 sc1
          buffer_load_dword v{b+8}, v{R1}, s[{SRD_WS}:{SRD_WS+3}], s{S_RB} offen sc1""")
    A0 = 160
    for p in range(8):
        b = D0 + 12 * p
        for d in range(9):
            if p == 0: red += L(f"v_lshlrev_b32 v{A0+2*d}, 16, v{b+d}", f"v_and_b32 v{A0+2*d+1}, 0xffff0000, v{b+d}")
            else: red += L(f"v_lshlrev_b32 v{b+9}, 16, v{b+d}", f"v_and_b32 v{b+d}, 0xffff0000, v{b+d}",
                           f"v_add_f32 v{A0+2*d}, v{A0+2*d}, v{b+9}", f"v_add_f32 v{A0+2*d+1}, v{A0+2*d+1}, v{b+d}")
    for d in range(9): red += L(f"v_cvt_pk_bf16_f32 v{D0+d}, v{A0+2*d}, v{A0+2*d+1}")
    red += L(f"s_add_u32 s{S_CNT}, s{S_OB}, {32 * 1152}")
    for t in range(2):
        for a in range(2):
            red += L(f"buffer_store_dwordx2 {r2('v', D0 + 4 * t + 2 * a)}, v{O0}, s[{SRD_OUT}:{SRD_OUT+3}], s{S_CNT if a else S_OB} offen offset:{32 * t}")
    red += L(f"buffer_store_dword v{D0+8}, v{O1}, s[{SRD_OUT}:{SRD_OUT+3}], s{S_OB} offen")
    ha, hb = poll2("h", VF + 2, 0, 4)
    su = p4_setup()
    pro = fix_hazards(su[:5] + ha + su[5:] + flat([hb]) + L("s_barrier") + pro_vm + pro_ds + stamp(12))
    return pro, main, fix_hazards(red)

def full(name):
    K = k12(name, p4)
    return K
```

```python
from asm import *
import os

NAME = "gated_mix__compressed_kv_cla__dense_activation_silu__prompt"
MF = "v_mfma_f32_16x16x32_bf16"

KV_BASE = 0x10000
KV_HEAD = 0x104000
ACT_BASE = 0x2100000
ACT_RB = 34 * 8 * 1024
ACT_G = 16 * ACT_RB
G_BASE = 0x4400000
INBOX = 0x4480000
PART_BASE = 0x4500000
XI_BASE = 0x5800000
WS_SIZE = 0x8000000

LOG2E = 1.4426950408889634
import struct
def f2u(x): return "0x%08x" % struct.unpack("<I", struct.pack("<f", x))[0]

def r4(f, b): return f"{f}[{b}:{b+3}]"
def r2(f, b): return f"{f}[{b}:{b+1}]"

def L(*lines):
    out = []
    for t in lines:
        for x in t.split("\n"):
            x = x.strip()
            if x and not x.startswith(";"): out.append(I(x))
    return out

def srd(d, slot_lo, nbytes):
    o = []
    if d != slot_lo:
        o += L(f"s_mov_b32 s{d}, s{slot_lo}", f"s_mov_b32 s{d+1}, s{slot_lo+1}")
    o += L(f"s_mov_b32 s{d+2}, {hex(nbytes)}", f"s_mov_b32 s{d+3}, 0x00020000")
    return o

class Kernel:
    def __init__(self, name, grid, lds, vgpr=512):
        self.name = name; self.grid = grid; self.lds = lds; self.vgpr = vgpr
        self.blocks = {}; self.order = []; self.paths = []
    def add(self, name, ins):
        assert name not in self.blocks
        self.blocks[name] = Block(name, ins); self.order.append(name)
    def finish(self, verbose=True):
        if not self.paths: self.paths = [list(self.order)]
        insert_waits(self.blocks, self.paths)
        errs = []
        for p in self.paths:
            errs += check_hazards([i for b in p for i in self.blocks[b].ins])
        errs = sorted(set(errs))
        if errs: raise Exception("hazards:\n" + "\n".join(errs[:30]))
        if verbose:
            if os.environ.get("AGES"):
                for p in self.paths: print("  young vm waits:", wait_ages([i for b in p for i in self.blocks[b].ins]))
            for b in self.order:
                ins = self.blocks[b].ins
                print(f"  {b}: {len(ins)} ins, mfma={sum(1 for i in ins if i.kind=='mfma')}, est={est_cycles(ins)} cyc", end="")
                if len(ins) < 3000:
                    parts = [[]]
                    for i in ins:
                        parts[-1].append(i)
                        if i.mn == "s_barrier": parts.append([])
                    print("  intervals:", [est_cycles(x) for x in parts], end="")
                print()
    def text(self):
        o = [f".globl {self.name}", ".p2align 8", f".type {self.name},@function", f"{self.name}:"]
        for b in self.order:
            o.append(f"; ---- {b}")
            for i in self.blocks[b].ins:
                o.append(i.text if i.kind == "label" else "  " + i.text)
        return "\n".join(o)
    def desc(self):
        acc = 256 if self.vgpr > 256 else (self.vgpr + 3) // 4 * 4
        return f""".p2align 6
.amdhsa_kernel {self.name}
  .amdhsa_next_free_vgpr {self.vgpr}
  .amdhsa_next_free_sgpr 102
  .amdhsa_accum_offset {acc}
  .amdhsa_group_segment_fixed_size 0
  .amdhsa_kernarg_size 104
  .amdhsa_user_sgpr_count 2
  .amdhsa_user_sgpr_kernarg_segment_ptr 1
  .amdhsa_system_sgpr_workgroup_id_x 1
.end_amdhsa_kernel"""

def emit(kernels, path):
    hdr = [l.rstrip("\n") for l in open(f"cdna_kernels/{NAME}.s.ref") if l.startswith(";") and "@launch" not in l]
    o = list(hdr)
    if len(kernels) == 1 and kernels[0].name == NAME + "_kernel":
        k = kernels[0]
        o.append(f"; @launch grid=({k.grid},1,1) block=(256,1,1) lds={k.lds}")
    else:
        for k in kernels: o.append(f"; @launch kernel={k.name} grid=({k.grid},1,1) block=(256,1,1) lds={k.lds}")
    o += ['.amdgcn_target "amdgcn-amd-amdhsa--gfx950"', ".text"]
    for k in kernels: o.append(k.text())
    o += ['.section .rodata,"a"']
    for k in kernels: o.append(k.desc())
    open(path, "w").write("\n".join(o) + "\n")

import os
PROF = int(os.environ.get("PROF", "0"))
PROF_BASE = 0x7000000
S_PROF = 70
def stamp(k):
    if not PROF: return []
    return L(f"s_memrealtime s[{S_PROF+2*k}:{S_PROF+2*k+1}]")
def prof_out(kidx, nst, srd_ws=20, s_w=3):
    if not PROF: return []
    o = L(f"""s_waitcnt vmcnt(0) lgkmcnt(0)
      s_memrealtime s[{S_PROF+2*nst}:{S_PROF+2*nst+1}]
      s_lshl_b32 s24, s2, 2
      s_add_u32 s24, s24, s{s_w}
      s_lshl_b32 s24, s24, 6
      s_add_u32 s24, s24, {hex(PROF_BASE + kidx * 65536)}
      s_mov_b64 exec, 1
      v_mov_b32 v1, 0
      s_waitcnt lgkmcnt(0)""")
    for k in range(nst + 1):
        o += L(f"v_mov_b32 v2, s{S_PROF+2*k}", f"buffer_store_dword v2, v1, s[{srd_ws}:{srd_ws+3}], s24 offen offset:{4*k}")
    return o
```

```python
from common import *

S_W, S_H, S_J, S_SLOW = 3, 4, 5, 6
SRD_C, SRD_X, SRD_UK, SRD_UV, SRD_WS, SRD_W1, SRD_WQ, SRD_DBG = 8, 12, 16, 24, 20, 28, 32, 36
SRD_G = 40
S_T0, S_T1, S_T2, S_T3 = 44, 45, 46, 47
S_DT = 48
S_ET = 49
S_WM0, S_AM0 = 50, 51
S_CB, S_XB = 52, 53
S_WB, S_W1B, S_W1X = 54, 55, 56
S_KV = 57
S_ACT = 58
S_HK = 59
S_HX = 60
S_KSC, S_NL2E = 61, 62
S_BLK = 63
VTR, VTRX, VDMA, VDMA1, VDMAX, VCD, VXD, VAR, VST, VST2, VC = 1, 5, 7, 8, 9, 10, 12, 14, 16, 17, 20
VC = 20
VG = 24
VT = 28
FR = 48
U0 = 64
def U(n): return U0 + 16 * n
KSCALE = LOG2E / (128 ** 0.5)
DBG_G, DBG_KV = 0, 32

def setup():
    t0, t1, t2, t3 = VT, VT + 1, VT + 2, VT + 3
    o = L(f"""
      s_load_dwordx2 s[{SRD_X}:{SRD_X+1}], s[0:1], 0
      s_load_dwordx2 s[{SRD_G}:{SRD_G+1}], s[0:1], 72
      s_load_dwordx2 s[{SRD_C}:{SRD_C+1}], s[0:1], 8
      s_load_dwordx2 s[{SRD_UK}:{SRD_UK+1}], s[0:1], 24
      s_load_dwordx2 s[{SRD_UV}:{SRD_UV+1}], s[0:1], 32
      s_load_dwordx2 s[{SRD_WS}:{SRD_WS+1}], s[0:1], 96
      s_load_dwordx2 s[{SRD_W1}:{SRD_W1+1}], s[0:1], 56
      s_load_dwordx2 s[{SRD_WQ}:{SRD_WQ+1}], s[0:1], 16
      s_load_dwordx2 s[{SRD_DBG}:{SRD_DBG+1}], s[0:1], 88
      s_and_b32 s{S_H}, s2, 31
      s_lshr_b32 s{S_J}, s2, 5
    """)
    o += L(f"""
      v_lshrrev_b32 v{t0}, 3, v0
      s_lshl_b32 s{S_T0}, s{S_W}, 3
      v_add_u32 v{t0}, s{S_T0}, v{t0}
      v_and_b32 v{t2}, 3, v{t0}
      v_bfe_u32 v{t1}, v{t0}, 2, 2
      v_lshl_add_u32 v{t2}, v{t1}, 3, v{t2}
      v_lshrrev_b32 v{t1}, 4, v{t0}
      v_lshl_add_u32 v{t2}, v{t1}, 2, v{t2}
      v_bfe_u32 v{t0}, v{t0}, 1, 2
      v_bfe_u32 v{t1}, v0, 1, 2
      v_xor_b32 v{t0}, v{t0}, v{t1}
      v_and_b32 v{t1}, 1, v0
      v_lshlrev_b32 v{t1}, 4, v{t1}
      v_lshl_add_u32 v{t3}, v{t0}, 5, v{t1}
      v_lshl_add_u32 v{VDMA}, v{t2}, 13, v{t3}
      v_mul_u32_u24 v{t2}, 9216, v{t2}
      v_add_u32 v{VDMA1}, v{t2}, v{t3}
    """)
    o += L(f"""
      v_lshrrev_b32 v{t0}, 4, v0
      v_and_b32 v{t1}, 7, v0
      v_xor_b32 v{t0}, v{t0}, v{t1}
      v_lshlrev_b32 v{t0}, 4, v{t0}
      v_lshrrev_b32 v{t1}, 3, v0
      v_lshl_add_u32 v{VCD}, v{t1}, 10, v{t0}
      v_xor_b32 v{VCD+1}, 64, v{VCD}
      v_mul_u32_u24 v{t1}, 1152, v{t1}
      v_add_u32 v{VXD}, v{t1}, v{t0}
      v_xor_b32 v{VXD+1}, 64, v{VXD}
      s_lshl_b32 s{S_WM0}, s{S_W}, 12
      s_mul_i32 s{S_AM0}, s{S_W}, 24576
      s_add_u32 s{S_AM0}, s{S_AM0}, 0x10000
      s_lshl_b32 s{S_T0}, s{S_J}, 2
      s_add_u32 s{S_T0}, s{S_T0}, s{S_W}
      s_lshl_b32 s{S_CB}, s{S_T0}, 16
      s_lshl_b32 s{S_WB}, s{S_H}, 8
    """)
    o += srd(SRD_C, SRD_C, 2048 * 1024) + srd(SRD_UK, SRD_UK, 512 * 8192) + srd(SRD_X, SRD_X, 2048 * 1152) + srd(SRD_G, SRD_G, 1152)
    return o

def setup2():
    t0, t1, t2, t3 = VT, VT + 1, VT + 2, VT + 3
    o = srd(SRD_UV, SRD_UV, 512 * 8192) + srd(SRD_WS, SRD_WS, WS_SIZE) + srd(SRD_W1, SRD_W1, 576 * 9216) + srd(SRD_WQ, SRD_WQ, 576 * 8192) + srd(SRD_DBG, SRD_DBG, 256)
    o += L(f"""
      v_bfe_u32 v{t0}, v0, 2, 3
      v_lshlrev_b32 v{t0}, 7, v{t0}
      v_and_b32 v{t1}, 3, v0
      v_lshl_add_u32 v{t0}, v{t1}, 3, v{t0}
      v_lshrrev_b32 v{t1}, 5, v0
      v_lshl_add_u32 v{t0}, v{t1}, 12, v{t0}
      v_bfe_u32 v{t1}, v0, 3, 2
    """)
    for nb in range(4):
        o += L(f"v_xor_b32 v{t2}, {nb}, v{t1}", f"v_lshl_add_u32 v{VTR+nb}, v{t2}, 5, v{t0}")
    o += L(f"""
      v_lshlrev_b32 v{t0}, 3, v0
      v_add_u32 v{VTRX}, {0x10000 + 16384}, v{t0}
      v_add_u32 v{VTRX+1}, {0x10000 + 16384 + 49152}, v{t0}
      v_lshrrev_b32 v{t0}, 1, v0
      v_and_b32 v{t2}, 3, v{t0}
      v_bfe_u32 v{t1}, v{t0}, 2, 2
      v_lshl_add_u32 v{t2}, v{t1}, 3, v{t2}
      v_lshrrev_b32 v{t1}, 4, v{t0}
      v_lshl_add_u32 v{t2}, v{t1}, 2, v{t2}
      s_lshl_b32 s{S_T0}, s{S_W}, 5
      v_add_u32 v{t2}, s{S_T0}, v{t2}
      v_mul_u32_u24 v{t2}, 9216, v{t2}
      v_and_b32 v{t1}, 1, v0
      v_lshl_add_u32 v{VDMAX}, v{t1}, 4, v{t2}
    """)
    o += L(f"""
      v_and_b32 v{t0}, 15, v0
      v_lshrrev_b32 v{t1}, 1, v{t0}
      v_lshrrev_b32 v{t2}, 4, v0
      v_xor_b32 v{t1}, v{t1}, v{t2}
      v_lshlrev_b32 v{t1}, 4, v{t1}
      v_lshl_add_u32 v{t1}, v{t0}, 7, v{t1}
      v_add_u32 v{VAR}, s{S_AM0}, v{t1}
      v_xor_b32 v{VAR+1}, 64, v{VAR}
      v_lshlrev_b32 v{VST}, 4, v0
      v_add_u32 v{VST2}, 0x1000, v{VST}
    """)
    o += L(f"""
      s_lshl_b32 s{S_T0}, s{S_J}, 2
      s_add_u32 s{S_T0}, s{S_T0}, s{S_W}
      s_lshl_b32 s{S_T0}, s{S_T0}, 15
      s_mul_i32 s{S_T1}, s{S_H}, {hex(KV_HEAD)}
      s_add_u32 s{S_T0}, s{S_T0}, s{S_T1}
      s_add_u32 s{S_KV}, s{S_T0}, {hex(KV_BASE)}
      s_mov_b32 s{S_KSC}, {f2u(KSCALE)}
      s_mov_b32 s{S_NL2E}, {f2u(-LOG2E)}
      s_sub_u32 s{S_T0}, 15, s{S_J}
      s_cmp_lt_u32 s{S_W}, 2
      s_cselect_b32 s{S_BLK}, s{S_T0}, s{S_J}
      s_and_b32 s{S_T1}, s{S_W}, 1
      s_lshl_b32 s{S_T0}, s{S_BLK}, 3
      s_add_u32 s{S_T0}, s{S_T0}, s{S_T1}
      s_mul_i32 s{S_XB}, s{S_T0}, {16 * 1152}
      s_and_b32 s{S_T0}, s{S_H}, 7
      s_mul_i32 s{S_ACT}, s{S_T0}, {hex(ACT_G)}
      s_mul_i32 s{S_T2}, s{S_BLK}, {hex(ACT_RB)}
      s_add_u32 s{S_ACT}, s{S_ACT}, s{S_T2}
      s_lshl_b32 s{S_T1}, s{S_T1}, 10
      s_add_u32 s{S_ACT}, s{S_ACT}, s{S_T1}
      s_add_u32 s{S_ACT}, s{S_ACT}, {hex(ACT_BASE)}
      s_lshr_b32 s{S_T1}, s{S_H}, 4
      s_bfe_u32 s{S_T2}, s{S_H}, 0x10003
      s_lshl_b32 s{S_T0}, s{S_T0}, 1
      s_add_u32 s{S_T0}, s{S_T0}, s{S_T1}
      s_mul_i32 s{S_T0}, s{S_T0}, 576
      s_lshl_b32 s{S_T3}, s{S_T2}, 8
      s_add_u32 s{S_W1B}, s{S_T0}, s{S_T3}
      s_lshl_b32 s{S_T3}, s{S_T2}, 5
      s_add_u32 s{S_W1X}, s{S_T0}, s{S_T3}
      s_add_u32 s{S_W1X}, s{S_W1X}, 512
      s_mul_i32 s{S_T0}, s{S_T1}, {9 * 8192}
      s_add_u32 s{S_T0}, s{S_T0}, s{S_ACT}
      s_lshl_b32 s{S_T3}, s{S_T2}, 15
      s_add_u32 s{S_HK}, s{S_T0}, s{S_T3}
      s_lshl_b32 s{S_T3}, s{S_T2}, 3
      s_add_u32 s{S_HX}, s{S_T0}, s{S_T3}
      s_add_u32 s{S_HX}, s{S_HX}, {8 * 8192}
      s_lshr_b32 s{S_T1}, s{S_H}, 3
      s_lshl_b32 s{S_T1}, s{S_T1}, 15
      s_add_u32 s{S_ACT}, s{S_ACT}, s{S_T1}
      s_add_u32 s{S_ACT}, s{S_ACT}, {18 * 8192}
    """)
    return o

def gate_loads(vx, vg, voff, t0):
    return L(f"""
      v_lshrrev_b32 v{t0}, 5, v0
      s_sub_u32 s{S_T0}, 15, s{S_J}
      s_cmp_lt_u32 s{S_H}, 16
      s_cselect_b32 s{S_T0}, s{S_T0}, s{S_J}
      s_lshl_b32 s{S_T0}, s{S_T0}, 4
      s_and_b32 s{S_T1}, s{S_H}, 15
      s_add_u32 s{S_T0}, s{S_T0}, s{S_T1}
      s_lshl_b32 s{S_T0}, s{S_T0}, 2
      s_add_u32 s{S_T0}, s{S_T0}, s{S_W}
      s_lshl_b32 s{S_T0}, s{S_T0}, 1
      v_add_u32 v{voff+2}, s{S_T0}, v{t0}
      v_mul_u32_u24 v{voff}, 1152, v{voff+2}
      v_and_b32 v{t0}, 31, v0
      v_lshlrev_b32 v{voff+1}, 4, v{t0}
      v_add_u32 v{voff}, v{voff}, v{voff+1}
      buffer_load_dwordx4 {r4('v',vx)}, v{voff}, s[{SRD_X}:{SRD_X+3}], 0 offen
      buffer_load_dwordx4 {r4('v',vx+4)}, v{voff}, s[{SRD_X}:{SRD_X+3}], 0 offen offset:512
      buffer_load_dwordx4 {r4('v',vx+8)}, v{voff}, s[{SRD_X}:{SRD_X+3}], 0 offen offset:1024
      buffer_load_dwordx4 {r4('v',vg)}, v{voff+1}, s[{SRD_G}:{SRD_G+3}], 0 offen
      buffer_load_dwordx4 {r4('v',vg+4)}, v{voff+1}, s[{SRD_G}:{SRD_G+3}], 0 offen offset:512
      buffer_load_dwordx4 {r4('v',vg+8)}, v{voff+1}, s[{SRD_G}:{SRD_G+3}], 0 offen offset:1024
    """)

def gate_compute(vx, vg, voff, t):
    o = L(f"v_and_b32 v{t}, 31, v0", f"v_cmp_gt_u32 vcc, 8, v{t}", f"v_mov_b32 v{t+4}, 0", f"v_mov_b32 v{t+5}, 0")
    for r in range(8, 12): o += L(f"v_cndmask_b32 v{vx+r}, 0, v{vx+r}, vcc")
    for r in range(12):
        o += L(f"""
          v_lshlrev_b32 v{t}, 16, v{vx+r}
          v_and_b32 v{t+1}, 0xffff0000, v{vx+r}
          v_lshlrev_b32 v{t+2}, 16, v{vg+r}
          v_and_b32 v{t+3}, 0xffff0000, v{vg+r}
          v_fmac_f32 v{t+4}, v{t}, v{t+2}
          v_fmac_f32 v{t+5}, v{t+1}, v{t+3}""")
    z = t + 4
    o += L(f"""
      v_add_f32 v{z}, v{z}, v{t+5}
      v_add_f32_dpp v{z}, v{z}, v{z} quad_perm:[1,0,3,2] row_mask:0xf bank_mask:0xf
      v_add_f32_dpp v{z}, v{z}, v{z} quad_perm:[2,3,0,1] row_mask:0xf bank_mask:0xf
      v_add_f32_dpp v{z}, v{z}, v{z} row_half_mirror row_mask:0xf bank_mask:0xf
      v_add_f32_dpp v{z}, v{z}, v{z} row_mirror row_mask:0xf bank_mask:0xf
      v_mov_b32 v{t}, v{z}
      v_permlane16_swap_b32 v{t}, v{z}
      v_add_f32 v{z}, v{z}, v{t}
      v_mul_f32 v{t}, {f2u(LOG2E)}, v{z}
      v_exp_f32 v{t+3}, v{t}
      v_exp_f32 v{t+2}, -v{t}
      v_add_f32 v{t+3}, 1.0, v{t+3}
      v_add_f32 v{t+2}, 1.0, v{t+2}
      v_min_f32 v{t+3}, {f2u(1e30)}, v{t+3}
      v_rcp_f32 v{t+2}, v{t+2}
      v_lshlrev_b32 v{voff+2}, 3, v{voff+2}
      v_and_b32 v{t}, 31, v0
      v_cmp_eq_u32 vcc, 0, v{t}
      v_add_u32 v{voff+2}, {hex(G_BASE)}, v{voff+2}
      v_cndmask_b32 v{voff+2}, -1, v{voff+2}, vcc
      buffer_store_dwordx2 {r2('v',t+2)}, v{voff+2}, s[{SRD_WS}:{SRD_WS+3}], 0 offen sc1
    """)
    return fix_hazards(o)

def signal(soff_expr_ops, s_off, vt, inc=1):
    return L(f"""
      v_lshl_add_u32 v{vt}, v0, 8, s{S_SLOW}
      v_mov_b32 v{vt+1}, {inc}
    """) + soff_expr_ops + L(f"buffer_atomic_add v{vt+1}, v{vt}, s[{SRD_DBG}:{SRD_DBG+3}], s{s_off} offen sc1")

S_SIG = 64
S_PT = 65
S_PO = 66

class Panel:
    def __init__(self, name, nnb, srd, sbase, coff, kstride, vdma, wA, units, act):
        self.name = name; self.nnb = nnb; self.srd = srd; self.sbase = sbase; self.coff = coff
        self.kstride = kstride; self.vdma = vdma; self.wA = wA; self.units = units; self.act = act
        self.done = {}
    def acc(self, nb, a): return U(self.units[nb]) + 4 * a

def c_act(a, ks): return r4("a", 16 * ks + 4 * a)
def x_act(a, ks): return r4("v", U(10 + ks) + 4 * a) if ks < 2 else r4("a", 16 * (ks - 2) + 4 * a)
Q_UNITS = [0, 2, 9, 4]
def q_reg(a, ds): return U(Q_UNITS[ds]) + 4 * a

slow_blocks = []
def poll(tag, vf, soff_ops, count, t_issue, t_check):
    ld = f"buffer_load_dword v{vf}, off, s[{SRD_DBG}:{SRD_DBG+3}], s{S_PO} sc1"
    a = soff_ops + L(ld)
    for x in a: x.earliest = t_issue
    r = I(f"v_readfirstlane_b32 s{S_PT}, v{vf}", earliest=t_check, deps=[(a[-1], t_check - t_issue)])
    a[-1].deadline = t_issue + 8
    b = Bundle(L(f"s_cmp_ge_u32 s{S_PT}, {count}", f"s_cbranch_scc0 Lpoll_{tag}", f"Lback_{tag}:"), deps=[(r, 1)])
    slow_blocks.append(L(f"""Lpoll_{tag}:
      {ld}
      s_waitcnt vmcnt(0)
      v_readfirstlane_b32 s{S_PT}, v{vf}
      s_nop 1
      s_cmp_ge_u32 s{S_PT}, {count}
      s_cbranch_scc1 Lback_{tag}
      s_branch Lpoll_{tag}"""))
    return a + [r, b]

def signal(soff_ops, vt, inc=1):
    return L(f"v_lshl_add_u32 v{vt}, v0, 8, s{S_SIG}", f"v_mov_b32 v{vt+1}, {inc}") + soff_ops + \
           L(f"buffer_atomic_add v{vt+1}, v{vt}, s[{SRD_DBG}:{SRD_DBG+3}], s{S_PO} offen sc1")

def front(tail_streams=None, qstore=False):
    SC = os.environ.get("SC", " sc1")
    K0 = Panel("K0", 4, SRD_UK, S_WB, 0, 32 * 8192, VDMA, True, [10, 11, 8, 9], c_act)
    K1 = Panel("K1", 4, SRD_UK, S_WB, 128, 32 * 8192, VDMA, True, [4, 5, 6, 7], c_act)
    V0 = Panel("V0", 4, SRD_UV, S_WB, 0, 32 * 8192, VDMA, False, [0, 1, 2, 3], c_act)
    V1 = Panel("V1", 4, SRD_UV, S_WB, 128, 32 * 8192, VDMA, False, [4, 5, 6, 7], c_act)
    Ha = Panel("Ha", 4, SRD_W1, S_W1B, 0, 32 * 9216, VDMA1, True, [0, 1, 2, 3], x_act)
    Hb = Panel("Hb", 5, SRD_W1, S_W1B, 128, 32 * 9216, VDMA1, True, [4, 5, 6, 7, 8], x_act)
    Q0 = Panel("Q0", 4, SRD_WQ, S_WB, 0, 32 * 8192, VDMA, True, [0, 1, 2, 3], x_act)
    Q1 = Panel("Q1", 4, SRD_WQ, S_WB, 128, 32 * 8192, VDMA, True, [9, 8, 4, 5], x_act)
    steps = []
    for ks in range(16): steps += [(K0, ks), (K1, ks)]
    for P in (V0, V1): steps += [(P, ks) for ks in range(16)]
    for P in (Ha, Hb, Q0, Q1): steps += [(P, ks) for ks in range(18)]
    T = len(steps); NF = 4
    spine = []; frags = []; S = []
    for t, (P, ks) in enumerate(steps):
        S.append(len(spine))
        for nb in range(P.nnb):
            w = r4("v", FR + 4 * (len(frags) % NF)); first = len(spine)
            for a in range(4):
                d = r4("v", P.acc(nb, a)); c = d if ks else "0"
                A, B = (w, P.act(a, ks)) if P.wA else (P.act(a, ks), w)
                spine.append(I(f"{MF} {d}, {A}, {B}, {c}")); P.done[(nb, a)] = len(spine) - 1
            frags.append((t, nb, first, len(spine) - 1))
    S.append(len(spine))
    ds = []; bars = {}; pro_ds = []; barpos = {}
    for f, (t, nb, a, b) in enumerate(frags):
        P, ks = steps[t]
        if nb == 0 and t % 2 == 0:
            wv = WAITG("w", t // 2); br = I("s_barrier"); bars[t // 2] = br
            if f >= NF:
                e = frags[f - NF][3]; barpos[t // 2] = e
                wv.earliest = br.earliest = max(0, e - 2); wv.deadline = br.deadline = e
                ds += [wv, br]
            else: pro_ds += [wv, br]; barpos[0] = 0
        for jj in range(2):
            r = FR + 4 * (f % NF) + 2 * jj
            if nb < 4:
                off = ((t % 16) >> 2) * 16384 + (t & 3) * 1024 + jj * 8192
                x = I(f"ds_read_b64_tr_b16 {r2('v', r)}, v{VTR+nb} offset:{off}")
            else:
                wq = ks & 3
                off = (wq & 1) * 24576 + (ks >> 2) * 1024 + jj * 512
                x = I(f"ds_read_b64_tr_b16 {r2('v', r)}, v{VTRX + (wq >> 1)} offset:{off}")
            if f < NF: pro_ds.append(x)
            else:
                e = frags[f - NF][3]; x.earliest = e + 2 * jj; x.deadline = e + 1 + 2 * jj
                ds.append(x)
    epi = []; hepi = []
    def pack(b0, b1):
        return L(f"v_cvt_pk_bf16_f32 v{b0}, v{b0}, v{b0+1}", f"v_cvt_pk_bf16_f32 v{b0+1}, v{b0+2}, v{b0+3}",
                 f"v_cvt_pk_bf16_f32 v{b0+2}, v{b1}, v{b1+1}", f"v_cvt_pk_bf16_f32 v{b0+3}, v{b1+2}, v{b1+3}")
    def store4(b, sbase, off):
        hi = off & ~0x1fff
        o = []
        if hi: o += L(f"s_add_u32 s{S_ET}, s{sbase}, {hi}")
        o += L(f"buffer_store_dwordx4 {r4('v', b)}, v{VST2 if off & 0x1000 else VST}, s[{SRD_WS}:{SRD_WS+3}], s{S_ET if hi else sbase} offen offset:{off & 0xfff}{SC}")
        return o
    lastop = {}; sts = []
    order = [(K0, 0), (K1, 0), (K1, 1), (K0, 1), (V0, 0), (V0, 1), (V1, 0), (V1, 1)]
    n_st = 0
    for P, x in order:
        isK = P.name[0] == "K"; half = int(P.name[1])
        for y in range(4):
            tl = [(2 * x, y), (2 * x + 1, y)] if isK else [(y, 2 * x), (y, 2 * x + 1)]
            e = max(P.done[t] for t in tl) + 8
            ops = []
            if isK:
                for t in tl:
                    for r in range(4): ops += L(f"v_mul_f32 v{P.acc(*t)+r}, s{S_KSC}, v{P.acc(*t)+r}")
            ops += pack(P.acc(*tl[0]), P.acc(*tl[1]))
            for q in ops: q.earliest = e
            epi += ops
            off = ((y >> 1) * 16384 + (y & 1) * 4096 + (2 * half + x) * 1024) if isK else (x * 16384 + 8192 + (4 * half + y) * 1024)
            st = store4(P.acc(*tl[0]), S_KV, off)
            te = S[32] + 12 + 20 * n_st if n_st < 24 else S[64] + 12 + 26 * (n_st - 24)
            n_st += 1
            for q in st: q.earliest = max(e, te)
            st[-1].deps = [(ops[-1], 1)]
            sts += st
        lastop[(P.name, x)] = sts[-1]
    kv_last = sts[-1]
    hA, hB, hC, hD, hE = [], [], [], [], []
    NT = 8
    n = 0; tmp_free = {}
    gl_done = I("s_nop 0")
    first_fma = []
    for P in (Ha, Hb):
        for x in ([0, 1] if P.nnb == 4 else [2, 0, 1]):
            for a in range(4):
                tl = [(2 * x, a), (2 * x + 1, a)] if 2 * x + 1 < P.nnb else [(2 * x, a)]
                fin = []
                for t in tl:
                    e = P.done[t] + 8
                    for r in range(4):
                        v = P.acc(*t) + r; tm = VT + (n % NT)
                        m = I(f"v_mul_f32 v{tm}, s{S_NL2E}, v{v}", earliest=e)
                        if tm in tmp_free: m.deps = [(tmp_free[tm], 0)]
                        ex = I(f"v_exp_f32 v{tm}, v{tm}", earliest=e, deps=[(m, 0)])
                        fm = I(f"v_fma_f32 v{tm}, v{tm}, v{VC+2*a+1}, v{VC+2*a+1}", earliest=e, deps=[(ex, 1)])
                        rc = I(f"v_rcp_f32 v{tm}, v{tm}", earliest=e, deps=[(fm, 0)])
                        mu = I(f"v_mul_f32 v{v}, v{v}, v{tm}", earliest=e, deps=[(rc, 1)])
                        if not first_fma: first_fma.append(fm)
                        tmp_free[tm] = mu; n += 1; mu.span = 4
                        hA.append(m); hB.append(ex); hC.append(fm); hD.append(rc); hE.append(mu)
                    b = P.acc(*t); b0 = P.acc(*tl[0]); k = 2 * tl.index(t)
                    hE += [I(f"v_cvt_pk_bf16_f32 v{b0+k}, v{b}, v{b+1}", earliest=e), I(f"v_cvt_pk_bf16_f32 v{b0+k+1}, v{b+2}, v{b+3}", earliest=e)]
                b0 = P.acc(*tl[0])
                if len(tl) == 2:
                    st = store4(b0, S_HK, ((0 if P is Ha else 2) + x) * 8192 + a * 2048)
                else:
                    st = L(f"buffer_store_dwordx2 {r2('v', b0)}, v{VST2 if a >= 2 else VST}, s[{SRD_WS}:{SRD_WS+3}], s{S_HX} offen offset:{(a & 1) * 2048}{SC}")
                for q in st: q.earliest = e
                st[0].deps = [(hE[-1], 0)]; st[-1].deps = [(hE[-1], 1)]
                sts += st
    h_last = sts[-1]
    qepi = []
    for pi, P in enumerate((Q0, Q1)):
        for x in range(2):
            for a in range(4):
                e = max(P.done[(2 * x, a)], P.done[(2 * x + 1, a)]) + 8
                assert P.acc(2 * x, a) == q_reg(a, 2 * pi + x)
                ops = pack(P.acc(2 * x, a), P.acc(2 * x + 1, a))
                for q in ops: q.earliest = e
                qepi += ops
    units = []
    for G in range(T // 2):
        tm = -1 if G < 8 else barpos[G - 6]
        for t in (2 * G, 2 * G + 1):
            P, ks = steps[t]
            if P.nnb == 5 and ks % 4 == 0: units.append((tm, "x", t))
            units.append((tm, "w", t))
    rd_time = [None] + [S[4 * c - 2] for c in range(1, 8)] + [S[44]] + [S[50] + 56 * k for k in range(8)]
    areads = []; pro_ar = []; last_rd = {}
    for c in range(17):
        isx = c >= 8; k = c - 8 if isx else c
        ops = [WAITG("act", c)]
        for kb in range(2):
            for a in range(4):
                dst = (x_act if isx else c_act)(a, 2 * k + kb)
                ops.append(I(f"ds_read_b128 {dst}, v{VAR+kb} offset:{(c % 3) * 8192 + a * 2048}"))
        last_rd[c] = ops[-1]
        if c == 0: pro_ar = ops; continue
        for q in ops: q.earliest = rd_time[c]
        if c == 8: ops[0].deps = [(lastop[("K0", 0)], 2)]
        areads += ops
    for c in range(17):
        if c < 3: tm = -1
        elif c < 8: tm = (rd_time[c - 3] or 0) + 16
        elif c < 11: tm = S[31 + 4 * (c - 8)]
        else: tm = rd_time[c - 3] + 16
        for nn in range(8): units.append((tm + (3 * nn if tm >= 0 else 0), "a", (c, nn)))
    first = [u for u in units if u[0] < 0]; rest = sorted([u for u in units if u[0] >= 0], key=lambda u: u[0])
    W = [u for u in first if u[1] == "w"]; A = [u for u in first if u[1] == "a"]
    first = W[0:2] + A[0:8] + W[2:4] + A[8:16] + W[4:8] + A[16:24] + W[8:]
    cur = [None]
    def emit_unit(u):
        tm, kind, arg = u
        o = []; deps = []
        if kind == "w":
            t = arg; P, ks = steps[t]
            m0 = (S_WM0, ((t % 16) >> 2) * 16384); imm = (t & 3) * 1024
            so = P.coff + ks * P.kstride; sb = P.sbase; v = P.vdma; sr = P.srd; grp = ("w", t // 2)
            if t // 2 >= 8: deps = [(bars[t // 2 - 6], 0)]
        elif kind == "x":
            t = arg; P, ks = steps[t]
            m0 = (S_AM0, 16384 + (ks >> 4) * 4096); imm = ((ks >> 2) & 3) * 1024
            so = ks * P.kstride; sb = S_W1X; v = VDMAX; sr = P.srd; grp = ("w", t // 2)
            if ks == 0: o.append(WAITLGKM(last_rd[14])); deps = [(last_rd[14], 8)]
        else:
            c, nn = arg; isx = c >= 8; k = c - 8 if isx else c
            m0 = (S_AM0, (c % 3) * 8192 + (nn >> 2) * 4096); imm = (nn & 3) * 1024
            so = ((32 * (nn >> 1) + 8 * (nn & 1)) * 1152 if isx else 8 * nn * 1024) + k * 128
            sb = S_XB if isx else S_CB; v = (VXD if isx else VCD) + (nn & 1); sr = SRD_X if isx else SRD_C; grp = ("act", c)
            if nn == 0 and c >= 3:
                o.append(WAITLGKM(last_rd[c - 3]))
                if c > 3: deps = [(last_rd[c - 3], 8)]
        if so < imm: m0 = (m0[0], m0[1] + imm); imm = 0
        if cur[0] != m0:
            o += L(f"s_add_u32 m0, s{m0[0]}, {m0[1]}"); cur[0] = m0
        o += L(f"s_add_u32 s{S_DT}, s{sb}, {so - imm}",
               f"buffer_load_dwordx4 v{v}, s[{sr}:{sr+3}], s{S_DT} offen" + (f" offset:{imm}" if imm else "") + " lds")
        o[-1].grp = grp
        for x in o: x.earliest = max(tm, 0)
        o[0].deps = deps
        return o
    pro_vm = [x for u in first for x in emit_unit(u)]
    vm = [x for u in rest for x in emit_unit(u)]
    lastd = {}
    for x in vm:
        if x.tag == "dma": lastd[x.grp] = x
    for x in ds + areads:
        if x.mn == "WAIT" and x.grp in lastd: x.deps = x.deps + [(lastd[x.grp], 64)]
    GX, GG, GO = U(0), U(1), U(2)
    gl = gate_loads(GX, GG, GO, GO + 4)
    gc = gate_compute(GX, GG, GO, GO + 8)
    misc = L(f"""s_lshl_b32 s{S_PO}, s{S_SIG}, 20
      v_lshl_add_u32 v{VT+8}, v0, 2, s{S_PO}
      v_mov_b32 v{VT+9}, 0
      s_lshl_b32 s{S_PO}, s2, 8
      s_add_u32 s{S_PO}, s{S_PO}, {hex(INBOX)}
      buffer_store_dword v{VT+9}, v{VT+8}, s[{SRD_WS}:{SRD_WS+3}], s{S_PO} offen sc1""")
    for q in gc: q.earliest = S[2]
    misc += gc
    wv = WAITVM(gc[-1]); wv.earliest = S[30]; wv.deadline = barpos[16] - 3; wv.deps = [(gc[-1], 200)]
    misc += [wv]
    sg = signal(L(f"s_lshl_b32 s{S_PO}, s{S_J}, 2"), VT + 8); sg[-1].deps = [(bars[16], 0)]
    misc += sg
    misc += poll("g", VT + 10, L(f"s_lshl_b32 s{S_PO}, s{S_J}, 2"), 32, S[52], S[64])
    misc += L(f"""v_and_b32 v{VT+8}, 15, v0
        v_lshlrev_b32 v{VT+8}, 3, v{VT+8}
        s_lshl_b32 s{S_PO}, s{S_BLK}, 3
        s_and_b32 s{S_PT}, s{S_W}, 1
        s_add_u32 s{S_PO}, s{S_PO}, s{S_PT}
        s_lshl_b32 s{S_PO}, s{S_PO}, 7
        s_add_u32 s{S_PO}, s{S_PO}, {hex(G_BASE)}""")
    for a in range(4): misc += L(f"buffer_load_dwordx2 {r2('v', VC + 2 * a)}, v{VT+8}, s[{SRD_WS}:{SRD_WS+3}], s{S_PO} offen offset:{256 * a} sc1")
    first_fma[0].deps.append((misc[-1], 160)); misc[-1].deadline = S[70]
    wv = WAITVM(kv_last); wv.earliest = S[90]; wv.deadline = barpos[46] - 3; wv.deps = [(kv_last, 200)]
    sg = signal(L(f"s_lshl_b32 s{S_PO}, s{S_H}, 2", f"s_add_u32 s{S_PO}, s{S_PO}, {DBG_KV}"), VT + 8); sg[-1].deps = [(bars[46], 0)]
    misc += [wv] + sg
    ctx = dict(S=S, bars=bars, barpos=barpos, steps=steps, misc=misc, vm=vm, cur=cur, qepi=qepi, h_last=h_last, spine=spine)
    extra = tail_streams(ctx) if tail_streams else []
    for x in vm + sts: x.maxlag = 6
    streams = [ds, areads, vm, misc, sts, epi, hD, hB, hE, hC, hA, qepi] + extra
    main = schedule(spine, streams, verbose="front", nprio=2)
    last = max(i for i, x in enumerate(main) if x.kind == "mfma")
    body, tl = main[:last + 1], main[last + 1:]
    fixed = fix_hazards(body[-14:] + tl)
    assert fixed[:14] == body[-14:]
    main = body + fixed[14:]
    X = os.environ.get("X", "")
    if "s" in X: main = [x for x in main if not x.mn.startswith("buffer_store_dwordx4")]
    if "f" in X: main = [x for x in main if not (x.mn.startswith("buffer_atomic") or x.mn == "buffer_load_dword" or "Lpoll" in x.text)]
    if "x" in X: main = [x for x in main if not (x.tag == "dma" and f"s[{SRD_X}:" in x.text)]
    if PROF:
        mf = [i for i, x in enumerate(main) if x.kind == "mfma"]
        for q, t in reversed(list(enumerate((16, 32, 48, 64, 82, 100, 118)))): main[mf[S[t]]:mf[S[t]]] = stamp(3 + q)
    sig = L(f"s_cmp_lg_u32 s{S_W}, 0", f"s_cselect_b32 s{S_SIG}, 256, 0", f"s_add_u32 s{S_SIG}, s{S_SIG}, s{S_SLOW}")
    pro = fix_hazards(setup()) + pro_vm[:45] + stamp(1) + fix_hazards(gl) + pro_vm[45:] + fix_hazards(setup2() + sig) + pro_ar + pro_ds + stamp(2)
    return pro, main

def entry(exit_label):
    return fix_hazards(L(f"""
      s_cmp_ge_u32 s2, 256
      s_cbranch_scc1 {exit_label}
      v_lshrrev_b32 v1, 6, v0
      v_and_b32 v0, 63, v0
      v_readfirstlane_b32 s{S_W}, v1
      s_mov_b32 s{S_SLOW}, 0
    """))

def k1():
    K = Kernel("k1_kernel", 256, 163840)
    pro, main = front()
    K.add("pro", stamp(0) + entry("Lexit1") + pro)
    K.add("main", main + stamp(10) + prof_out(0, 11) + L("Lexit1:", "s_endpgm"))
    K.paths = [["pro", "main"]]
    K.add("slow", [i for b in slow_blocks for i in b])
    K.finish()
    return K
```

```python
from p4base import *

VK, VV = 18, 19
VBAD, VGL = 43, 44
VNL, VLS = 10, 14
VX = 46
SB = [[U(2), U(0)], [U(8), U(9)]]
PB = [U(1), U(7)]
NEGM, MK = U(10), U(11)
A_L, A_K, A_V, A_ONE = 128, 144, 176, 208
def a_o(db, a): return 16 * db + 4 * a
S_DM0, S_DSO, S_CNT, S_ACT2, S_EO = 67, 68, 69, 7, 49
RING_A, RING_B, STASH = 0x10000, 0, 0x20000
LSUM = 0x10000 + 3 * 16384 + 4096
ALL = [0, 1, 2, 3]

class Per:
    def __init__(self, ph, qk=ALL, mask=None, pv=ALL, first=False, dma=(1, 1), dph=None, kph=None, vph=None, kread=True, vread=True,
                 amajor=None, vregs=A_V, bar=True, kregs=A_K, pad=0, early=False):
        self.ph = ph
        self.qk = qk; self.mask = mask; self.pv = pv; self.first = first
        self.dma = dma
        self.dph = ph if dph is None else dph
        self.kph = (ph + 1) % 4 if kph is None else kph
        self.vph = ph if vph is None else vph
        self.kread = kread; self.vread = vread; self.amajor = amajor; self.vregs = vregs; self.bar = bar
        self.kregs = kregs; self.pad = pad; self.early = early

NSPLIT = 5
def seq(name, pers, par0, carry_in=True, carry_out=True, extra=None, tail=None, tail_ok=False):
    spine = []; info = []
    for n, P in enumerate(pers):
        par = (par0 + n) & 1
        d = dict(start=len(spine), sdone={}, odone={}, vlast={}, klast={})
        order = [(kvb, ds) for kvb in range(2) for ds in range(4)] if len(P.qk) > 1 else [(kvb, ds) for ds in range(4) for kvb in range(2)]
        for kvb, ds in order:
            for a in P.qk:
                D = r4("v", SB[par][kvb] + 4 * a)
                C = D if ds else (r4("v", MK + 8 + 4 * kvb) if a == P.mask else r4("v", NEGM + 4 * a))
                spine.append(I(f"{MF} {D}, {r4('a', P.kregs + 16 * kvb + 4 * ds)}, {r4('v', q_reg(a, ds))}, {C}"))
                d["sdone"][(kvb, a)] = len(spine) - 1
        d["qkend"] = len(spine)
        spine += [None] * P.pad
        d["mid"] = len(spine)
        pp = PB[par ^ 1]
        def summ(a):
            D = r4("a", A_L + 4 * a)
            spine.append(I(f"{MF} {D}, {r4('a', A_ONE)}, {r4('v', pp + 4 * a)}, {'0' if P.first else D}"))
        def pv(db, a):
            D = r4("a", a_o(db, a))
            spine.append(I(f"{MF} {D}, {r4('a', P.vregs + 4 * db)}, {r4('v', pp + 4 * a)}, {'0' if P.first else D}"))
            d["odone"][a] = len(spine) - 1; d["vlast"][db] = len(spine) - 1
        if P.amajor:
            for a in P.amajor:
                summ(a)
                for db in range(8): pv(db, a)
        else:
            for a in P.pv: summ(a)
            for db in range(8):
                for a in P.pv: pv(db, a)
        d["end"] = len(spine)
        info.append(d)
    ds = []; vm = []; ex = []; cv = []; mk = []
    def softmax(par, tiles, done, dl=None):
        for (kvb, a) in tiles:
            e = done(kvb, a); b = SB[par][kvb] + 4 * a
            es = [I(f"v_exp_f32 v{b+r}, v{b+r}", earliest=e) for r in range(4)]
            ex.extend(es)
            for k in range(2):
                c = I(f"v_cvt_pk_bf16_f32 v{PB[par] + 4 * a + 2 * kvb + k}, v{b+2*k}, v{b+2*k+1}", earliest=e, deps=[(es[2 * k + 1], 1)])
                if dl is not None: c.deadline = dl
                cv.append(c)
    full = [(kvb, a) for kvb in range(2) for a in ALL]
    if carry_in: softmax(par0 ^ 1, full[NSPLIT:], lambda k, a: 0)
    bars = []
    for n, P in enumerate(pers):
        d = info[n]; par = (par0 + n) & 1
        if P.mask is not None and n > 0:
            e = max(d["start"] - 12, info[n - 1]["qkend"] - 4)
            for kvb in range(2):
                for r in range(4):
                    mk.append(I(f"v_add_f32 v{MK + 8 + 4 * kvb + r}, v{MK + 4 * kvb + r}, v{NEGM + 4 * P.mask}", earliest=e))
            d["mk"] = mk[-8:]
        lastv = None
        if P.vread and (P.pv or P.amajor):
            nq = d["mid"] - d["start"]
            for db in range(8):
                x = I(f"ds_read_b128 {r4('a', P.vregs + 4 * db)}, v{VV} offset:{P.vph * 16384 + db * 1024}")
                if P.vregs == A_V:
                    x.earliest = d["start"] + (db * max(nq - 10, 0)) // 10
                    if n and db in info[n - 1]["vlast"] and nq < 24: x.earliest = max(info[n - 1]["vlast"][db], info[n - 1]["klastpos"] + 1)
                else: x.earliest = info[n - 1]["mid"] + 2 * db
                ds.append(x); lastv = x; d.setdefault("vreads", []).append(x)
        if P.bar:
            e = d["mid"] - 1 if not P.early else d["start"] + 6
            w = [WAITG("kv", n + 1), I("s_barrier")]
            if lastv is not None: w.insert(0, WAITLGKM(lastv))
            if P.early: w.insert(0, I("s_waitcnt lgkmcnt(0)"))
            for x in w: x.earliest = max(e - 1, d["start"]); x.deadline = max(e, d["start"])
            ds += w; d["bar"] = w[-1]; d["barwait"] = w[0]
        d["klastpos"] = d["mid"]
        if P.kread:
            npv = d["end"] - d["mid"]
            for f in range(8):
                kvb, dsi = (f >> 2, f & 3) if (n + 1 >= len(pers) or len(pers[n + 1].qk) > 1) else (f & 1, f >> 1)
                kr = pers[n + 1].kregs if n + 1 < len(pers) else A_K
                x = I(f"ds_read_b128 {r4('a', kr + 16 * kvb + 4 * dsi)}, v{VK} offset:{P.kph * 16384 + 8192 + (4 * kvb + dsi) * 1024}")
                x.earliest = d["mid"] - 1 + (f * max(npv - 12, 0)) // 10 if not P.early else d["start"] + 7 + 2 * f
                d.setdefault("kreads", []).append(x)
                ds.append(x); d["klastpos"] = x.earliest
        def dmas(slot, h, goff, e0, span, dep):
            o = L(f"s_add_u32 m0, s{S_DM0}, {slot * 16384 + 4096 * h}")
            for k in range(4):
                x = I(f"buffer_load_dwordx4 v{VST}, s[{SRD_WS}:{SRD_WS+3}], s{S_DSO} offen offset:{1024 * k} sc1 lds"); x.grp = ("kv", goff)
                x.earliest = e0 + (k * span) // 4; x.maxlag = 4
                o.append(x)
            o += L(f"s_add_u32 s{S_DSO}, s{S_DSO}, {12288 if h else 4096}")
            o[0].earliest = e0; o[0].deps = [dep] if dep else []; o[1].deps = [(o[0], 1)]
            return o
        if P.dma[0]:
            o = dmas((P.dph + 3) % 4, 1, n + 3, d["start"], d["mid"] - d["start"] - 4, None)
            o[-2].deadline = d["end"] - 1
            vm += o
        if P.dma[1]:
            e0 = d["mid"] if not P.early else d["start"] + 8
            o = dmas(P.dph, 0, n + 4, e0, d["end"] - e0 - 4, (d["bar"], 0))
            o[-2].deadline = o[-1].deadline = d["end"] - 1
            vm += o
        tiles = [(kvb, a) for kvb in range(2) for a in P.qk]
        last = n == len(pers) - 1
        if last and carry_out:
            assert P.qk == ALL
            softmax(par, tiles[:NSPLIT], lambda k, a: d["sdone"][(k, a)] + 8, dl=d["end"] - 1)
        else:
            nx = pers[n + 1] if not last else None
            if nx is not None and nx.amajor: tiles = [(kvb, a) for kvb in range(2) for a in nx.amajor]
            softmax(par, tiles, lambda k, a: d["sdone"][(k, a)] + SLAG(P))
    xs = extra(info) if extra else []
    st = [ds, vm, mk, ex, cv] + xs
    if tail:
        tail.earliest = tail.deadline = len(spine) - 1
        st.append([tail])
    out = schedule(spine, st, verbose=name, tail_ok=tail_ok)
    out = fix_hazards(out)
    tk = [TICK("kv", len(pers))]
    if tail: return out[:-1] + tk + out[-1:]
    return out + tk

def SLAG(P): return 8 if len(P.qk) >= 3 else 4

A_K2 = 212
EG = [FR, FR + 8]
VL = 40
def store_ctx(b, sbase, ds, a):
    o = []
    if ds: o += L(f"s_add_u32 s{S_EO}, s{sbase}, {ds * 8192}")
    o += L(f"buffer_store_dwordx4 {r4('v', b)}, v{VST2 if a >= 2 else VST}, s[{SRD_WS}:{SRD_WS+3}], s{S_EO if ds else sbase} offen offset:{(a & 1) * 2048} sc1")
    CTX_LAST.append(o[-1])
    return o
CTX_LAST = []
def p4_pro(tag, t_poll, bar0, t_v, t_k):
    ha, hb = poll2(tag, VHP, 0, 4, t_poll, t_poll + 64)
    o = ha + [hb] + aload(0) + aload(1)
    w = wdma(0); w[0].deps = [(bar0, 0)]
    o += w
    for k in (2, 3, 4, 5):
        x = aload(k); x[1].earliest = t_v if k < 4 else t_k
        o += x
    return o
def scale_ops(vl, vg):
    return L(f"""v_subrev_u32 v{vl+1}, 0x1f800000, v{vl}
      v_rcp_f32 v{vl}, v{vl}
      v_max_u32 v{VBAD}, v{VBAD}, v{vl+1}
      v_mul_f32 v{vl}, v{vl}, v{vg}""")
egc = [0]
def epi_own(a, e):
    o = L(f"v_accvgpr_read_b32 v{VL}, a{A_L + 4 * a}") + scale_ops(VL, VC + 2 * a)
    for ds in range(4):
        t = EG[egc[0] & 1]; egc[0] += 1
        for k in range(2):
            for r in range(4): o += L(f"v_accvgpr_read_b32 v{t+4*k+r}, a{a_o(2*ds+k, a)+r}")
            for r in range(4): o += L(f"v_mul_f32 v{t+4*k+r}, v{VL}, v{t+4*k+r}")
            o += L(f"v_cvt_pk_bf16_f32 v{t+2*k}, v{t+4*k}, v{t+4*k+1}", f"v_cvt_pk_bf16_f32 v{t+2*k+1}, v{t+4*k+2}, v{t+4*k+3}")
        st = store_ctx(t, S_ACT, ds, a); st[-1].maxlag = 2
        o += st
    for x in o: x.earliest = e
    return o

HL = []
def front_tail(ctx):
    S, misc, vm, bars, barpos = ctx["S"], ctx["misc"], ctx["vm"], ctx["bars"], ctx["barpos"]
    HL.append(ctx["h_last"])
    pl = poll("kv", VT + 10, L(f"s_lshl_b32 s{S_PO}, s{S_H}, 2", f"s_add_u32 s{S_PO}, s{S_PO}, {DBG_KV}"), 8, S[106], S[116])
    misc += pl
    su = L(f"""s_mul_i32 s{S_DSO}, s{S_H}, {hex(KV_HEAD)}
      s_add_u32 s{S_DSO}, s{S_DSO}, {hex(KV_BASE - 8192)}
      s_add_u32 s{S_CNT}, s{S_DSO}, s{S_WM0}""")
    misc += su
    o = []
    for sl in range(4):
        u = L(f"s_add_u32 m0, s{S_WM0}, {RING_A + sl * 16384}", f"s_add_u32 s{S_DT}, s{S_CNT}, {sl * 16384}")
        for k in range(4):
            x = I(f"buffer_load_dwordx4 v{VST}, s[{SRD_WS}:{SRD_WS+3}], s{S_DT} offen offset:{1024 * k} sc1 lds"); x.grp = ("kv", sl); u.append(x)
        o += u
    o[0].deps = [(su[-1], 0)]
    for x in o: x.earliest = S[123]
    assert vm[-1].earliest < S[123] + 16
    vm += o; ctx["cur"][0] = None
    su2 = L(f"""s_and_b32 s{S_PT}, s{S_W}, 1
      s_lshl_b32 s{S_PT}, s{S_PT}, 13
      s_add_u32 s{S_DSO}, s{S_DSO}, s{S_PT}""")
    su2 += [Bundle(L(f"s_cmp_lt_u32 s{S_W}, 2", f"s_cselect_b32 s{S_DM0}, {RING_A}, {RING_B}", f"s_cselect_b32 s{S_PO}, 4, 34"))]
    su2 += L(f"""s_lshl_b32 s{S_PO}, s{S_PO}, 14
      s_add_u32 s{S_DM0}, s{S_DM0}, s{S_PT}
      s_add_u32 s{S_DSO}, s{S_DSO}, s{S_PO}
      s_lshl_b32 s{S_PO}, s{S_J}, 1
      s_sub_u32 s{S_PO}, 15, s{S_PO}
      s_mul_i32 s{S_PO}, s{S_PO}, {hex(ACT_RB)}
      s_add_u32 s{S_ACT2}, s{S_ACT}, s{S_PO}
      v_add_u32 v{VK}, {RING_A}, v{VST}
      v_add_u32 v{VV}, {RING_A}, v{VST}
      v_mov_b32 v{VBAD}, 0
      s_lshl_b32 s{S_PT}, s{S_PT}, 1
      v_add_u32 v{VX}, s{S_PT}, v{VST}
      s_lshr_b32 s{S_PT}, s{S_PT}, 4
      s_add_u32 s{S_PT}, s{S_PT}, {LSUM}
      v_add_u32 v{VLS}, s{S_PT}, v{VST}""")
    misc += su2
    t = VT + 8
    mk = L(f"""v_and_b32 v{t}, 15, v0
      v_lshrrev_b32 v{t+1}, 4, v0
      v_lshlrev_b32 v{t+1}, 2, v{t+1}
      v_sub_u32 v{t}, v{t}, v{t+1}
      s_and_b32 s{S_PT}, s{S_W}, 1
      s_lshl_b32 s{S_PT}, s{S_PT}, 4
      v_add_u32 v{t}, s{S_PT}, v{t}
      v_mov_b32 v{t+1}, 0xff800000""")
    for kvb in range(2):
        for r in range(4):
            mk += [Bundle(L(f"v_cmp_le_i32 vcc, {16 * kvb + r}, v{t}", "s_nop 1", f"v_cndmask_b32 v{MK + 4 * kvb + r}, v{t+1}, 0, vcc".replace(", 0, vcc", f", v{VBAD}, vcc")))]
    for x in mk: x.earliest = S[121]
    misc += mk
    ng = L(*[f"v_mov_b32 v{NEGM + r}, 0" for r in range(16)]) + L(*[f"v_mov_b32 v{VNL + r}, 0" for r in range(4)])
    ng += L(*[f"v_mov_b32 v{MK + 8 + r}, v{MK + r}" for r in range(8)])
    for x in ng: x.earliest = S[121]
    misc += ng
    w = [WAITG("kv", 0), I("s_barrier")]
    w[0].deps = [(o[5], 100)]
    for f in range(8): w.append(I(f"ds_read_b128 {r4('a', A_K + 4 * f)}, v{VK} offset:{8192 + f * 1024}"))
    for x in w: x.earliest = S[134] + 4
    w[2].deps = [(su2[-1], 1)]
    return [w]

def ones():
    return L(f"v_mov_b32 v{VT}, 0x3f803f80") + L(*[f"v_accvgpr_write_b32 a{A_ONE + r}, v{VT}" for r in range(4)])

def head(isL):
    D = (1, 1) if isL else (0, 0)
    pers = [Per(0, pv=[], dma=(0, D[1]), early=True), Per(1, first=True, dma=D, kregs=A_K2), Per(2, dma=D), Per(3, dma=D)]
    def extra(info):
        xs = [ones()]
        info[3]["barwait"].waitfor.append(HL[0])
        if isL:
            sg = sig_group(0) + [Bundle(flag_addr(VL, 11, 4, None))] + [sig_store(VL)]
            sg[-1].deps = [(info[3]["bar"], 0)]
            xs.append(sg)
            st = [I(f"ds_write_b128 v{VX+1}, {r4('v', q_reg(a, ds))} offset:{(4 * a + ds) * 1024}") for a in range(4) for ds in range(4)]
            st = L(f"v_add_u32 v{VX+1}, {STASH}, v{VX}") + st
            st[1].deps = [(info[0]["bar"], 0)]
            info[1]["barwait"].waitfor.append(st[-1]); info[1]["barwait"].deps.append((st[-1], 2))
            xs.append(st)
        if not isL:
            pf = L(f"""s_lshl_b32 s{S_PO}, s{S_J}, 1
              s_add_u32 s{S_PO}, s{S_PO}, s{S_W}
              s_sub_u32 s{S_PO}, s{S_PO}, 4
              s_mul_i32 s{S_PT}, s{S_H}, 18
              s_add_u32 s{S_PT}, s{S_PT}, s{S_PO}
              s_lshl_b32 s{S_PT}, s{S_PT}, 13
              v_lshlrev_b32 v{VL}, 7, v0
              buffer_load_dword v{VL+1}, v{VL}, s[{SRD_WO}:{SRD_WO+3}], s{S_PT} offen
              s_add_u32 s{S_PT}, s{S_PT}, {4 * 8192}
              buffer_load_dword v{VL+1}, v{VL}, s[{SRD_WO}:{SRD_WO+3}], s{S_PT} offen
              s_lshl_b32 s{S_PO}, s{S_PO}, 2
              s_lshr_b32 s{S_PT}, s{S_H}, 3
              s_add_u32 s{S_PO}, s{S_PO}, s{S_PT}
              s_and_b32 s{S_PT}, s{S_H}, 7
              s_mul_i32 s{S_PT}, s{S_PT}, 81
              s_add_u32 s{S_PT}, s{S_PT}, s{S_PO}
              s_lshl_b32 s{S_PT}, s{S_PT}, 13
              buffer_load_dword v{VL+1}, v{VL}, s[{SRD_W2}:{SRD_W2+3}], s{S_PT} offen
              s_add_u32 s{S_PT}, s{S_PT}, {25 * 8192}
              buffer_load_dword v{VL+1}, v{VL}, s[{SRD_W2}:{SRD_W2+3}], s{S_PT} offen""")
            ld = [x for x in pf if x.kind == "vmem"]
            for x in ld[:-1]: x.wr = []
            ld[0].deps = [(info[2]["bar"], 0)]
            if "w" not in os.environ.get("X", ""): xs.append(pf)
        cnt = L(f"s_mov_b32 s{S_CNT}, 7") if isL else L(f"s_sub_u32 s{S_CNT}, s{S_J}, 1")
        xs.append(cnt); xs.append(p4_setup())
        return xs
    return seq("head" + "SL"[isL], pers, 0, carry_in=False, extra=extra)

def loop(dma, label):
    D = (1, 1) if dma else (0, 0)
    pers = [Per(i, dma=D) for i in range(4)]
    tail = Bundle(L(f"s_cmp_lg_u32 s{S_CNT}, 0", f"s_cbranch_scc1 {label}"))
    out = seq("loop" + "ND"[dma], pers, 0, extra=lambda info: [L(f"s_sub_u32 s{S_CNT}, s{S_CNT}, 1")], tail=tail)
    return L(label + ":") + out

def gl_load():
    return L(f"""v_and_b32 v{VL+2}, 15, v0
        v_lshlrev_b32 v{VL+2}, 3, v{VL+2}
        s_sub_u32 s{S_PO}, 15, s{S_J}
        s_lshl_b32 s{S_PO}, s{S_PO}, 3
        s_and_b32 s{S_PT}, s{S_W}, 1
        s_add_u32 s{S_PO}, s{S_PO}, s{S_PT}
        s_lshl_b32 s{S_PO}, s{S_PO}, 7
        s_add_u32 s{S_PO}, s{S_PO}, {hex(G_BASE)}
        buffer_load_dword v{VGL}, v{VL+2}, s[{SRD_WS}:{SRD_WS+3}], s{S_PO} offen offset:512 sc1
        buffer_load_dword v{VGL+1}, v{VL+2}, s[{SRD_WS}:{SRD_WS+3}], s{S_PO} offen offset:768 sc1""")

def switch(j0):
    p0 = Per(0, mask=0, dma=(0, 1), dph=2) if not j0 else Per(0, mask=0, pv=[], dma=(0, 1), dph=2, early=True)
    pers = [p0,
            Per(1, qk=[1, 2, 3], mask=1, dph=3, pad=8, first=j0, kregs=A_K2 if j0 else A_K),
            Per(2, qk=[2, 3], mask=2, pv=[1, 2, 3], dph=0, pad=16),
            Per(3, qk=[3], mask=3, pv=[2, 3], dph=1, kph=2, pad=32),
            Per(2, pv=[3], vph=0, pad=18),
            Per(3, first=True, amajor=[0, 1, 2, 3], pad=26)]
    def extra(info):
        ep = []
        for a in range(4): ep += epi_own(a, info[a + 1]["odone"][a] + 8)
        q = L(f"v_add_u32 v{VX+1}, {STASH}, v{VX}")
        for a in range(4):
            for ds in range(4):
                q.append(I(f"ds_read_b128 {r4('v', q_reg(a, ds))}, v{VX+1} offset:{(4 * a + ds) * 1024}", earliest=max(info[a]["qkend"], info[2]["mid"])))
        sw = [I(f"v_add_u32 v{VK}, {RING_B - RING_A}, v{VK}", deps=[(info[2]["kreads"][-1], 0)]),
              I(f"v_add_u32 v{VV}, {RING_B - RING_A}, v{VV}", deps=[(info[4]["vreads"][-1], 0)])]
        info[3]["kreads"][0].deps.append((sw[0], 1)); info[5]["vreads"][0].deps.append((sw[1], 1))
        ng = []
        for a in range(4):
            for r in range(4): ng.append(I(f"v_mov_b32 v{NEGM + 4 * a + r}, v{VNL + a}", earliest=info[a]["qkend"] + 2))
        for r in range(8): ng.append(I(f"v_add_f32 v{MK + 8 + r}, v{MK + r}, v{NEGM}"))
        xs = [sw, q, ng, ep, gl_load() + L(f"s_sub_u32 s{S_CNT}, 6, s{S_J}")]
        if j0: xs.insert(0, ones()); info[3]["barwait"].waitfor.append(HL[0]); xs.append(p4_setup())
        return xs
    pre = []
    return seq("switch0" if j0 else "switch", pers, 0, carry_in=not j0, extra=extra, tail_ok=True)

def final(j7):
    pers = [Per(0, mask=0, dma=(1, 1)),
            Per(1, qk=[1, 2, 3], mask=1, dma=(1, 0), pad=0 if j7 else 8),
            Per(2, qk=[2, 3], mask=2, pv=[1, 2, 3], dma=(0, 0), pad=0 if j7 else 16),
            Per(3, qk=[3], mask=3, pv=[2, 3], dma=(0, 0), kread=False, pad=0 if j7 else 32),
            Per(0, qk=[], pv=[3], dma=(0, 0), kread=False, bar=False, vregs=A_K)]
    def extra(info):
        if j7:
            ep = []
            for a in range(4): ep += epi_own(a, info[a + 1]["odone"][a] + 8)
            pp = p4_pro("h7", 0, info[2]["bar"], info[3]["end"], info[4]["end"])
            w = wdma(1); w[0].deps = [(info[3]["bar"], 0)]
            return [pp + w, ep]
        x = L(f"v_add_u32 v{VX+1}, {STASH}, v{VX}")
        for a in range(2):
            e = info[a + 1]["odone"][a] + 8
            for db in range(8): x.append(I(f"ds_write_b128 v{VX+1}, {r4('a', a_o(db, a))} offset:{(8 * a + db) * 1024}", earliest=e))
            x.append(I(f"ds_write_b32 v{VLS}, a{A_L + 4 * a} offset:{4 * a}", earliest=e, deps=[(info[1]["bar"], 0)]))
        info[3]["barwait"].waitfor.append(x[-1]); info[3]["barwait"].deps.append((x[-1], 2))
        m = []
        for a in (2, 3):
            e = max(info[a + 1]["odone"][a] + 8, info[3]["qkend"] + 1)
            for db in range(8):
                for r in range(4): m.append(I(f"v_accvgpr_read_b32 v{mreg(a - 2, db) + r}, a{a_o(db, a) + r}", earliest=e))
            m.append(I(f"v_accvgpr_read_b32 v{VL + 2 * (a - 2)}, a{A_L + 4 * a}", earliest=e))
        return [x, p4_pro("hS", info[1]["start"], info[3]["bar"], info[3]["end"], info[4]["end"]), m]
    return seq("final7" if j7 else "final", pers, 0, carry_out=False, extra=extra, tail_ok=True)

def mreg(a2, db): return U(Q_UNITS[2 * a2 + (db >> 2)]) + 4 * (db & 3)
def nreg(a2, db): return SB[a2][db >> 2] + 4 * (db & 3)
VL2 = VT + 8

def finalize(isL):
    o = []
    for a2 in range(2):
        a = a2 if isL else a2 + 2
        vl = VL + 2 * a2
        sc = VT + 2 * a2
        o += L(f"v_add_f32 v{sc}, v{vl}, v{VL2 + a2}") + scale_ops(sc, VC + 2 * a if isL else VGL + a2) + L(f"v_mov_b32 v{sc+1}, v{sc}")
        for ds in range(4):
            for k in range(2):
                m, n = mreg(a2, 2 * ds + k), nreg(a2, 2 * ds + k)
                if isL:
                    for r in range(4): o += L(f"v_accvgpr_read_b32 v{n+r}, a{a_o(2*ds+k, a)+r}")
                for r in (0, 2): o += L(f"v_pk_add_f32 {r2('v', m+r)}, {r2('v', m+r)}, {r2('v', n+r)}")
                for r in (0, 2): o += L(f"v_pk_mul_f32 {r2('v', m+r)}, {r2('v', m+r)}, {r2('v', sc)}")
            m0, m1 = mreg(a2, 2 * ds), mreg(a2, 2 * ds + 1)
            o += L(f"v_cvt_pk_bf16_f32 v{m0}, v{m0}, v{m0+1}", f"v_cvt_pk_bf16_f32 v{m0+1}, v{m0+2}, v{m0+3}",
                   f"v_cvt_pk_bf16_f32 v{m0+2}, v{m1}, v{m1+1}", f"v_cvt_pk_bf16_f32 v{m0+3}, v{m1+2}, v{m1+3}")
            o += store_ctx(m0, S_ACT if isL else S_ACT2, ds, a)
    return o

def ltail():
    pers = [Per(0, dma=(0, 0)), Per(1, dma=(0, 0), kread=False),
            Per(2, qk=[], amajor=[2, 3, 0, 1], dma=(0, 0), kread=False, bar=False, vregs=A_K)]
    def extra(info):
        rd = L(f"v_add_u32 v{VX+1}, {STASH}, v{VX}")
        for a2 in range(2):
            for db in range(8): rd.append(I(f"ds_read_b128 {r4('v', mreg(a2, db))}, v{VX+1} offset:{(8 * a2 + db) * 1024}", earliest=info[1]["mid"] + 18))
            rd.append(I(f"ds_read_b32 v{VL2 + a2}, v{VLS} offset:{4 * a2}"))
        rd[1].deps = [(info[1]["bar"], 0)]
        x = rd + L(f"v_add_u32 v{VX+1}, {RING_A}, v{VX}")
        for a in (2, 3):
            e = info[2]["odone"][a] + 5
            x.append(I(f"ds_write_b32 v{VLS}, a{A_L + 4 * a} offset:{4 * a}", earliest=e))
            for db in range(8): x.append(I(f"ds_write_b128 v{VX+1}, {r4('a', a_o(db, a))} offset:{(8 * (a - 2) + db) * 1024}", earliest=e - 7 + db))
        x += [WAITLGKM(x[-1]), I("s_barrier")]
        return [x, p4_pro("hL", 0, info[1]["bar"], info[1]["end"], info[2]["end"])]
    o = seq("ltail", pers, 0, carry_out=False, extra=extra, tail_ok=True)
    o += wdma(1) + L(f"v_accvgpr_read_b32 v{VL}, a{A_L}", f"v_accvgpr_read_b32 v{VL+2}, a{A_L+4}") + finalize(True)
    return fix_hazards(o)

def smerge():
    o = L("s_barrier", f"v_add_u32 v{VX+1}, {RING_A}, v{VX}")
    for a2 in range(2):
        o += L(f"ds_read_b32 v{VL2 + a2}, v{VLS} offset:{4 * (a2 + 2)}")
        for db in range(8): o += L(f"ds_read_b128 {r4('v', nreg(a2, db))}, v{VX+1} offset:{(8 * a2 + db) * 1024}")
    return fix_hazards(o + wdma(1) + finalize(False))

def prepass():
    M = FR; T = FR + 4; CI = SB[1]; D = SB[0]
    o = L(f"""Lpre:
      s_waitcnt vmcnt(0) lgkmcnt(0)
      s_nop 7
      s_mul_i32 s{S_T0}, s{S_H}, {hex(KV_HEAD)}
      s_add_u32 s{S_T0}, s{S_T0}, {hex(KV_BASE)}
      s_lshl_b32 s{S_T1}, s{S_BLK}, 2
      s_sub_u32 s{S_T1}, 0, s{S_T1}
      v_mov_b32 v{T+1}, 0xff800000""")
    o += L(*[f"v_mov_b32 v{M+a}, v{T+1}" for a in range(4)])
    o += L(*[f"v_mov_b32 v{CI[k]+r}, 0" for k in range(2) for r in range(16)])
    o += L("Lpre_loop:")
    for f in range(8):
        o += L(f"buffer_load_dwordx4 {r4('a', A_V + 4 * f)}, v{VST2 if f >= 4 else VST}, s[{SRD_WS}:{SRD_WS+3}], s{S_T0} offen offset:{(f & 3) * 1024} sc1")
    for a in range(4):
        o += L(f"s_cmp_eq_i32 s{S_T1}, {a}", f"s_cbranch_scc0 Lpre_{a}")
        for k in range(2):
            for r in range(4):
                o += L(f"v_mov_b32 v{CI[k] + 4 * a + r}, v{MK + 4 * k + r}")
                if a: o += L(f"v_mov_b32 v{CI[k] + 4 * a - 4 + r}, v{T+1}")
        o += L(f"Lpre_{a}:")
    o += L("s_waitcnt vmcnt(0)", "s_nop 1")
    for k in range(2):
        for ds in range(4):
            for a in range(4):
                d = r4("v", D[k] + 4 * a)
                o += L(f"{MF} {d}, {r4('a', A_V + 16 * k + 4 * ds)}, {r4('v', q_reg(a, ds))}, {d if ds else r4('v', CI[k] + 4 * a)}")
    o += L("s_nop 7", "s_nop 7")
    for k in range(2):
        for a in range(4):
            for r in (0, 2): o += L(f"v_max3_f32 v{M+a}, v{D[k] + 4 * a + r}, v{D[k] + 4 * a + r + 1}, v{M+a}")
    o += L(f"""s_add_u32 s{S_T0}, s{S_T0}, 16384
      s_add_i32 s{S_T1}, s{S_T1}, 1
      s_cmp_lt_i32 s{S_T1}, 4
      s_cbranch_scc1 Lpre_loop""")
    for a in range(4):
        for sw in ("16", "32"):
            o += L(f"v_mov_b32 v{T}, v{M+a}", f"v_permlane{sw}_swap_b32 v{T}, v{M+a}", "s_nop 1", f"v_max_f32 v{M+a}, v{M+a}, v{T}")
        o += L(f"v_sub_f32 v{M+a}, 0, v{M+a}")
        o += L(*[f"v_mov_b32 v{NEGM + 4 * a + r}, v{M+a}" for r in range(4)])
    o += L(*[f"v_add_f32 v{MK + 8 + r}, v{MK + r}, v{M}" for r in range(8)])
    o += L(f"""s_lshr_b32 s{S_T0}, s{S_W}, 1
      s_lshl_b32 s{S_T0}, s{S_T0}, 10
      v_add_u32 v{VX+1}, {STASH}, v{VX}
      v_add_u32 v{T}, s{S_T0}, v{VX+1}
      ds_write_b128 v{T}, {r4('v', M)}
      s_waitcnt lgkmcnt(0)
      s_barrier
      ds_read_b128 {r4('v', VNL)}, v{VX+1}
      s_waitcnt lgkmcnt(0)
      s_branch Lpre_back""")
    return fix_hazards(o)

def k12(name, p4):
    K = Kernel(name, 256, 163840)
    pro, main = front(front_tail)
    K.add("pro", stamp(0) + entry("Lexit1") + pro)
    K.add("front", main + stamp(10) + L(f"s_cmp_lg_u32 s{S_SLOW}, 0", "s_cbranch_scc1 Lpre", "Lpre_back:", f"s_cmp_ge_u32 s{S_W}, 2", "s_cbranch_scc1 LS"))
    K.add("headL", head(True))
    K.add("loopD", loop(True, "LloopD"))
    K.add("afterD", L(f"s_cmp_eq_u32 s{S_J}, 7", "s_cbranch_scc1 Lfinal7", f"s_cmp_ge_u32 s{S_W}, 2", "s_cbranch_scc1 Lfinal"))
    K.add("ltail", ltail() + L("s_branch Ldone"))
    K.add("S0", L("LS:", f"s_cmp_eq_u32 s{S_J}, 0", "s_cbranch_scc1 Lswitch0"))
    K.add("headS", head(False) + L(f"s_cmp_eq_u32 s{S_CNT}, 0", "s_cbranch_scc1 Lswitch"))
    K.add("loopN", loop(False, "LloopN"))
    K.add("afterN", L(f"s_cmp_eq_u32 s{S_J}, 7", "s_cbranch_scc1 Lfinal7"))
    K.add("switch", L("Lswitch:") + switch(False) + L(f"s_cmp_lg_u32 s{S_CNT}, 0", "s_cbranch_scc1 LloopD"))
    K.add("final", L("Lfinal:") + final(False) + smerge() + L("s_branch Ldone"))
    K.add("switch0", L("Lswitch0:") + switch(True) + L("s_branch LloopD"))
    K.add("final7", L("Lfinal7:") + final(True))
    K.add("bar7", L(f"s_cmp_lt_u32 s{S_W}, 2", "s_cbranch_scc1 Ldone", "s_barrier", "s_barrier", "s_barrier", "s_barrier"))
    a, b, c = p4()
    K.add("done", L("Ldone:") + stamp(11) + a + b + c + prof_out(0, 15) + L("Lexit1:", "s_endpgm"))
    pf = ["pro", "front"]
    K.paths = [pf + ["headL", "loopD", "loopD", "loopD", "afterD", "ltail", "done"],
               pf + ["headL", "loopD", "loopD", "afterD", "final7", "bar7", "done"],
               pf + ["S0", "headS", "switch", "loopD", "loopD", "afterD", "final", "done"],
               pf + ["S0", "headS", "loopN", "loopN", "afterN", "switch", "final", "done"],
               pf + ["S0", "headS", "loopN", "afterN", "switch", "loopD", "afterD", "final", "done"],
               pf + ["S0", "headS", "loopN", "loopN", "afterN", "final7", "bar7", "done"],
               pf + ["S0", "switch0", "loopD", "loopD", "afterD", "final", "done"]]
    K.add("slow", [i for b in slow_blocks for i in b] + L("Lend:") + prepass())
    K.finish()
    return K
```

```python
from attn import *

def p4():
    DA = int(os.environ.get("DA", "8")); DC = int(os.environ.get("DC", "6"))
    st_of = [s for s, n in enumerate(STG) for _ in range(n)]; sub_of = [q for n in STG for q in range(n)]
    spine = []; frags = []; done = {}
    for ks in range(34):
        for mt in range(9):
            w = r4("v", WF + 4 * (len(frags) % NF))
            for a in range(4):
                d = r4("v", acc(mt, a))
                spine.append(I(f"{MF} {d}, {w}, {bact(ks, a)}, {d if ks else '0'}")); done[(mt, a)] = len(spine) - 1
            frags.append((ks, mt, len(spine) - 1))
    ds = []; pro_ds = []; bars = {}; bars_w = {}; barpos = {0: 0}; shift = 0
    for f, (ks, mt, b) in enumerate(frags):
        s = st_of[ks]
        e = frags[f - NF][2] if f >= NF else None
        if mt == 0 and sub_of[ks] == 0:
            w = [WAITG("w", s), I("s_barrier")]
            if f:
                w.insert(0, WAITLGKM(ds[-1])); barpos[s] = e + 4
                for x in w: x.earliest = e + 3; x.deadline = e + 4
                ds += w
            else: pro_ds += w
            bars[s] = w[-1]; bars_w[s] = w[0]
        for jj in range(2):
            x = I(f"ds_read_b64_tr_b16 {r2('v', WF + 4 * (f % NF) + 2 * jj)}, v{VA + s % 4} offset:{sub_of[ks] * 9216 + jj * 4608 + mt * 32}")
            if e is None: pro_ds.append(x)
            else:
                x.earliest = e + 2 * jj; x.deadline = e + 10 + 2 * jj; ds.append(x)
    al = {ks: aload(ks) for ks in range(6, 34)}
    vm = []
    for s in range(2, 9):
        o = wdma(s)
        t0 = barpos[s - 3] + 1 if s > 3 else 60 * (s - 2)
        for k, x in enumerate(o): x.earliest = t0 + 5 * k
        if s > 3: o[0].deps = [(bars[s - 3], 0)]
        vm += o
    av = []; aw = []
    pa, pb = poll2("ctx", VF + 2, 4, 4, 36 * (18 - DC) - 100, 36 * (18 - DC) - 4)
    for ks in range(6, 34):
        t0 = max(36 * (ks - (DA if ks < 18 else DC)), 24 * (ks - 6))
        for k, x in enumerate(al[ks]): x.earliest = t0 + 6 * k
        if ks == 18: al[ks][0].deps = [(pb, 0)]
        av += al[ks]
    for ks in range(1, 34):
        w = WAITG("a", ks); w.earliest = 36 * ks - 4; w.deadline = 36 * ks - 1; aw.append(w)
    for x in vm + av: x.maxlag = 6
    bars_w[1].waitfor += CTX_LAST
    misc = [Bundle(L(f"v_cmp_ne_u32 vcc, 0, v{VF}", "s_nop 4", "s_cbranch_vccnz Lrestart"), earliest=8)]
    slow_blocks.append(L(f"""Lrestart:
      s_waitcnt vmcnt(0) lgkmcnt(0)
      s_barrier
      s_movk_i32 s{S_SLOW}, 256
      s_branch Lstart"""))
    misc += [Bundle(L(f"s_cmp_lg_u32 s{S_W}, 0", f"s_cselect_b32 s{S_SIG}, 256, 0"))]
    misc += sig_group(4) + [Bundle(flag_addr(VF, 11, 4, None))] + [sig_store(VF)]
    misc[-1].deps = [(bars[1], 0)]
    misc += pa + [pb]
    misc += L(f"""s_lshr_b32 s{S_PT}, s2, 3
      s_mul_i32 s{S_RB}, s{S_PT}, {64 * 9216}
      s_add_u32 s{S_RB}, s{S_RB}, {hex(PART_BASE)}
      s_and_b32 s{S_PT}, s{S_H}, 7
      s_lshl_b32 s{S_PO}, s{S_W}, 4
      s_add_u32 s{S_PO}, s{S_PO}, s{S_PT}
      s_mul_i32 s{S_PO}, s{S_PO}, 9216
      s_add_u32 s{S_P0}, s{S_RB}, s{S_PO}
      s_add_u32 s{S_P0+1}, s{S_P0}, 8192
      s_add_u32 s{S_P0+2}, s{S_P0}, {8 * 9216}
      s_add_u32 s{S_P0+3}, s{S_P0}, {8 * 9216 + 8192}
      s_mul_i32 s{S_PO}, s{S_PT}, {8 * 9216}
      s_add_u32 s{S_RB}, s{S_RB}, s{S_PO}""")
    misc += L(f"""s_and_b32 s{S_PO}, s2, 0xf8
      s_lshl_b32 s{S_OB}, s{S_W}, 1
      s_add_u32 s{S_PO}, s{S_PO}, s{S_OB}
      s_lshl_b32 s{S_PO}, s{S_PO}, 6
      s_add_u32 s{S_PO}, s{S_PO}, s{S_PT}
      s_lshl_b32 s{S_PO}, s{S_PO}, 2
      s_add_u32 s{S_PO}, s{S_PO}, {hex(INBOX + 32)}""") + [Bundle(flag_addr(VF, 8, 2, None))]
    misc += L(f"s_sub_u32 s{S_OB}, 15, s{S_J}") + [Bundle(L(f"s_cmp_lt_u32 s{S_PT}, 4", f"s_cselect_b32 s{S_OB}, s{S_OB}, s{S_J}"))]
    misc += L(f"""s_lshl_b32 s{S_OB}, s{S_OB}, 3
      s_bfe_u32 s{S_CNT}, s{S_PT}, 0x10001
      s_add_u32 s{S_OB}, s{S_OB}, s{S_CNT}
      s_and_b32 s{S_CNT}, s{S_PT}, 1
      s_lshl_b32 s{S_CNT}, s{S_CNT}, 2
      s_add_u32 s{S_OB}, s{S_OB}, s{S_CNT}
      s_mul_i32 s{S_OB}, s{S_OB}, {16 * 1152}
      s_lshr_b32 s{S_CNT}, s{S_H}, 3
      s_mul_i32 s{S_CNT}, s{S_CNT}, 288
      s_add_u32 s{S_OB}, s{S_OB}, s{S_CNT}""")
    R0, R1, O0, O1, T = 28, 29, 30, 31, 36
    misc += L(f"""s_lshl_b32 s{S_CNT}, s{S_W}, 11
      v_add_u32 v{R0}, s{S_CNT}, v{VST}
      s_lshl_b32 s{S_CNT}, s{S_W}, 8
      s_add_u32 s{S_CNT}, s{S_CNT}, 8192
      v_lshl_add_u32 v{R1}, v0, 2, s{S_CNT}
      v_and_b32 v{T}, 15, v0
      v_mul_u32_u24 v{T}, 1152, v{T}
      v_lshrrev_b32 v{T+1}, 4, v0
      v_lshl_add_u32 v{T}, v{T+1}, 3, v{T}
      s_lshl_b32 s{S_CNT}, s{S_W}, 6
      v_add_u32 v{O0}, s{S_CNT}, v{T}
      v_lshrrev_b32 v{T}, 2, v0
      v_bfe_u32 v{T+1}, v0, 1, 1
      v_lshl_add_u32 v{T}, v{T+1}, 5, v{T}
      v_mul_u32_u24 v{T}, 1152, v{T}
      v_and_b32 v{T+1}, 1, v0
      v_lshl_add_u32 v{T}, v{T+1}, 2, v{T}
      s_lshl_b32 s{S_CNT}, s{S_W}, 3
      s_add_u32 s{S_CNT}, s{S_CNT}, 256
      v_add_u32 v{O1}, s{S_CNT}, v{T}
      v_mov_b32 v{T}, 0x3f80
      v_mov_b32 v{T+1}, 0x3f800000""")
    pr, prb = poll2("red", VF + 2, 8, 8)
    misc += pr[:2]; pr[0].earliest = pr[1].earliest = 0
    misc[-1].deadline = len(spine) - 40
    epi = []
    for mt in range(9):
        for ap in range(2):
            b0, b1 = acc(mt, 2 * ap), acc(mt, 2 * ap + 1)
            o = L(f"v_cvt_pk_bf16_f32 v{b0}, v{b0}, v{b0+1}", f"v_cvt_pk_bf16_f32 v{b0+1}, v{b0+2}, v{b0+3}",
                  f"v_cvt_pk_bf16_f32 v{b0+2}, v{b1}, v{b1+1}", f"v_cvt_pk_bf16_f32 v{b0+3}, v{b1+2}, v{b1+3}",
                  f"buffer_store_dwordx4 {r4('v', b0)}, v{VST2 if mt & 4 else VST}, s[{SRD_WS}:{SRD_WS+3}], s{S_P0 + 2 * ap + (mt >> 3)} offen offset:{(mt & 3) * 1024} sc1")
            for x in o: x.earliest = done[(mt, 2 * ap + 1)] + 5
            epi += o
    main = fix_hazards(schedule(spine, [ds, aw, vm, av, misc, epi], verbose="p4", nprio=2))
    if PROF:
        mf = [i for i, x in enumerate(main) if x.kind == "mfma"]
        main[mf[648]:mf[648]] = stamp(13)
    red = stamp(14) + L(f"s_load_dwordx2 s[{SRD_OUT}:{SRD_OUT+1}], s[0:1], 80") + srd(SRD_OUT, SRD_OUT, 2048 * 1152) + L("s_waitcnt vmcnt(0)") + [sig_store(VF)] + [pr[2]] + flat([prb])
    D0 = 64
    for p in range(8):
        b = D0 + 12 * p
        if p: red += L(f"s_add_u32 s{S_RB}, s{S_RB}, 9216")
        red += L(f"""buffer_load_dwordx4 {r4('v', b)}, v{R0}, s[{SRD_WS}:{SRD_WS+3}], s{S_RB} offen sc1
          buffer_load_dwordx4 {r4('v', b+4)}, v{R0}, s[{SRD_WS}:{SRD_WS+3}], s{S_RB} offen offset:1024 sc1
          buffer_load_dword v{b+8}, v{R1}, s[{SRD_WS}:{SRD_WS+3}], s{S_RB} offen sc1""")
    A0 = 160
    for p in range(8):
        b = D0 + 12 * p
        for d in range(9):
            if p == 0: red += L(f"v_lshlrev_b32 v{A0+2*d}, 16, v{b+d}", f"v_and_b32 v{A0+2*d+1}, 0xffff0000, v{b+d}")
            else: red += L(f"v_lshlrev_b32 v{b+9}, 16, v{b+d}", f"v_and_b32 v{b+d}, 0xffff0000, v{b+d}",
                           f"v_add_f32 v{A0+2*d}, v{A0+2*d}, v{b+9}", f"v_add_f32 v{A0+2*d+1}, v{A0+2*d+1}, v{b+d}")
    for d in range(9): red += L(f"v_cvt_pk_bf16_f32 v{D0+d}, v{A0+2*d}, v{A0+2*d+1}")
    red += L(f"s_add_u32 s{S_CNT}, s{S_OB}, {32 * 1152}")
    for t in range(2):
        for a in range(2):
            red += L(f"buffer_store_dwordx2 {r2('v', D0 + 4 * t + 2 * a)}, v{O0}, s[{SRD_OUT}:{SRD_OUT+3}], s{S_CNT if a else S_OB} offen offset:{32 * t}")
    red += L(f"buffer_store_dword v{D0+8}, v{O1}, s[{SRD_OUT}:{SRD_OUT+3}], s{S_OB} offen")
    ck = L(f"""v_cmp_lt_u32 vcc, 0x40000000, v{VBAD}
      s_lshr_b32 s{S_PT}, s{S_SLOW}, 8
      s_lshl_b32 s{S_PO}, s{S_W}, 2
      v_mov_b32 v{VF+1}, s{S_PO}
      s_cmp_lg_u64 vcc, 0
      s_cselect_b32 s{S_PO}, 1, 0
      s_andn2_b32 s{S_PO}, s{S_PO}, s{S_PT}
      v_mov_b32 v{VF}, s{S_PO}
      ds_write_b32 v{VF+1}, v{VF}
      v_and_b32 v{VF+1}, 3, v0
      v_lshlrev_b32 v{VF+1}, 2, v{VF+1}
      s_waitcnt lgkmcnt(0)""")
    pro = fix_hazards(ck + pro_ds[:2] + [WAITG("a", 0)] + pro_ds[2:] + L(f"ds_read_b32 v{VF}, v{VF+1}") + stamp(12))
    return pro, main, fix_hazards(red)

def full(name):
    K = k12(name, p4)
    return K
```

```python
from common import *

S_W, S_H, S_J, S_SLOW = 3, 4, 5, 6
SRD_C, SRD_X, SRD_UK, SRD_UV, SRD_WS, SRD_W1, SRD_WQ, SRD_DBG = 8, 12, 16, 24, 20, 28, 32, 36
SRD_G = 40
SRD_W2, SRD_WO = SRD_X, SRD_G
S_T0, S_T1, S_T2, S_T3 = 44, 45, 46, 47
S_DT = 48
S_ET = 49
S_WM0, S_AM0 = 50, 51
S_CB, S_XB = 52, 53
S_WB, S_W1B, S_W1X = 54, 55, 56
S_KV = 57
S_ACT = 58
S_HK = 59
S_HX = 60
S_KSC, S_NL2E = 61, 62
S_BLK = 63
VTR, VTRX, VDMA, VDMA1, VDMAX, VCD, VXD, VAR, VST, VST2, VC = 1, 5, 7, 8, 9, 10, 12, 14, 16, 17, 20
VC = 20
VG = 24
VPF = 47
VT = 28
FR = 48
U0 = 64
def U(n): return U0 + 16 * n
KSCALE = LOG2E / (128 ** 0.5)
DBG_G, DBG_KV = 0, 32

def setup():
    t0, t1, t2, t3 = VT, VT + 1, VT + 2, VT + 3
    o = L(f"""
      s_load_dwordx2 s[{SRD_X}:{SRD_X+1}], s[0:1], 0
      s_load_dwordx2 s[{SRD_G}:{SRD_G+1}], s[0:1], 72
      s_load_dwordx2 s[{SRD_C}:{SRD_C+1}], s[0:1], 8
      s_load_dwordx2 s[{SRD_UK}:{SRD_UK+1}], s[0:1], 24
      s_load_dwordx2 s[{SRD_UV}:{SRD_UV+1}], s[0:1], 32
      s_load_dwordx2 s[{SRD_WS}:{SRD_WS+1}], s[0:1], 96
      s_load_dwordx2 s[{SRD_W1}:{SRD_W1+1}], s[0:1], 56
      s_load_dwordx2 s[{SRD_WQ}:{SRD_WQ+1}], s[0:1], 16
      s_load_dwordx2 s[{SRD_DBG}:{SRD_DBG+1}], s[0:1], 88
      s_and_b32 s{S_H}, s2, 31
      s_lshr_b32 s{S_J}, s2, 5
    """)
    o += L(f"""
      v_lshrrev_b32 v{t0}, 3, v0
      s_lshl_b32 s{S_T0}, s{S_W}, 3
      v_add_u32 v{t0}, s{S_T0}, v{t0}
      v_and_b32 v{t2}, 3, v{t0}
      v_bfe_u32 v{t1}, v{t0}, 2, 2
      v_lshl_add_u32 v{t2}, v{t1}, 3, v{t2}
      v_lshrrev_b32 v{t1}, 4, v{t0}
      v_lshl_add_u32 v{t2}, v{t1}, 2, v{t2}
      v_bfe_u32 v{t0}, v{t0}, 1, 2
      v_bfe_u32 v{t1}, v0, 1, 2
      v_xor_b32 v{t0}, v{t0}, v{t1}
      v_and_b32 v{t1}, 1, v0
      v_lshlrev_b32 v{t1}, 4, v{t1}
      v_lshl_add_u32 v{t3}, v{t0}, 5, v{t1}
      v_lshl_add_u32 v{VDMA}, v{t2}, 13, v{t3}
      v_mul_u32_u24 v{t2}, 9216, v{t2}
      v_add_u32 v{VDMA1}, v{t2}, v{t3}
    """)
    o += L(f"""
      v_lshrrev_b32 v{t0}, 4, v0
      v_and_b32 v{t1}, 7, v0
      v_xor_b32 v{t0}, v{t0}, v{t1}
      v_lshlrev_b32 v{t0}, 4, v{t0}
      v_lshrrev_b32 v{t1}, 3, v0
      v_lshl_add_u32 v{VCD}, v{t1}, 10, v{t0}
      v_xor_b32 v{VCD+1}, 64, v{VCD}
      s_lshl_b32 s{S_WM0}, s{S_W}, 12
      s_mul_i32 s{S_AM0}, s{S_W}, 24576
      s_add_u32 s{S_AM0}, s{S_AM0}, 0x10000
      s_lshl_b32 s{S_T0}, s{S_J}, 2
      s_add_u32 s{S_T0}, s{S_T0}, s{S_W}
      s_lshl_b32 s{S_CB}, s{S_T0}, 16
      s_lshl_b32 s{S_WB}, s{S_H}, 8
    """)
    o += srd(SRD_C, SRD_C, 2048 * 1024) + srd(SRD_UK, SRD_UK, 512 * 8192) + srd(SRD_X, SRD_X, 2048 * 1152) + srd(SRD_G, SRD_G, 1152)
    return o

def setup2():
    t0, t1, t2, t3 = VT, VT + 1, VT + 2, VT + 3
    o = L(f"s_load_dwordx2 s[{SRD_W2}:{SRD_W2+1}], s[0:1], 64", f"s_load_dwordx2 s[{SRD_WO}:{SRD_WO+1}], s[0:1], 40",
          f"s_mov_b32 s{SRD_W2+2}, {4608 * 1152}", f"s_mov_b32 s{SRD_WO+2}, {4096 * 1152}")
    o += srd(SRD_UV, SRD_UV, 512 * 8192) + srd(SRD_WS, SRD_WS, WS_SIZE) + srd(SRD_W1, SRD_W1, 576 * 9216) + srd(SRD_WQ, SRD_WQ, 576 * 8192) + srd(SRD_DBG, SRD_DBG, 256)
    if "h" in os.environ.get("X", ""): o += L(f"s_add_u32 s{SRD_WS}, s{SRD_WS}, 0x8000000", f"s_addc_u32 s{SRD_WS+1}, s{SRD_WS+1}, 0")
    o += L(f"""
      v_bfe_u32 v{t0}, v0, 2, 3
      v_lshlrev_b32 v{t0}, 7, v{t0}
      v_and_b32 v{t1}, 3, v0
      v_lshl_add_u32 v{t0}, v{t1}, 3, v{t0}
      v_lshrrev_b32 v{t1}, 5, v0
      v_lshl_add_u32 v{t0}, v{t1}, 12, v{t0}
      v_bfe_u32 v{t1}, v0, 3, 2
    """)
    for nb in range(4):
        o += L(f"v_xor_b32 v{t2}, {nb}, v{t1}", f"v_lshl_add_u32 v{VTR+nb}, v{t2}, 5, v{t0}")
    o += L(f"""
      v_lshlrev_b32 v{t0}, 3, v0
      v_add_u32 v{VTRX}, {0x10000 + 16384}, v{t0}
      v_add_u32 v{VTRX+1}, {0x10000 + 16384 + 49152}, v{t0}
      v_lshrrev_b32 v{t0}, 1, v0
      v_and_b32 v{t2}, 3, v{t0}
      v_bfe_u32 v{t1}, v{t0}, 2, 2
      v_lshl_add_u32 v{t2}, v{t1}, 3, v{t2}
      v_lshrrev_b32 v{t1}, 4, v{t0}
      v_lshl_add_u32 v{t2}, v{t1}, 2, v{t2}
      s_lshl_b32 s{S_T0}, s{S_W}, 5
      v_add_u32 v{t2}, s{S_T0}, v{t2}
      v_mul_u32_u24 v{t2}, 9216, v{t2}
      v_and_b32 v{t1}, 1, v0
      v_lshl_add_u32 v{VDMAX}, v{t1}, 4, v{t2}
    """)
    o += L(f"""
      v_and_b32 v{t0}, 15, v0
      v_lshrrev_b32 v{t1}, 1, v{t0}
      v_lshrrev_b32 v{t2}, 4, v0
      v_xor_b32 v{t1}, v{t1}, v{t2}
      v_lshlrev_b32 v{t1}, 4, v{t1}
      v_lshl_add_u32 v{t1}, v{t0}, 7, v{t1}
      v_add_u32 v{VAR}, s{S_AM0}, v{t1}
      v_xor_b32 v{VAR+1}, 64, v{VAR}
      v_lshlrev_b32 v{VST}, 4, v0
      v_add_u32 v{VST2}, 0x1000, v{VST}
    """)
    o += L(f"""
      s_lshl_b32 s{S_T0}, s{S_J}, 2
      s_add_u32 s{S_T0}, s{S_T0}, s{S_W}
      s_lshl_b32 s{S_T0}, s{S_T0}, 15
      s_mul_i32 s{S_T1}, s{S_H}, {hex(KV_HEAD)}
      s_add_u32 s{S_T0}, s{S_T0}, s{S_T1}
      s_add_u32 s{S_KV}, s{S_T0}, {hex(KV_BASE)}
      s_mov_b32 s{S_KSC}, {f2u(KSCALE)}
      s_mov_b32 s{S_NL2E}, {f2u(-LOG2E)}
      s_sub_u32 s{S_T0}, 15, s{S_J}
      s_cmp_lt_u32 s{S_W}, 2
      s_cselect_b32 s{S_BLK}, s{S_T0}, s{S_J}
      s_and_b32 s{S_T1}, s{S_W}, 1
      s_mul_i32 s{S_T0}, s{S_BLK}, 144
      s_add_u32 s{S_T0}, s{S_T0}, s{S_T1}
      s_lshl_b32 s{S_XB}, s{S_T0}, 10
      s_add_u32 s{S_XB}, s{S_XB}, {hex(XI_BASE)}
      s_and_b32 s{S_T0}, s{S_H}, 7
      s_mul_i32 s{S_ACT}, s{S_T0}, {hex(ACT_G)}
      s_mul_i32 s{S_T2}, s{S_BLK}, {hex(ACT_RB)}
      s_add_u32 s{S_ACT}, s{S_ACT}, s{S_T2}
      s_lshl_b32 s{S_T1}, s{S_T1}, 10
      s_add_u32 s{S_ACT}, s{S_ACT}, s{S_T1}
      s_add_u32 s{S_ACT}, s{S_ACT}, {hex(ACT_BASE)}
      s_lshr_b32 s{S_T1}, s{S_H}, 4
      s_bfe_u32 s{S_T2}, s{S_H}, 0x10003
      s_lshl_b32 s{S_T0}, s{S_T0}, 1
      s_add_u32 s{S_T0}, s{S_T0}, s{S_T1}
      s_mul_i32 s{S_T0}, s{S_T0}, 576
      s_lshl_b32 s{S_T3}, s{S_T2}, 8
      s_add_u32 s{S_W1B}, s{S_T0}, s{S_T3}
      s_lshl_b32 s{S_T3}, s{S_T2}, 5
      s_add_u32 s{S_W1X}, s{S_T0}, s{S_T3}
      s_add_u32 s{S_W1X}, s{S_W1X}, 512
      s_mul_i32 s{S_T0}, s{S_T1}, {9 * 8192}
      s_add_u32 s{S_T0}, s{S_T0}, s{S_ACT}
      s_lshl_b32 s{S_T3}, s{S_T2}, 15
      s_add_u32 s{S_HK}, s{S_T0}, s{S_T3}
      s_lshl_b32 s{S_T3}, s{S_T2}, 3
      s_add_u32 s{S_HX}, s{S_T0}, s{S_T3}
      s_add_u32 s{S_HX}, s{S_HX}, {8 * 8192}
      s_lshr_b32 s{S_T1}, s{S_H}, 3
      s_lshl_b32 s{S_T1}, s{S_T1}, 15
      s_add_u32 s{S_ACT}, s{S_ACT}, s{S_T1}
      s_add_u32 s{S_ACT}, s{S_ACT}, {18 * 8192}
    """)
    return o

def gate_loads(vx, vg, voff, t0):
    return L(f"""
      v_lshrrev_b32 v{t0}, 5, v0
      s_sub_u32 s{S_T0}, 15, s{S_J}
      s_cmp_lt_u32 s{S_H}, 16
      s_cselect_b32 s{S_T0}, s{S_T0}, s{S_J}
      s_lshl_b32 s{S_T0}, s{S_T0}, 4
      s_and_b32 s{S_T1}, s{S_H}, 15
      s_add_u32 s{S_T0}, s{S_T0}, s{S_T1}
      s_lshl_b32 s{S_T0}, s{S_T0}, 2
      s_add_u32 s{S_T0}, s{S_T0}, s{S_W}
      s_lshl_b32 s{S_T0}, s{S_T0}, 1
      v_add_u32 v{voff+2}, s{S_T0}, v{t0}
      v_mul_u32_u24 v{voff}, 1152, v{voff+2}
      v_and_b32 v{t0}, 31, v0
      v_lshlrev_b32 v{voff+1}, 4, v{t0}
      v_add_u32 v{voff}, v{voff}, v{voff+1}
      buffer_load_dwordx4 {r4('v',vx)}, v{voff}, s[{SRD_X}:{SRD_X+3}], 0 offen
      buffer_load_dwordx4 {r4('v',vx+4)}, v{voff}, s[{SRD_X}:{SRD_X+3}], 0 offen offset:512
      buffer_load_dwordx4 {r4('v',vx+8)}, v{voff}, s[{SRD_X}:{SRD_X+3}], 0 offen offset:1024
      buffer_load_dwordx4 {r4('v',vg)}, v{voff+1}, s[{SRD_G}:{SRD_G+3}], 0 offen
      buffer_load_dwordx4 {r4('v',vg+4)}, v{voff+1}, s[{SRD_G}:{SRD_G+3}], 0 offen offset:512
      buffer_load_dwordx4 {r4('v',vg+8)}, v{voff+1}, s[{SRD_G}:{SRD_G+3}], 0 offen offset:1024
    """)

S_XS = 7
def ximg_loads(vd, t):
    return L(f"""
      s_sub_u32 s{S_T0}, 15, s{S_J}
      s_cmp_lt_u32 s{S_H}, 16
      s_cselect_b32 s{S_T0}, s{S_T0}, s{S_J}
      s_bfe_u32 s{S_T1}, s{S_H}, 0x30001
      s_and_b32 s{S_T2}, s{S_H}, 1
      s_mul_i32 s{S_T2}, s{S_T2}, 9
      s_mul_i32 s{S_XS}, s{S_T0}, 18
      s_add_u32 s{S_XS}, s{S_XS}, s{S_T2}
      s_lshl_b32 s{S_XS}, s{S_XS}, 3
      s_add_u32 s{S_XS}, s{S_XS}, s{S_T1}
      s_lshl_b32 s{S_XS}, s{S_XS}, 10
      s_add_u32 s{S_XS}, s{S_XS}, {hex(XI_BASE)}
      s_lshl_b32 s{S_T0}, s{S_T0}, 3
      s_add_u32 s{S_T0}, s{S_T0}, s{S_T1}
      s_mul_i32 s{S_T0}, s{S_T0}, {16 * 1152}
      s_lshl_b32 s{S_T2}, s{S_T2}, 6
      s_add_u32 s{S_T0}, s{S_T0}, s{S_T2}
      s_lshl_b32 s{S_T1}, s{S_W}, 6
      s_add_u32 s{S_T1}, s{S_T1}, s{S_T0}
      v_and_b32 v{t}, 15, v0
      v_mul_u32_u24 v{t}, 1152, v{t}
      v_and_b32 v{t+1}, 48, v0
      v_add_u32 v{t}, v{t}, v{t+1}
      buffer_load_dwordx4 {r4('v',vd)}, v{t}, s[{SRD_X}:{SRD_X+3}], s{S_T1} offen
      buffer_load_dwordx4 {r4('v',vd+4)}, v{t}, s[{SRD_X}:{SRD_X+3}], s{S_T1} offen offset:256
      buffer_load_dwordx4 {r4('v',vd+8)}, v{t}, s[{SRD_X}:{SRD_X+3}], s{S_T0} offen offset:512
    """)
def ximg_stores(vd):
    return L(f"""
      s_lshl_b32 s{S_PO}, s{S_W}, 13
      s_add_u32 s{S_PO}, s{S_PO}, s{S_XS}
      buffer_store_dwordx4 {r4('v',vd)}, v{VST}, s[{SRD_WS}:{SRD_WS+3}], s{S_PO} offen sc1
      s_add_u32 s{S_PO}, s{S_PO}, 32768
      buffer_store_dwordx4 {r4('v',vd+4)}, v{VST}, s[{SRD_WS}:{SRD_WS+3}], s{S_PO} offen sc1
      s_add_u32 s{S_PO}, s{S_XS}, 65536
      buffer_store_dwordx4 {r4('v',vd+8)}, v{VST}, s[{SRD_WS}:{SRD_WS+3}], s{S_PO} offen sc1
    """)

def gate_compute(vx, vg, voff, t):
    o = L(f"v_and_b32 v{t}, 31, v0", f"v_cmp_gt_u32 vcc, 8, v{t}", f"v_mov_b32 v{t+4}, 0", f"v_mov_b32 v{t+5}, 0")
    for r in range(8, 12): o += L(f"v_cndmask_b32 v{vx+r}, 0, v{vx+r}, vcc")
    for r in range(12):
        o += L(f"""
          v_lshlrev_b32 v{t}, 16, v{vx+r}
          v_and_b32 v{t+1}, 0xffff0000, v{vx+r}
          v_lshlrev_b32 v{t+2}, 16, v{vg+r}
          v_and_b32 v{t+3}, 0xffff0000, v{vg+r}
          v_fmac_f32 v{t+4}, v{t}, v{t+2}
          v_fmac_f32 v{t+5}, v{t+1}, v{t+3}""")
    z = t + 4
    o += L(f"""
      v_add_f32 v{z}, v{z}, v{t+5}
      v_add_f32_dpp v{z}, v{z}, v{z} quad_perm:[1,0,3,2] row_mask:0xf bank_mask:0xf
      v_add_f32_dpp v{z}, v{z}, v{z} quad_perm:[2,3,0,1] row_mask:0xf bank_mask:0xf
      v_add_f32_dpp v{z}, v{z}, v{z} row_half_mirror row_mask:0xf bank_mask:0xf
      v_add_f32_dpp v{z}, v{z}, v{z} row_mirror row_mask:0xf bank_mask:0xf
      v_mov_b32 v{t}, v{z}
      v_permlane16_swap_b32 v{t}, v{z}
      v_add_f32 v{z}, v{z}, v{t}
      v_mul_f32 v{t}, {f2u(LOG2E)}, v{z}
      v_exp_f32 v{t+3}, v{t}
      v_exp_f32 v{t+2}, -v{t}
      v_add_f32 v{t+3}, 1.0, v{t+3}
      v_add_f32 v{t+2}, 1.0, v{t+2}
      v_min_f32 v{t+3}, {f2u(1e30)}, v{t+3}
      v_rcp_f32 v{t+2}, v{t+2}
      v_lshlrev_b32 v{voff+2}, 3, v{voff+2}
      v_and_b32 v{t}, 31, v0
      v_cmp_eq_u32 vcc, 0, v{t}
      v_add_u32 v{voff+2}, {hex(G_BASE)}, v{voff+2}
      v_cndmask_b32 v{voff+2}, -1, v{voff+2}, vcc
      buffer_store_dwordx2 {r2('v',t+2)}, v{voff+2}, s[{SRD_WS}:{SRD_WS+3}], 0 offen sc1
    """)
    return fix_hazards(o)

def signal(soff_expr_ops, s_off, vt, inc=1):
    return L(f"""
      v_lshl_add_u32 v{vt}, v0, 8, s{S_SLOW}
      v_mov_b32 v{vt+1}, {inc}
    """) + soff_expr_ops + L(f"buffer_atomic_add v{vt+1}, v{vt}, s[{SRD_DBG}:{SRD_DBG+3}], s{s_off} offen sc1")

S_SIG = 64
S_PT = 65
S_PO = 66

class Panel:
    def __init__(self, name, nnb, srd, sbase, coff, kstride, vdma, wA, units, act):
        self.name = name; self.nnb = nnb; self.srd = srd; self.sbase = sbase; self.coff = coff
        self.kstride = kstride; self.vdma = vdma; self.wA = wA; self.units = units; self.act = act
        self.done = {}
    def acc(self, nb, a): return U(self.units[nb]) + 4 * a

def c_act(a, ks): return r4("a", 16 * ks + 4 * a)
def x_act(a, ks): return r4("v", U(10 + ks) + 4 * a) if ks < 2 else r4("a", 16 * (ks - 2) + 4 * a)
Q_UNITS = [5, 6, 4, 3]
def q_reg(a, ds): return U(Q_UNITS[ds]) + 4 * a

slow_blocks = []
def poll(tag, vf, soff_ops, count, t_issue, t_check):
    ld = f"buffer_load_dword v{vf}, off, s[{SRD_DBG}:{SRD_DBG+3}], s{S_PO} sc1"
    a = soff_ops + L(ld)
    for x in a: x.earliest = t_issue
    r = I(f"v_readfirstlane_b32 s{S_PT}, v{vf}", earliest=t_check, deps=[(a[-1], t_check - t_issue)])
    a[-1].deadline = t_issue + 8
    b = Bundle(L(f"s_cmp_ge_u32 s{S_PT}, {count}", f"s_cbranch_scc0 Lpoll_{tag}", f"Lback_{tag}:"), deps=[(r, 1)])
    slow_blocks.append(L(f"""Lpoll_{tag}:
      {ld}
      s_waitcnt vmcnt(0)
      v_readfirstlane_b32 s{S_PT}, v{vf}
      s_nop 1
      s_cmp_ge_u32 s{S_PT}, {count}
      s_cbranch_scc1 Lback_{tag}
      s_branch Lpoll_{tag}"""))
    return a + [r, b]

def signal(soff_ops, vt, inc=1):
    return L(f"v_lshl_add_u32 v{vt}, v0, 8, s{S_SIG}", f"v_mov_b32 v{vt+1}, {inc}") + soff_ops + \
           L(f"buffer_atomic_add v{vt+1}, v{vt}, s[{SRD_DBG}:{SRD_DBG+3}], s{S_PO} offen sc1")

def front(tail_streams=None, qstore=False):
    SC = os.environ.get("SC", " sc1")
    K0 = Panel("K0", 4, SRD_UK, S_WB, 0, 32 * 8192, VDMA, True, [0, 1, 2, 3], c_act)
    K1 = Panel("K1", 4, SRD_UK, S_WB, 128, 32 * 8192, VDMA, True, [4, 5, 6, 7], c_act)
    V0 = Panel("V0", 4, SRD_UV, S_WB, 0, 32 * 8192, VDMA, False, [8, 10, 9, 11], c_act)
    V1 = Panel("V1", 4, SRD_UV, S_WB, 128, 32 * 8192, VDMA, False, [1, 3, 5, 7], c_act)
    Ha = Panel("Ha", 4, SRD_W1, S_W1B, 0, 32 * 9216, VDMA1, True, [0, 2, 4, 6], x_act)
    Hb = Panel("Hb", 5, SRD_W1, S_W1B, 128, 32 * 9216, VDMA1, True, [3, 7, 8, 9, 1], x_act)
    Q0 = Panel("Q0", 4, SRD_WQ, S_WB, 0, 32 * 8192, VDMA, True, [5, 2, 6, 0], x_act)
    Q1 = Panel("Q1", 4, SRD_WQ, S_WB, 128, 32 * 8192, VDMA, True, [4, 1, 3, 7], x_act)
    steps = []
    for ks in range(16): steps += [(K0, ks), (K1, ks)]
    SK = int(os.environ.get("SK", "6"))
    steps += [(V0, ks) for ks in range(SK)]
    for ks in range(16 - SK): steps += [(V1, ks), (V0, ks + SK)]
    steps += [(V1, ks) for ks in range(16 - SK, 16)]
    steps += [(Ha, ks) for ks in list(range(2, 18)) + [0, 1]]
    for P in (Hb, Q0, Q1): steps += [(P, ks) for ks in range(18)]
    T = len(steps); NF = 4
    spine = []; frags = []; S = []
    for t, (P, ks) in enumerate(steps):
        S.append(len(spine))
        for nb in range(P.nnb):
            w = r4("v", FR + 4 * (len(frags) % NF)); first = len(spine)
            for a in range(4):
                d = r4("v", P.acc(nb, a)); c = d if (nb, a) in P.done else "0"
                A, B = (w, P.act(a, ks)) if P.wA else (P.act(a, ks), w)
                spine.append(I(f"{MF} {d}, {A}, {B}, {c}")); P.done[(nb, a)] = len(spine) - 1
            frags.append((t, nb, first, len(spine) - 1))
    S.append(len(spine))
    ds = []; bars = {}; pro_ds = []; barpos = {}
    for f, (t, nb, a, b) in enumerate(frags):
        P, ks = steps[t]
        if nb == 0 and t % 2 == 0:
            wv = WAITG("w", t // 2); br = I("s_barrier"); bars[t // 2] = br
            if f >= NF:
                e = frags[f - NF][3]; barpos[t // 2] = e
                wv.earliest = br.earliest = max(0, e - 2); wv.deadline = br.deadline = e
                ds += [wv, br]
            else: pro_ds += [wv, br]; barpos[0] = 0
        for jj in range(2):
            r = FR + 4 * (f % NF) + 2 * jj
            if nb < 4:
                off = ((t % 16) >> 2) * 16384 + (t & 3) * 1024 + jj * 8192
                x = I(f"ds_read_b64_tr_b16 {r2('v', r)}, v{VTR+nb} offset:{off}")
            else:
                wq = ks & 3
                off = (wq & 1) * 24576 + (ks >> 2) * 1024 + jj * 512
                x = I(f"ds_read_b64_tr_b16 {r2('v', r)}, v{VTRX + (wq >> 1)} offset:{off}")
            if f < NF: pro_ds.append(x)
            else:
                e = frags[f - NF][3]; x.earliest = e + 2 * jj; x.deadline = e + 1 + 2 * jj
                ds.append(x)
    epi = []; hepi = []
    def pack(b0, b1, d=None):
        d = b0 if d is None else d
        return L(f"v_cvt_pk_bf16_f32 v{d}, v{b0}, v{b0+1}", f"v_cvt_pk_bf16_f32 v{d+1}, v{b0+2}, v{b0+3}",
                 f"v_cvt_pk_bf16_f32 v{d+2}, v{b1}, v{b1+1}", f"v_cvt_pk_bf16_f32 v{d+3}, v{b1+2}, v{b1+3}")
    def store4(b, sbase, off):
        hi = off & ~0x1fff
        o = []
        if hi: o += L(f"s_add_u32 s{S_ET}, s{sbase}, {hi}")
        o += L(f"buffer_store_dwordx4 {r4('v', b)}, v{VST2 if off & 0x1000 else VST}, s[{SRD_WS}:{SRD_WS+3}], s{S_ET if hi else sbase} offen offset:{off & 0xfff}{SC}")
        return o
    lastop = {}; sts = []
    SP = int(os.environ.get("SP", "26"))
    n_st = 0
    for P in (K0, K1, V0, V1):
        isK = P.name[0] == "K"; half = int(P.name[1])
        for n in range(8):
            x, y = (n >> 2, n & 3) if isK else (n & 1, n >> 1)
            tl = [(2 * x, y), (2 * x + 1, y)] if isK else [(y, 2 * x), (y, 2 * x + 1)]
            e = max(P.done[t] for t in tl) + 8
            ops = []
            if isK:
                for t in tl:
                    for r in range(4): ops += L(f"v_mul_f32 v{P.acc(*t)+r}, s{S_KSC}, v{P.acc(*t)+r}")
            d = P.acc(*tl[0]) if isK else P.acc(y & 2, n & 3)
            ops += pack(P.acc(*tl[0]), P.acc(*tl[1]), d)
            for q in ops: q.earliest = e
            epi += ops
            off = ((y >> 1) * 16384 + (y & 1) * 4096 + (2 * half + x) * 1024) if isK else (x * 16384 + 8192 + (4 * half + y) * 1024)
            st = store4(d, S_KV, off)
            te = S[32] + 24 + SP * n_st
            n_st += 1
            for q in st: q.earliest = max(e, te)
            st[-1].deps = [(ops[-1], 1)]
            sts += st
            lastop[(P.name, n)] = ops[-1]
    kv_te = te
    kv_last = sts[-1]
    hA, hB, hC, hD, hE = [], [], [], [], []
    NT = 8
    n = 0; tmp_free = {}
    gl_done = I("s_nop 0")
    first_fma = []
    for P in (Ha, Hb):
        for x in ([0, 1] if P.nnb == 4 else [2, 0, 1]):
            for a in range(4):
                tl = [(2 * x, a), (2 * x + 1, a)] if 2 * x + 1 < P.nnb else [(2 * x, a)]
                fin = []
                for t in tl:
                    e = P.done[t] + 8
                    for r in range(4):
                        v = P.acc(*t) + r; tm = VT + (n % NT)
                        m = I(f"v_mul_f32 v{tm}, s{S_NL2E}, v{v}", earliest=e)
                        if tm in tmp_free: m.deps = [(tmp_free[tm], 0)]
                        ex = I(f"v_exp_f32 v{tm}, v{tm}", earliest=e, deps=[(m, 0)])
                        fm = I(f"v_fma_f32 v{tm}, v{tm}, v{VC+2*a+1}, v{VC+2*a+1}", earliest=e, deps=[(ex, 1)])
                        rc = I(f"v_rcp_f32 v{tm}, v{tm}", earliest=e, deps=[(fm, 0)])
                        mu = I(f"v_mul_f32 v{v}, v{v}, v{tm}", earliest=e, deps=[(rc, 1)])
                        if not first_fma: first_fma.append(fm)
                        tmp_free[tm] = mu; n += 1; mu.span = 4
                        hA.append(m); hB.append(ex); hC.append(fm); hD.append(rc); hE.append(mu)
                    b = P.acc(*t); b0 = P.acc(*tl[0]); k = 2 * tl.index(t)
                    hE += [I(f"v_cvt_pk_bf16_f32 v{b0+k}, v{b}, v{b+1}", earliest=e), I(f"v_cvt_pk_bf16_f32 v{b0+k+1}, v{b+2}, v{b+3}", earliest=e)]
                b0 = P.acc(*tl[0])
                if len(tl) == 2:
                    st = store4(b0, S_HK, ((0 if P is Ha else 2) + x) * 8192 + a * 2048)
                else:
                    st = L(f"buffer_store_dwordx2 {r2('v', b0)}, v{VST2 if a >= 2 else VST}, s[{SRD_WS}:{SRD_WS+3}], s{S_HX} offen offset:{(a & 1) * 2048}{SC}")
                for q in st: q.earliest = e
                st[0].deps = [(hE[-1], 0)]; st[-1].deps = [(hE[-1], 1)]
                sts += st
    h_last = sts[-1]
    qepi = []
    for pi, P in enumerate((Q0, Q1)):
        for x in range(2):
            for a in range(4):
                e = max(P.done[(2 * x, a)], P.done[(2 * x + 1, a)]) + 8
                assert P.acc(2 * x, a) == q_reg(a, 2 * pi + x)
                ops = pack(P.acc(2 * x, a), P.acc(2 * x + 1, a))
                for q in ops: q.earliest = e
                qepi += ops
    units = []
    for G in range(T // 2):
        tm = -1 if G < 8 else barpos[G - 6]
        for t in (2 * G, 2 * G + 1):
            P, ks = steps[t]
            if P.nnb == 5 and ks % 4 == 0: units.append((tm, "x", t))
            units.append((tm, "w", t))
    rd_time = [None] + [S[4 * c - 2] for c in range(1, 8)]
    areads = []; pro_ar = []; last_rd = {}
    for c in range(8):
        ops = [WAITG("act", c)]
        for kb in range(2):
            for a in range(4):
                ops.append(I(f"ds_read_b128 {c_act(a, 2 * c + kb)}, v{VAR+kb} offset:{(c % 3) * 8192 + a * 2048}"))
        last_rd[c] = ops[-1]
        if c == 0: pro_ar = ops; continue
        for q in ops: q.earliest = rd_time[c]
        areads += ops
    for c in range(8):
        tm = -1 if c < 3 else (rd_time[c - 3] or 0) + 16
        for nn in range(8): units.append((tm + (3 * nn if tm >= 0 else 0), "a", (c, nn)))
    first = [u for u in units if u[0] < 0]; rest = sorted([u for u in units if u[0] >= 0], key=lambda u: u[0])
    W = [u for u in first if u[1] == "w"]; A = [u for u in first if u[1] == "a"]
    first = W[0:2] + A[0:8] + W[2:4] + A[8:16] + W[4:8] + A[16:24] + W[8:]
    cur = [None]
    def emit_unit(u):
        tm, kind, arg = u
        o = []; deps = []
        if kind == "w":
            t = arg; P, ks = steps[t]
            m0 = (S_WM0, ((t % 16) >> 2) * 16384); imm = (t & 3) * 1024
            so = P.coff + ks * P.kstride; sb = P.sbase; v = P.vdma; sr = P.srd; grp = ("w", t // 2)
            if t // 2 >= 8: deps = [(bars[t // 2 - 6], 0)]
        elif kind == "x":
            t = arg; P, ks = steps[t]
            m0 = (S_AM0, 16384 + (ks >> 4) * 4096); imm = ((ks >> 2) & 3) * 1024
            so = ks * P.kstride; sb = S_W1X; v = VDMAX; sr = P.srd; grp = ("w", t // 2)
        else:
            c, nn = arg
            m0 = (S_AM0, (c % 3) * 8192 + (nn >> 2) * 4096); imm = (nn & 3) * 1024
            so = 8 * nn * 1024 + (c % 3 if 'r' in os.environ.get('X', '') else c) * 128
            sb = S_CB; v = VCD + (nn & 1); sr = SRD_C; grp = ("act", c)
            if nn == 0 and c >= 3:
                o.append(WAITLGKM(last_rd[c - 3]))
                if c > 3: deps = [(last_rd[c - 3], 8)]
        if so < imm: m0 = (m0[0], m0[1] + imm); imm = 0
        if cur[0] != m0:
            o += L(f"s_add_u32 m0, s{m0[0]}, {m0[1]}"); cur[0] = m0
        o += L(f"s_add_u32 s{S_DT}, s{sb}, {so - imm}",
               f"buffer_load_dwordx4 v{v}, s[{sr}:{sr+3}], s{S_DT} offen" + (f" offset:{imm}" if imm else "") + " lds")
        o[-1].grp = grp
        for x in o: x.earliest = max(tm, 0)
        o[0].deps = deps
        return o
    pro_vm = [x for u in first for x in emit_unit(u)]
    vm = [x for u in rest for x in emit_unit(u)]
    lastd = {}
    for x in vm:
        if x.tag == "dma": lastd[x.grp] = x
    for x in ds + areads:
        if x.mn == "WAIT" and x.grp in lastd: x.deps = x.deps + [(lastd[x.grp], 64)]
    GX, GG, GO, GI = U(8), U(9), U(10), U(11)
    gl = gate_loads(GX, GG, GO, GO + 4) + ximg_loads(GI, GI + 12)
    gc = gate_compute(GX, GG, GO, GO + 8)
    misc = L(f"""s_lshl_b32 s{S_PO}, s{S_SIG}, 20
      v_lshl_add_u32 v{VT+8}, v0, 2, s{S_PO}
      v_mov_b32 v{VT+9}, 0
      s_lshl_b32 s{S_PO}, s2, 8
      s_add_u32 s{S_PO}, s{S_PO}, {hex(INBOX)}
      buffer_store_dword v{VT+9}, v{VT+8}, s[{SRD_WS}:{SRD_WS+3}], s{S_PO} offen sc1""")
    xs = ximg_stores(GI)
    for q in xs + gc: q.earliest = S[1]
    misc += xs + gc
    wv = WAITVM(gc[-1]); wv.earliest = S[14]; wv.deadline = barpos[9] - 3; wv.deps = [(gc[-1], 140)]
    misc += [wv]
    sg = signal(L(f"s_lshl_b32 s{S_PO}, s{S_J}, 2"), VT + 8); sg[-1].deps = [(bars[9], 0)]
    misc += sg
    misc += poll("g", VT + 10, L(f"s_lshl_b32 s{S_PO}, s{S_J}, 2"), 32, S[23 + SK], S[32 + SK])
    gpoll = misc[-1]
    xl = []; XSP = int(os.environ.get("XSP", "30")); te = 0
    for ks in list(range(2, 18)) + [0, 1]:
        o = L(f"s_add_u32 s{S_XS}, s{S_XB}, {(ks % 4 if 'y' in os.environ.get('X', '') else ks) * 8192}")
        for a in range(4):
            o += L(f"buffer_load_dwordx4 {x_act(a, ks)}, v{VST2 if a >= 2 else VST}, s[{SRD_WS}:{SRD_WS+3}], s{S_XS} offen offset:{(a & 1) * 2048} sc1")
        te = max(te + XSP, S[steps.index((V1, ks - 2)) + 1] if ks >= 2 else 0)
        for k, q in enumerate(o): q.earliest = te + (XSP * k) // 5
        if ks < 2: o[1].deps = [(lastop[("V0", 3 + 4 * ks)], 1)]
        u = S[steps.index((Ha, ks))]
        w = WAITVM(o[-1]); w.earliest = u - 4; w.deadline = u - 1
        areads.append(w); xl += o
    xl[0].deps = [(gpoll, 0)]
    misc += L(f"""v_and_b32 v{VT+8}, 15, v0
        v_lshlrev_b32 v{VT+8}, 3, v{VT+8}
        s_lshl_b32 s{S_PO}, s{S_BLK}, 3
        s_and_b32 s{S_PT}, s{S_W}, 1
        s_add_u32 s{S_PO}, s{S_PO}, s{S_PT}
        s_lshl_b32 s{S_PO}, s{S_PO}, 7
        s_add_u32 s{S_PO}, s{S_PO}, {hex(G_BASE)}""")
    for a in range(4): misc += L(f"buffer_load_dwordx2 {r2('v', VC + 2 * a)}, v{VT+8}, s[{SRD_WS}:{SRD_WS+3}], s{S_PO} offen offset:{256 * a} sc1")
    first_fma[0].deps.append((misc[-1], 160)); misc[-1].deadline = S[70]
    kb = min(b for b in barpos if barpos[b] - 3 >= kv_te + 190)
    wv = WAITVM(kv_last); wv.earliest = barpos[kb] - 8; wv.deadline = barpos[kb] - 3; wv.deps = [(kv_last, 170)]
    sg = signal(L(f"s_lshl_b32 s{S_PO}, s{S_H}, 2", f"s_add_u32 s{S_PO}, s{S_PO}, {DBG_KV}"), VT + 8); sg[-1].deps = [(bars[kb], 0)]
    misc += [wv] + sg
    PT = [int(v) for v in os.environ.get("PT", "0,15,17").split(",")]
    H64 = "6" in os.environ.get("X", "")
    a, b2 = 44, 45
    def touch(sr, so, off=0, dup=True):
        o = L(f"buffer_load_dword v{VPF}, v{a}, s[{sr}:{sr+3}], s{so} offen" + (f" offset:{off}" if off else ""))
        if H64 and dup: o += L(f"buffer_load_dword v{VPF}, v{a}, s[{sr}:{sr+3}], s{so} offen offset:{off + 64}")
        for x in o: x.wr = []
        return o
    t1 = L(f"""s_lshl_b32 s{S_T0}, s{S_J}, 2
      s_add_u32 s{S_T0}, s{S_T0}, s{S_W}
      s_lshl_b32 s{S_T1}, s{S_T0}, 17
      s_add_u32 s{S_T1}, s{S_T1}, s{S_WB}
      v_lshrrev_b32 v{a}, 2, v0
      v_and_b32 v{b2}, 3, v0
      v_lshlrev_b32 v{b2}, 6, v{b2}
      v_lshl_add_u32 v{a}, v{a}, 13, v{b2}""") + touch(SRD_UV, S_T1, dup=False)
    EC = os.environ.get("EC", "m1")
    t0 = L(*[x.text for x in t1[:-1]]) + touch(SRD_UK, S_T1, dup=False)
    if EC[0] == "m":
        t0 += L(f"""s_lshl_b32 s{S_T1}, s2, 2
          s_add_u32 s{S_T1}, s{S_T1}, s{S_W}
          s_lshl_b32 s{S_T1}, s{S_T1}, 11
          v_lshlrev_b32 v{a}, 5, v0""") + touch(SRD_C, S_T1, dup=False)
    elif EC[0] == "l":
        t0 += L(f"""s_lshr_b32 s{S_T1}, s{S_H}, 3
          s_lshl_b32 s{S_T1}, s{S_T1}, 14
          s_add_u32 s{S_T1}, s{S_T1}, s{S_CB}
          v_lshlrev_b32 v{a}, 7, v0""") + touch(SRD_C, S_T1, dup=False) + L(f"s_add_u32 s{S_T1}, s{S_T1}, 8192") + touch(SRD_C, S_T1, dup=False)
    else: t0 = []
    t3 = L(f"""s_lshr_b32 s{S_T2}, s{S_H}, 3
      s_lshl_b32 s{S_T2}, s{S_T2}, 5
      s_add_u32 s{S_T2}, s{S_T2}, s{S_T0}
      s_mul_i32 s{S_T2}, s{S_T2}, 9
      s_lshr_b32 s{S_T2}, s{S_T2}, 1
      s_mul_i32 s{S_T2}, s{S_T2}, 9216
      s_and_b32 s{S_T1}, s{S_H}, 7
      s_mul_i32 s{S_T1}, s{S_T1}, 1152
      s_add_u32 s{S_T1}, s{S_T1}, s{S_T2}
      v_min_u32 v{a}, 44, v0
      v_mul_u32_u24 v{b2}, 57, v{a}
      v_lshrrev_b32 v{b2}, 9, v{b2}
      v_mul_u32_u24 v{b2}, 8064, v{b2}
      v_lshl_add_u32 v{a}, v{a}, 7, v{b2}""") + touch(SRD_W1, S_T1)
    t4 = L(f"""s_mul_i32 s{S_T1}, s{S_T0}, {18 * 8192}
      s_add_u32 s{S_T1}, s{S_T1}, s{S_WB}
      v_min_u32 v{a}, 35, v0
      v_and_b32 v{b2}, 1, v{a}
      v_lshrrev_b32 v{a}, 1, v{a}
      v_lshlrev_b32 v{b2}, 7, v{b2}
      v_lshl_add_u32 v{a}, v{a}, 13, v{b2}""") + touch(SRD_WQ, S_T1)
    pf = []
    for t, e in ((t1, S[PT[0]]), (t3, S[PT[1]]), (t4, S[PT[2]])):
        for x in t: x.earliest = e
        pf += t
    if "p" in os.environ.get("X", ""): pf = []
    ctx = dict(S=S, bars=bars, barpos=barpos, steps=steps, misc=misc, vm=vm, cur=cur, qepi=qepi, h_last=h_last, spine=spine)
    extra = tail_streams(ctx) if tail_streams else []
    for x in vm + sts + xl: x.maxlag = 6
    streams = [ds, areads, vm, xl, pf, misc, sts, epi, hD, hB, hE, hC, hA, qepi] + extra
    main = schedule(spine, streams, verbose="front", nprio=2)
    last = max(i for i, x in enumerate(main) if x.kind == "mfma")
    body, tl = main[:last + 1], main[last + 1:]
    fixed = fix_hazards(body[-14:] + tl)
    assert fixed[:14] == body[-14:]
    main = body + fixed[14:]
    X = os.environ.get("X", "")
    if "s" in X: main = [x for x in main if not x.mn.startswith("buffer_store_dwordx4")]
    if "f" in X: main = [x for x in main if not (x.mn.startswith("buffer_atomic") or x.mn == "buffer_load_dword" or "Lpoll" in x.text)]
    if "x" in X: main = [x for x in main if not (x.tag == "dma" and f"s[{SRD_X}:" in x.text)]
    if PROF:
        mf = [i for i, x in enumerate(main) if x.kind == "mfma"]
        for q, t in reversed(list(enumerate((16, 32, 48, 64, 82, 100, 118)))): main[mf[S[t]]:mf[S[t]]] = stamp(3 + q)
    sig = L(f"s_cmp_lg_u32 s{S_W}, 0", f"s_cselect_b32 s{S_SIG}, 256, 0", f"s_add_u32 s{S_SIG}, s{S_SIG}, s{S_SLOW}")
    dm = [i for i, x in enumerate(pro_vm) if x.tag == "dma"]
    e0 = 0 if EC[1] == "0" else dm[9] + 1
    pro = fix_hazards(setup()) + pro_vm[:e0] + fix_hazards(t0) + pro_vm[e0:45] + stamp(1) + fix_hazards(gl) + pro_vm[45:] + fix_hazards(setup2() + sig) + pro_ar + pro_ds + stamp(2)
    return pro, main

def entry(exit_label):
    return fix_hazards(L(f"""
      s_cmp_ge_u32 s2, 256
      s_cbranch_scc1 {exit_label}
      v_lshrrev_b32 v1, 6, v0
      v_and_b32 v0, 63, v0
      v_readfirstlane_b32 s{S_W}, v1
      s_mov_b32 s{S_SLOW}, 0
    """) + (L(f"""
      s_getpc_b64 s[{S_T2}:{S_T3}]
      Lpc0:
      s_lshr_b32 s{S_T0}, s2, 1
      s_and_b32 s{S_T0}, s{S_T0}, 12
      s_add_u32 s{S_T0}, s{S_T0}, s{S_W}
      s_lshl_b32 s{S_T0}, s{S_T0}, 13
      v_lshl_add_u32 v1, v0, 7, s{S_T0}
      v_min_u32 v1, Lend-Lpc0-4, v1
      global_load_dword v{VPF}, v1, s[{S_T2}:{S_T3}]
    """) if "c" not in os.environ.get("X", "") else []) + L("Lstart:"))

def k1():
    K = Kernel("k1_kernel", 256, 163840)
    pro, main = front()
    K.add("pro", stamp(0) + entry("Lexit1") + pro)
    K.add("main", main + stamp(10) + prof_out(0, 11) + L("Lexit1:", "s_endpgm"))
    K.paths = [["pro", "main"]]
    K.add("slow", [i for b in slow_blocks for i in b])
    K.finish()
    return K
```

```python
from front import *

SRD_OUT = 16
S_WS, S_AB, S_AT, S_M0 = 44, 45, 46, 47
S_P0 = 50
S_IB = 54
S_RB, S_OB = 55, 56
ACC, WF, VD, VA = 64, 208, 1, 32
VF = 245
VHP = 38
NF = 6
STG = [4, 4, 4, 4, 2, 4, 4, 4, 4]
SLOT = 36864
PSLOT = [16384, 16384 + 3 * SLOT, 16384 + SLOT, 16384 + 2 * SLOT]
ARING = [212, 228, 176, 192, 144, 160] + [16 * i for i in range(8)]
def acc(mt, a): return ACC + 16 * mt + 4 * a
def bact(ks, a): return r4("a", ARING[ks % len(ARING)] + 4 * a)

def flag_addr(v, lane_shift, nl, word_ops):
    return L(f"""v_cmp_gt_u32 vcc, {nl}, v0
      v_lshlrev_b32 v{v}, {lane_shift}, v0
      v_mov_b32 v{v+1}, 1
      v_cndmask_b32 v{v}, -1, v{v}, vcc""")

def sig_group(word):
    o = L(f"""s_and_b32 s{S_PO}, s2, 0xe7
      s_lshl_b32 s{S_PO}, s{S_PO}, 6
      s_lshr_b32 s{S_PT}, s{S_H}, 3
      s_add_u32 s{S_PO}, s{S_PO}, s{S_PT}
      s_lshl_b32 s{S_PO}, s{S_PO}, 2
      s_add_u32 s{S_PO}, s{S_PO}, {hex(INBOX + 4 * word)}
      s_lshl_b32 s{S_PT}, s{S_SIG}, 20
      s_add_u32 s{S_PO}, s{S_PO}, s{S_PT}""")
    return o
def sig_store(v): return I(f"buffer_store_dword v{v+1}, v{v}, s[{SRD_WS}:{SRD_WS+3}], s{S_PO} offen sc1")

def poll2(tag, v, word, nw, t_issue=0, t_check=0):
    ld = f"buffer_load_dword v{v+1}, v{v}, s[{SRD_WS}:{SRD_WS+3}], s{S_IB} offen offset:{4 * word} sc1"
    a = L(f"v_and_b32 v{v}, {nw - 1}, v0", f"v_lshlrev_b32 v{v}, 2, v{v}", ld)
    for x in a: x.earliest = t_issue
    a[-1].deadline = t_issue + 8
    b = Bundle(L(f"v_cmp_ne_u32 vcc, 1, v{v+1}", "s_nop 4", f"s_cbranch_vccnz Lpoll_{tag}", f"Lback_{tag}:"), earliest=t_check)
    slow_blocks.append(L(f"""Lpoll_{tag}:
      {ld}
      s_waitcnt vmcnt(0)
      v_cmp_ne_u32 vcc, 1, v{v+1}
      s_nop 4
      s_cbranch_vccz Lback_{tag}
      s_branch Lpoll_{tag}"""))
    return a, b

def p4_setup():
    t = VHP
    o = L(f"""s_lshl_b32 s{S_IB}, s2, 8
      s_add_u32 s{S_IB}, s{S_IB}, {hex(INBOX)}
      s_mul_i32 s{S_M0}, s{S_W}, 9216
      s_lshr_b32 s{S_AT}, s{S_H}, 3
      s_lshl_b32 s{S_AB}, s{S_AT}, 15
      s_sub_u32 s{S_AB}, s{S_ACT}, s{S_AB}
      s_sub_u32 s{S_AB}, s{S_AB}, {18 * 8192}
      s_mul_i32 s{S_AT}, s{S_AT}, 288
      s_and_b32 s{S_WS}, s{S_H}, 7
      s_mul_i32 s{S_WS}, s{S_WS}, 18
      s_add_u32 s{S_WS}, s{S_WS}, s{S_W}
      s_mul_i32 s{S_WS}, s{S_WS}, {32 * 1152}
      s_add_u32 s{S_WS}, s{S_WS}, s{S_AT}""")
    o += L(f"s_movk_i32 s{S_AT}, 864", f"v_mul_u32_u24 v{t+1}, 3641, v0")
    for n in range(9):
        if n: o += L(f"v_add_u32 v{t+1}, {64 * 3641}, v{t+1}")
        o += L(f"v_lshrrev_b32 v{t}, 16, v{t+1}", f"v_mad_u32_u24 v{VD+n}, v{t}, s{S_AT}, v{VST2 if n >= 4 else VST}")
    o += L(f"v_add_u32 v{VD+8}, 4096, v{VD+8}")
    o += L(f"""v_lshrrev_b32 v{t}, 2, v0
      v_mul_u32_u24 v{t}, 288, v{t}
      v_and_b32 v{t+1}, 3, v0
      v_lshl_add_u32 v{t}, v{t+1}, 3, v{t}""")
    for s in range(4): o += L(f"v_add_u32 v{VA+s}, {PSLOT[s]}, v{t}")
    return o

def wdma(s):
    o = []
    if s == 5: o += L(f"""s_and_b32 s{S_DT}, s{S_H}, 7
          s_mul_i32 s{S_DT}, s{S_DT}, {(18 - 4) * 32 * 1152}
          s_sub_u32 s{S_WS}, s{S_WS}, s{S_DT}
          s_sub_u32 s{S_WS}, s{S_WS}, {4 * 128 * 1152}""")
    elif s: o += L(f"s_add_u32 s{S_WS}, s{S_WS}, {(128 if s < 5 else 1024) * 1152}")
    sr = SRD_W2 if s < 5 else SRD_WO
    for n in range(9):
        if n % 4 == 0: o += L(f"s_add_u32 m0, s{S_M0}, {PSLOT[s % 4] + 1024 * n}")
        x = I(f"buffer_load_dwordx4 v{VD+n}, s[{sr}:{sr+3}], s{S_WS} offen" + (f" offset:{1024 * (n & 3)}" if n & 3 else "") + " lds"); x.grp = ("w", s)
        if n % 4 == 0: x.deps = [(o[-1], 1)]
        o.append(x)
    return o
def aload(ks):
    o = L(f"s_add_u32 s{S_AT}, s{S_AB}, {ks * 8192}")
    for a in range(4):
        o += L(f"buffer_load_dwordx4 {bact(ks, a)}, v{VST2 if a >= 2 else VST}, s[{SRD_WS}:{SRD_WS+3}], s{S_AT} offen offset:{(a & 1) * 2048} sc1"); o[-1].grp = ("a", ks)
    return o
```

```python
from p4base import *

VK, VV = 18, 19
VBAD, VGL = 43, 44
VNL, VLS = 10, 14
VX = 46
SB = [[U(2), U(0)], [U(8), U(9)]]
PB = [U(1), U(7)]
NEGM, MK = U(10), U(11)
A_L, A_K, A_V, A_ONE = 128, 144, 176, 208
def a_o(db, a): return 16 * db + 4 * a
S_DM0, S_DSO, S_CNT, S_ACT2, S_EO = 67, 68, 69, 7, 49
RING_A, RING_B, STASH = 0x10000, 0, 0x20000
LSUM = 0x10000 + 3 * 16384 + 4096
ALL = [0, 1, 2, 3]

class Per:
    def __init__(self, ph, qk=ALL, mask=None, pv=ALL, first=False, dma=(1, 1), dph=None, kph=None, vph=None, kread=True, vread=True,
                 amajor=None, vregs=A_V, bar=True, kregs=A_K, pad=0, early=False):
        self.ph = ph
        self.qk = qk; self.mask = mask; self.pv = pv; self.first = first
        self.dma = dma
        self.dph = ph if dph is None else dph
        self.kph = (ph + 1) % 4 if kph is None else kph
        self.vph = ph if vph is None else vph
        self.kread = kread; self.vread = vread; self.amajor = amajor; self.vregs = vregs; self.bar = bar
        self.kregs = kregs; self.pad = pad; self.early = early

NSPLIT = 5
def seq(name, pers, par0, carry_in=True, carry_out=True, extra=None, tail=None, tail_ok=False):
    spine = []; info = []
    for n, P in enumerate(pers):
        par = (par0 + n) & 1
        d = dict(start=len(spine), sdone={}, odone={}, vlast={}, klast={})
        order = [(kvb, ds) for kvb in range(2) for ds in range(4)] if len(P.qk) > 1 else [(kvb, ds) for ds in range(4) for kvb in range(2)]
        for kvb, ds in order:
            for a in P.qk:
                D = r4("v", SB[par][kvb] + 4 * a)
                C = D if ds else (r4("v", MK + 8 + 4 * kvb) if a == P.mask else r4("v", NEGM + 4 * a))
                spine.append(I(f"{MF} {D}, {r4('a', P.kregs + 16 * kvb + 4 * ds)}, {r4('v', q_reg(a, ds))}, {C}"))
                d["sdone"][(kvb, a)] = len(spine) - 1
        d["qkend"] = len(spine)
        spine += [None] * P.pad
        d["mid"] = len(spine)
        pp = PB[par ^ 1]
        def summ(a):
            D = r4("a", A_L + 4 * a)
            spine.append(I(f"{MF} {D}, {r4('a', A_ONE)}, {r4('v', pp + 4 * a)}, {'0' if P.first else D}"))
        def pv(db, a):
            D = r4("a", a_o(db, a))
            spine.append(I(f"{MF} {D}, {r4('a', P.vregs + 4 * db)}, {r4('v', pp + 4 * a)}, {'0' if P.first else D}"))
            d["odone"][a] = len(spine) - 1; d["vlast"][db] = len(spine) - 1
        if P.amajor:
            for a in P.amajor:
                summ(a)
                for db in range(8): pv(db, a)
        else:
            for a in P.pv: summ(a)
            for db in range(8):
                for a in P.pv: pv(db, a)
        d["end"] = len(spine)
        info.append(d)
    ds = []; vm = []; ex = []; cv = []; mk = []
    def softmax(par, tiles, done, dl=None):
        for (kvb, a) in tiles:
            e = done(kvb, a); b = SB[par][kvb] + 4 * a
            es = [I(f"v_exp_f32 v{b+r}, v{b+r}", earliest=e) for r in range(4)]
            ex.extend(es)
            for k in range(2):
                c = I(f"v_cvt_pk_bf16_f32 v{PB[par] + 4 * a + 2 * kvb + k}, v{b+2*k}, v{b+2*k+1}", earliest=e, deps=[(es[2 * k + 1], 1)])
                if dl is not None: c.deadline = dl
                cv.append(c)
    full = [(kvb, a) for kvb in range(2) for a in ALL]
    if carry_in: softmax(par0 ^ 1, full[NSPLIT:], lambda k, a: 0)
    bars = []
    for n, P in enumerate(pers):
        d = info[n]; par = (par0 + n) & 1
        if P.mask is not None and n > 0:
            e = max(d["start"] - 12, info[n - 1]["qkend"] - 4)
            for kvb in range(2):
                for r in range(4):
                    mk.append(I(f"v_add_f32 v{MK + 8 + 4 * kvb + r}, v{MK + 4 * kvb + r}, v{NEGM + 4 * P.mask}", earliest=e))
            d["mk"] = mk[-8:]
        lastv = None
        if P.vread and (P.pv or P.amajor):
            nq = d["mid"] - d["start"]
            for db in range(8):
                x = I(f"ds_read_b128 {r4('a', P.vregs + 4 * db)}, v{VV} offset:{P.vph * 16384 + db * 1024}")
                if P.vregs == A_V:
                    x.earliest = d["start"] + (db * max(nq - 10, 0)) // 10
                    if n and db in info[n - 1]["vlast"] and nq < 24: x.earliest = max(info[n - 1]["vlast"][db], info[n - 1]["klastpos"] + 1)
                else: x.earliest = info[n - 1]["mid"] + 2 * db
                ds.append(x); lastv = x; d.setdefault("vreads", []).append(x)
        if P.bar:
            e = d["mid"] - 1 if not P.early else d["start"] + 6
            w = [WAITG("kv", n + 1), I("s_barrier")]
            if lastv is not None: w.insert(0, WAITLGKM(lastv))
            if P.early: w.insert(0, I("s_waitcnt lgkmcnt(0)"))
            for x in w: x.earliest = max(e - 1, d["start"]); x.deadline = max(e, d["start"])
            ds += w; d["bar"] = w[-1]; d["barwait"] = w[0]
        d["klastpos"] = d["mid"]
        if P.kread:
            npv = d["end"] - d["mid"]
            for f in range(8):
                kvb, dsi = (f >> 2, f & 3) if (n + 1 >= len(pers) or len(pers[n + 1].qk) > 1) else (f & 1, f >> 1)
                kr = pers[n + 1].kregs if n + 1 < len(pers) else A_K
                x = I(f"ds_read_b128 {r4('a', kr + 16 * kvb + 4 * dsi)}, v{VK} offset:{P.kph * 16384 + 8192 + (4 * kvb + dsi) * 1024}")
                x.earliest = d["mid"] - 1 + (f * max(npv - 12, 0)) // 10 if not P.early else d["start"] + 7 + 2 * f
                d.setdefault("kreads", []).append(x)
                ds.append(x); d["klastpos"] = x.earliest
        def dmas(slot, h, goff, e0, span, dep):
            o = L(f"s_add_u32 m0, s{S_DM0}, {slot * 16384 + 4096 * h}")
            for k in range(4):
                x = I(f"buffer_load_dwordx4 v{VST}, s[{SRD_WS}:{SRD_WS+3}], s{S_DSO} offen offset:{1024 * k} sc1 lds"); x.grp = ("kv", goff)
                x.earliest = e0 + (k * span) // 4; x.maxlag = 4
                o.append(x)
            o += L(f"s_add_u32 s{S_DSO}, s{S_DSO}, {12288 if h else 4096}")
            o[0].earliest = e0; o[0].deps = [dep] if dep else []; o[1].deps = [(o[0], 1)]
            return o
        if P.dma[0]:
            o = dmas((P.dph + 3) % 4, 1, n + 3, d["start"], d["mid"] - d["start"] - 4, None)
            o[-2].deadline = d["end"] - 1
            vm += o
        if P.dma[1]:
            e0 = d["mid"] if not P.early else d["start"] + 8
            o = dmas(P.dph, 0, n + 4, e0, d["end"] - e0 - 4, (d["bar"], 0))
            o[-2].deadline = o[-1].deadline = d["end"] - 1
            vm += o
        tiles = [(kvb, a) for kvb in range(2) for a in P.qk]
        last = n == len(pers) - 1
        if last and carry_out:
            assert P.qk == ALL
            softmax(par, tiles[:NSPLIT], lambda k, a: d["sdone"][(k, a)] + 8, dl=d["end"] - 1)
        else:
            nx = pers[n + 1] if not last else None
            if nx is not None and nx.amajor: tiles = [(kvb, a) for kvb in range(2) for a in nx.amajor]
            softmax(par, tiles, lambda k, a: d["sdone"][(k, a)] + SLAG(P))
    xs = extra(info) if extra else []
    st = [ds, vm, mk, ex, cv] + xs
    if tail:
        tail.earliest = tail.deadline = len(spine) - 1
        st.append([tail])
    out = schedule(spine, st, verbose=name, tail_ok=tail_ok)
    out = fix_hazards(out)
    tk = [TICK("kv", len(pers))]
    if tail: return out[:-1] + tk + out[-1:]
    return out + tk

def SLAG(P): return 8 if len(P.qk) >= 3 else 4

A_K2 = 212
EG = [FR, FR + 8]
VL = 40
def store_ctx(b, sbase, ds, a):
    o = []
    if ds: o += L(f"s_add_u32 s{S_EO}, s{sbase}, {ds * 8192}")
    o += L(f"buffer_store_dwordx4 {r4('v', b)}, v{VST2 if a >= 2 else VST}, s[{SRD_WS}:{SRD_WS+3}], s{S_EO if ds else sbase} offen offset:{(a & 1) * 2048} sc1")
    CTX_LAST.append(o[-1])
    return o
CTX_LAST = []
def p4_pro(tag, t_poll, bar0, t_v, t_k):
    ha, hb = poll2(tag, VHP, 0, 4, t_poll, t_poll + 64)
    o = ha + [hb] + aload(0) + aload(1)
    w = wdma(0); w[0].deps = [(bar0, 0)]
    o += w
    for k in (2, 3, 4, 5):
        x = aload(k); x[1].earliest = t_v if k < 4 else t_k
        o += x
    return o
def scale_ops(vl, vg):
    return L(f"""v_subrev_u32 v{vl+1}, 0x1f800000, v{vl}
      v_rcp_f32 v{vl}, v{vl}
      v_max_u32 v{VBAD}, v{VBAD}, v{vl+1}
      v_mul_f32 v{vl}, v{vl}, v{vg}""")
egc = [0]
def epi_own(a, e):
    o = L(f"v_accvgpr_read_b32 v{VL}, a{A_L + 4 * a}") + scale_ops(VL, VC + 2 * a)
    for ds in range(4):
        t = EG[egc[0] & 1]; egc[0] += 1
        for k in range(2):
            for r in range(4): o += L(f"v_accvgpr_read_b32 v{t+4*k+r}, a{a_o(2*ds+k, a)+r}")
            for r in range(4): o += L(f"v_mul_f32 v{t+4*k+r}, v{VL}, v{t+4*k+r}")
            o += L(f"v_cvt_pk_bf16_f32 v{t+2*k}, v{t+4*k}, v{t+4*k+1}", f"v_cvt_pk_bf16_f32 v{t+2*k+1}, v{t+4*k+2}, v{t+4*k+3}")
        st = store_ctx(t, S_ACT, ds, a); st[-1].maxlag = 2
        o += st
    for x in o: x.earliest = e
    return o

HL = []
def front_tail(ctx):
    S, misc, vm, bars, barpos = ctx["S"], ctx["misc"], ctx["vm"], ctx["bars"], ctx["barpos"]
    HL.append(ctx["h_last"])
    pl = poll("kv", VT + 10, L(f"s_lshl_b32 s{S_PO}, s{S_H}, 2", f"s_add_u32 s{S_PO}, s{S_PO}, {DBG_KV}"), 8, S[106], S[116])
    misc += pl
    su = L(f"""s_mul_i32 s{S_DSO}, s{S_H}, {hex(KV_HEAD)}
      s_add_u32 s{S_DSO}, s{S_DSO}, {hex(KV_BASE - 8192)}
      s_add_u32 s{S_CNT}, s{S_DSO}, s{S_WM0}""")
    misc += su
    o = []
    for sl in range(4):
        u = L(f"s_add_u32 m0, s{S_WM0}, {RING_A + sl * 16384}", f"s_add_u32 s{S_DT}, s{S_CNT}, {sl * 16384}")
        for k in range(4):
            x = I(f"buffer_load_dwordx4 v{VST}, s[{SRD_WS}:{SRD_WS+3}], s{S_DT} offen offset:{1024 * k} sc1 lds"); x.grp = ("kv", sl); u.append(x)
        o += u
    o[0].deps = [(su[-1], 0)]
    for x in o: x.earliest = S[123]
    assert vm[-1].earliest < S[123] + 16
    vm += o; ctx["cur"][0] = None
    su2 = L(f"""s_and_b32 s{S_PT}, s{S_W}, 1
      s_lshl_b32 s{S_PT}, s{S_PT}, 13
      s_add_u32 s{S_DSO}, s{S_DSO}, s{S_PT}""")
    su2 += [Bundle(L(f"s_cmp_lt_u32 s{S_W}, 2", f"s_cselect_b32 s{S_DM0}, {RING_A}, {RING_B}", f"s_cselect_b32 s{S_PO}, 4, 34"))]
    su2 += L(f"""s_lshl_b32 s{S_PO}, s{S_PO}, 14
      s_add_u32 s{S_DM0}, s{S_DM0}, s{S_PT}
      s_add_u32 s{S_DSO}, s{S_DSO}, s{S_PO}
      s_lshl_b32 s{S_PO}, s{S_J}, 1
      s_sub_u32 s{S_PO}, 15, s{S_PO}
      s_mul_i32 s{S_PO}, s{S_PO}, {hex(ACT_RB)}
      s_add_u32 s{S_ACT2}, s{S_ACT}, s{S_PO}
      v_add_u32 v{VK}, {RING_A}, v{VST}
      v_add_u32 v{VV}, {RING_A}, v{VST}
      v_mov_b32 v{VBAD}, 0
      s_lshl_b32 s{S_PT}, s{S_PT}, 1
      v_add_u32 v{VX}, s{S_PT}, v{VST}
      s_lshr_b32 s{S_PT}, s{S_PT}, 4
      s_add_u32 s{S_PT}, s{S_PT}, {LSUM}
      v_add_u32 v{VLS}, s{S_PT}, v{VST}""")
    misc += su2
    t = VT + 8
    mk = L(f"""v_and_b32 v{t}, 15, v0
      v_lshrrev_b32 v{t+1}, 4, v0
      v_lshlrev_b32 v{t+1}, 2, v{t+1}
      v_sub_u32 v{t}, v{t}, v{t+1}
      s_and_b32 s{S_PT}, s{S_W}, 1
      s_lshl_b32 s{S_PT}, s{S_PT}, 4
      v_add_u32 v{t}, s{S_PT}, v{t}
      v_mov_b32 v{t+1}, 0xff800000""")
    for kvb in range(2):
        for r in range(4):
            mk += [Bundle(L(f"v_cmp_le_i32 vcc, {16 * kvb + r}, v{t}", "s_nop 1", f"v_cndmask_b32 v{MK + 4 * kvb + r}, v{t+1}, 0, vcc".replace(", 0, vcc", f", v{VBAD}, vcc")))]
    for x in mk: x.earliest = S[121]
    misc += mk
    ng = L(*[f"v_mov_b32 v{NEGM + r}, 0" for r in range(16)]) + L(*[f"v_mov_b32 v{VNL + r}, 0" for r in range(4)])
    ng += L(*[f"v_mov_b32 v{MK + 8 + r}, v{MK + r}" for r in range(8)])
    for x in ng: x.earliest = S[121]
    misc += ng
    w = [WAITG("kv", 0), I("s_barrier")]
    w[0].deps = [(o[5], 100)]
    for f in range(8): w.append(I(f"ds_read_b128 {r4('a', A_K + 4 * f)}, v{VK} offset:{8192 + f * 1024}"))
    for x in w: x.earliest = S[134] + 4
    w[2].deps = [(su2[-1], 1)]
    pz = pz_setup()
    for x in pz: x.earliest = S[40]
    return [w, pz]

def ones():
    return L(f"v_mov_b32 v{VT}, 0x3f803f80") + L(*[f"v_accvgpr_write_b32 a{A_ONE + r}, v{VT}" for r in range(4)])

def head(isL):
    D = (1, 1) if isL else (0, 0)
    pers = [Per(0, pv=[], dma=(0, D[1]), early=True), Per(1, first=True, dma=D, kregs=A_K2), Per(2, dma=D), Per(3, dma=D)]
    def extra(info):
        xs = [ones()]
        info[3]["barwait"].waitfor.append(HL[0])
        if isL:
            sg = sig_group(0) + [Bundle(flag_addr(VL, 11, 4, None))] + [sig_store(VL)]
            sg[-1].deps = [(info[3]["bar"], 0)]
            xs.append(sg)
            st = [I(f"ds_write_b128 v{VX+1}, {r4('v', q_reg(a, ds))} offset:{(4 * a + ds) * 1024}") for a in range(4) for ds in range(4)]
            st = L(f"v_add_u32 v{VX+1}, {STASH}, v{VX}") + st
            st[1].deps = [(info[0]["bar"], 0)]
            info[1]["barwait"].waitfor.append(st[-1]); info[1]["barwait"].deps.append((st[-1], 2))
            xs.append(st)
        if not isL:
            pf = L(f"""s_lshl_b32 s{S_PO}, s{S_J}, 1
              s_add_u32 s{S_PO}, s{S_PO}, s{S_W}
              s_sub_u32 s{S_PO}, s{S_PO}, 4
              s_mul_i32 s{S_PT}, s{S_H}, 18
              s_add_u32 s{S_PT}, s{S_PT}, s{S_PO}
              s_lshl_b32 s{S_PT}, s{S_PT}, 13
              v_lshlrev_b32 v{VL}, 7, v0
              buffer_load_dword v{VL+1}, v{VL}, s[{SRD_WO}:{SRD_WO+3}], s{S_PT} offen
              s_add_u32 s{S_PT}, s{S_PT}, {4 * 8192}
              buffer_load_dword v{VL+1}, v{VL}, s[{SRD_WO}:{SRD_WO+3}], s{S_PT} offen
              s_lshl_b32 s{S_PO}, s{S_PO}, 2
              s_lshr_b32 s{S_PT}, s{S_H}, 3
              s_add_u32 s{S_PO}, s{S_PO}, s{S_PT}
              s_and_b32 s{S_PT}, s{S_H}, 7
              s_mul_i32 s{S_PT}, s{S_PT}, 81
              s_add_u32 s{S_PT}, s{S_PT}, s{S_PO}
              s_lshl_b32 s{S_PT}, s{S_PT}, 13
              buffer_load_dword v{VL+1}, v{VL}, s[{SRD_W2}:{SRD_W2+3}], s{S_PT} offen
              s_add_u32 s{S_PT}, s{S_PT}, {25 * 8192}
              buffer_load_dword v{VL+1}, v{VL}, s[{SRD_W2}:{SRD_W2+3}], s{S_PT} offen""")
            ld = [x for x in pf if x.kind == "vmem"]
            for x in ld[:-1]: x.wr = []
            ld[0].deps = [(info[2]["bar"], 0)]
            if "w" not in os.environ.get("X", ""): xs.append(pf)
        cnt = L(f"s_mov_b32 s{S_CNT}, 7") if isL else L(f"s_sub_u32 s{S_CNT}, s{S_J}, 1")
        xs.append(cnt); xs.append(p4_setup())
        return xs
    return seq("head" + "SL"[isL], pers, 0, carry_in=False, extra=extra)

def loop(dma, label):
    D = (1, 1) if dma else (0, 0)
    pers = [Per(i, dma=D) for i in range(4)]
    tail = Bundle(L(f"s_cmp_lg_u32 s{S_CNT}, 0", f"s_cbranch_scc1 {label}"))
    def extra(info):
        pz = [I(f"buffer_store_dwordx4 {r4('a', A_Z)}, v{VPZ}, s[{SRD_PZ}:{SRD_PZ+3}], 0 offen offset:{1024 * k} sc1", earliest=info[k]["mid"] + 10) for k in range(4)]
        PZ.extend(pz)
        return [L(f"s_sub_u32 s{S_CNT}, s{S_CNT}, 1"), pz + [I(f"v_add_u32 v{VPZ}, 0x1000, v{VPZ}", deadline=info[3]["end"] - 2)]]
    out = seq("loop" + "ND"[dma], pers, 0, extra=extra, tail=tail)
    return L(label + ":") + out

def gl_load():
    return L(f"""v_and_b32 v{VL+2}, 15, v0
        v_lshlrev_b32 v{VL+2}, 3, v{VL+2}
        s_sub_u32 s{S_PO}, 15, s{S_J}
        s_lshl_b32 s{S_PO}, s{S_PO}, 3
        s_and_b32 s{S_PT}, s{S_W}, 1
        s_add_u32 s{S_PO}, s{S_PO}, s{S_PT}
        s_lshl_b32 s{S_PO}, s{S_PO}, 7
        s_add_u32 s{S_PO}, s{S_PO}, {hex(G_BASE)}
        buffer_load_dword v{VGL}, v{VL+2}, s[{SRD_WS}:{SRD_WS+3}], s{S_PO} offen offset:512 sc1
        buffer_load_dword v{VGL+1}, v{VL+2}, s[{SRD_WS}:{SRD_WS+3}], s{S_PO} offen offset:768 sc1""")

def switch(j0):
    p0 = Per(0, mask=0, dma=(0, 1), dph=2) if not j0 else Per(0, mask=0, pv=[], dma=(0, 1), dph=2, early=True)
    pers = [p0,
            Per(1, qk=[1, 2, 3], mask=1, dph=3, pad=8, first=j0, kregs=A_K2 if j0 else A_K),
            Per(2, qk=[2, 3], mask=2, pv=[1, 2, 3], dph=0, pad=16),
            Per(3, qk=[3], mask=3, pv=[2, 3], dph=1, kph=2, pad=32),
            Per(2, pv=[3], vph=0, pad=18),
            Per(3, first=True, amajor=[0, 1, 2, 3], pad=26)]
    def extra(info):
        ep = []
        for a in range(4): ep += epi_own(a, info[a + 1]["odone"][a] + 8)
        q = L(f"v_add_u32 v{VX+1}, {STASH}, v{VX}")
        for a in range(4):
            for ds in range(4):
                q.append(I(f"ds_read_b128 {r4('v', q_reg(a, ds))}, v{VX+1} offset:{(4 * a + ds) * 1024}", earliest=max(info[a]["qkend"], info[2]["mid"])))
        sw = [I(f"v_add_u32 v{VK}, {RING_B - RING_A}, v{VK}", deps=[(info[2]["kreads"][-1], 0)]),
              I(f"v_add_u32 v{VV}, {RING_B - RING_A}, v{VV}", deps=[(info[4]["vreads"][-1], 0)])]
        info[3]["kreads"][0].deps.append((sw[0], 1)); info[5]["vreads"][0].deps.append((sw[1], 1))
        ng = []
        for a in range(4):
            for r in range(4): ng.append(I(f"v_mov_b32 v{NEGM + 4 * a + r}, v{VNL + a}", earliest=info[a]["qkend"] + 2))
        for r in range(8): ng.append(I(f"v_add_f32 v{MK + 8 + r}, v{MK + r}, v{NEGM}"))
        xs = [sw, q, ng, ep, gl_load() + L(f"s_sub_u32 s{S_CNT}, 6, s{S_J}")]
        if j0: xs.insert(0, ones()); info[3]["barwait"].waitfor.append(HL[0]); xs.append(p4_setup())
        return xs
    pre = []
    return seq("switch0" if j0 else "switch", pers, 0, carry_in=not j0, extra=extra, tail_ok=True)

def final(j7):
    pers = [Per(0, mask=0, dma=(1, 1)),
            Per(1, qk=[1, 2, 3], mask=1, dma=(1, 0), pad=0 if j7 else 8),
            Per(2, qk=[2, 3], mask=2, pv=[1, 2, 3], dma=(0, 0), pad=0 if j7 else 16),
            Per(3, qk=[3], mask=3, pv=[2, 3], dma=(0, 0), kread=False, pad=0 if j7 else 32),
            Per(0, qk=[], pv=[3], dma=(0, 0), kread=False, bar=False, vregs=A_K)]
    def extra(info):
        if j7:
            ep = []
            for a in range(4): ep += epi_own(a, info[a + 1]["odone"][a] + 8)
            pp = p4_pro("h7", 0, info[2]["bar"], info[3]["end"], info[4]["end"])
            w = wdma(1); w[0].deps = [(info[3]["bar"], 0)]
            return [pp + w, ep]
        x = L(f"v_add_u32 v{VX+1}, {STASH}, v{VX}")
        for a in range(2):
            e = info[a + 1]["odone"][a] + 8
            for db in range(8): x.append(I(f"ds_write_b128 v{VX+1}, {r4('a', a_o(db, a))} offset:{(8 * a + db) * 1024}", earliest=e))
            x.append(I(f"ds_write_b32 v{VLS}, a{A_L + 4 * a} offset:{4 * a}", earliest=e, deps=[(info[1]["bar"], 0)]))
        info[3]["barwait"].waitfor.append(x[-1]); info[3]["barwait"].deps.append((x[-1], 2))
        m = []
        for a in (2, 3):
            e = max(info[a + 1]["odone"][a] + 8, info[3]["qkend"] + 1)
            for db in range(8):
                for r in range(4): m.append(I(f"v_accvgpr_read_b32 v{mreg(a - 2, db) + r}, a{a_o(db, a) + r}", earliest=e))
            m.append(I(f"v_accvgpr_read_b32 v{VL + 2 * (a - 2)}, a{A_L + 4 * a}", earliest=e))
        return [x, p4_pro("hS", info[1]["start"], info[3]["bar"], info[3]["end"], info[4]["end"]), m]
    return seq("final7" if j7 else "final", pers, 0, carry_out=False, extra=extra, tail_ok=True)

def mreg(a2, db): return U(Q_UNITS[2 * a2 + (db >> 2)]) + 4 * (db & 3)
def nreg(a2, db): return SB[a2][db >> 2] + 4 * (db & 3)
VL2 = VT + 8

def finalize(isL):
    o = []
    for a2 in range(2):
        a = a2 if isL else a2 + 2
        vl = VL + 2 * a2
        sc = VT + 2 * a2
        o += L(f"v_add_f32 v{sc}, v{vl}, v{VL2 + a2}") + scale_ops(sc, VC + 2 * a if isL else VGL + a2) + L(f"v_mov_b32 v{sc+1}, v{sc}")
        for ds in range(4):
            for k in range(2):
                m, n = mreg(a2, 2 * ds + k), nreg(a2, 2 * ds + k)
                if isL:
                    for r in range(4): o += L(f"v_accvgpr_read_b32 v{n+r}, a{a_o(2*ds+k, a)+r}")
                for r in (0, 2): o += L(f"v_pk_add_f32 {r2('v', m+r)}, {r2('v', m+r)}, {r2('v', n+r)}")
                for r in (0, 2): o += L(f"v_pk_mul_f32 {r2('v', m+r)}, {r2('v', m+r)}, {r2('v', sc)}")
            m0, m1 = mreg(a2, 2 * ds), mreg(a2, 2 * ds + 1)
            o += L(f"v_cvt_pk_bf16_f32 v{m0}, v{m0}, v{m0+1}", f"v_cvt_pk_bf16_f32 v{m0+1}, v{m0+2}, v{m0+3}",
                   f"v_cvt_pk_bf16_f32 v{m0+2}, v{m1}, v{m1+1}", f"v_cvt_pk_bf16_f32 v{m0+3}, v{m1+2}, v{m1+3}")
            o += store_ctx(m0, S_ACT if isL else S_ACT2, ds, a)
    return o

def ltail():
    pers = [Per(0, dma=(0, 0)), Per(1, dma=(0, 0), kread=False),
            Per(2, qk=[], amajor=[2, 3, 0, 1], dma=(0, 0), kread=False, bar=False, vregs=A_K)]
    def extra(info):
        rd = L(f"v_add_u32 v{VX+1}, {STASH}, v{VX}")
        for a2 in range(2):
            for db in range(8): rd.append(I(f"ds_read_b128 {r4('v', mreg(a2, db))}, v{VX+1} offset:{(8 * a2 + db) * 1024}", earliest=info[1]["mid"] + 18))
            rd.append(I(f"ds_read_b32 v{VL2 + a2}, v{VLS} offset:{4 * a2}"))
        rd[1].deps = [(info[1]["bar"], 0)]
        x = rd + L(f"v_add_u32 v{VX+1}, {RING_A}, v{VX}")
        for a in (2, 3):
            e = info[2]["odone"][a] + 5
            x.append(I(f"ds_write_b32 v{VLS}, a{A_L + 4 * a} offset:{4 * a}", earliest=e))
            for db in range(8): x.append(I(f"ds_write_b128 v{VX+1}, {r4('a', a_o(db, a))} offset:{(8 * (a - 2) + db) * 1024}", earliest=e - 7 + db))
        x += [WAITLGKM(x[-1]), I("s_barrier")]
        return [x, p4_pro("hL", 0, info[1]["bar"], info[1]["end"], info[2]["end"])]
    o = seq("ltail", pers, 0, carry_out=False, extra=extra, tail_ok=True)
    o += wdma(1) + L(f"v_accvgpr_read_b32 v{VL}, a{A_L}", f"v_accvgpr_read_b32 v{VL+2}, a{A_L+4}") + finalize(True)
    return fix_hazards(o)

def smerge():
    o = L("s_barrier", f"v_add_u32 v{VX+1}, {RING_A}, v{VX}")
    for a2 in range(2):
        o += L(f"ds_read_b32 v{VL2 + a2}, v{VLS} offset:{4 * (a2 + 2)}")
        for db in range(8): o += L(f"ds_read_b128 {r4('v', nreg(a2, db))}, v{VX+1} offset:{(8 * a2 + db) * 1024}")
    return fix_hazards(o + wdma(1) + finalize(False))

def prepass():
    M = FR; T = FR + 4; CI = SB[1]; D = SB[0]
    o = L(f"""Lpre:
      s_waitcnt vmcnt(0) lgkmcnt(0)
      s_nop 7
      s_mul_i32 s{S_T0}, s{S_H}, {hex(KV_HEAD)}
      s_add_u32 s{S_T0}, s{S_T0}, {hex(KV_BASE)}
      s_lshl_b32 s{S_T1}, s{S_BLK}, 2
      s_sub_u32 s{S_T1}, 0, s{S_T1}
      v_mov_b32 v{T+1}, 0xff800000""")
    o += L(*[f"v_mov_b32 v{M+a}, v{T+1}" for a in range(4)])
    o += L(*[f"v_mov_b32 v{CI[k]+r}, 0" for k in range(2) for r in range(16)])
    o += L("Lpre_loop:")
    for f in range(8):
        o += L(f"buffer_load_dwordx4 {r4('a', A_V + 4 * f)}, v{VST2 if f >= 4 else VST}, s[{SRD_WS}:{SRD_WS+3}], s{S_T0} offen offset:{(f & 3) * 1024} sc1")
    for a in range(4):
        o += L(f"s_cmp_eq_i32 s{S_T1}, {a}", f"s_cbranch_scc0 Lpre_{a}")
        for k in range(2):
            for r in range(4):
                o += L(f"v_mov_b32 v{CI[k] + 4 * a + r}, v{MK + 4 * k + r}")
                if a: o += L(f"v_mov_b32 v{CI[k] + 4 * a - 4 + r}, v{T+1}")
        o += L(f"Lpre_{a}:")
    o += L("s_waitcnt vmcnt(0)", "s_nop 1")
    for k in range(2):
        for ds in range(4):
            for a in range(4):
                d = r4("v", D[k] + 4 * a)
                o += L(f"{MF} {d}, {r4('a', A_V + 16 * k + 4 * ds)}, {r4('v', q_reg(a, ds))}, {d if ds else r4('v', CI[k] + 4 * a)}")
    o += L("s_nop 7", "s_nop 7")
    for k in range(2):
        for a in range(4):
            for r in (0, 2): o += L(f"v_max3_f32 v{M+a}, v{D[k] + 4 * a + r}, v{D[k] + 4 * a + r + 1}, v{M+a}")
    o += L(f"""s_add_u32 s{S_T0}, s{S_T0}, 16384
      s_add_i32 s{S_T1}, s{S_T1}, 1
      s_cmp_lt_i32 s{S_T1}, 4
      s_cbranch_scc1 Lpre_loop""")
    for a in range(4):
        for sw in ("16", "32"):
            o += L(f"v_mov_b32 v{T}, v{M+a}", f"v_permlane{sw}_swap_b32 v{T}, v{M+a}", "s_nop 1", f"v_max_f32 v{M+a}, v{M+a}, v{T}")
        o += L(f"v_sub_f32 v{M+a}, 0, v{M+a}")
        o += L(*[f"v_mov_b32 v{NEGM + 4 * a + r}, v{M+a}" for r in range(4)])
    o += L(*[f"v_add_f32 v{MK + 8 + r}, v{MK + r}, v{M}" for r in range(8)])
    o += L(f"""s_lshr_b32 s{S_T0}, s{S_W}, 1
      s_lshl_b32 s{S_T0}, s{S_T0}, 10
      v_add_u32 v{VX+1}, {STASH}, v{VX}
      v_add_u32 v{T}, s{S_T0}, v{VX+1}
      ds_write_b128 v{T}, {r4('v', M)}
      s_waitcnt lgkmcnt(0)
      s_barrier
      ds_read_b128 {r4('v', VNL)}, v{VX+1}
      s_waitcnt lgkmcnt(0)
      s_branch Lpre_back""")
    return fix_hazards(o)

def k12(name, p4):
    K = Kernel(name, 256, 163840)
    pro, main = front(front_tail)
    K.add("pro", stamp(0) + entry("Lexit1") + pro)
    K.add("front", main + stamp(10) + stamp(1, 2) + L(f"s_cmp_lg_u32 s{S_SLOW}, 0", "s_cbranch_scc1 Lpre", "Lpre_back:", f"s_cmp_ge_u32 s{S_W}, 2", "s_cbranch_scc1 LS"))
    K.add("headL", head(True))
    K.add("loopD", loop(True, "LloopD"))
    K.add("afterD", L(f"s_cmp_eq_u32 s{S_J}, 7", "s_cbranch_scc1 Lfinal7", f"s_cmp_ge_u32 s{S_W}, 2", "s_cbranch_scc1 Lfinal"))
    K.add("ltail", stamp_bars(ltail(), [2, 3, 4], 2) + L("s_branch Ldone"))
    K.add("S0", L("LS:", f"s_cmp_eq_u32 s{S_J}, 0", "s_cbranch_scc1 Lswitch0"))
    K.add("headS", head(False) + L(f"s_cmp_eq_u32 s{S_CNT}, 0", "s_cbranch_scc1 Lswitch"))
    K.add("loopN", loop(False, "LloopN"))
    K.add("afterN", L(f"s_cmp_eq_u32 s{S_J}, 7", "s_cbranch_scc1 Lfinal7"))
    K.add("switch", L("Lswitch:") + switch(False) + L(f"s_cmp_lg_u32 s{S_CNT}, 0", "s_cbranch_scc1 LloopD"))
    K.add("final", L("Lfinal:") + stamp_bars(final(False) + smerge(), [2, 3, 4], 2) + L("s_branch Ldone"))
    K.add("switch0", L("Lswitch0:") + switch(True) + L("s_branch LloopD"))
    K.add("final7", L("Lfinal7:") + stamp_bars(final(True), [2, 3, 4], 2))
    K.add("bar7", L(f"s_cmp_lt_u32 s{S_W}, 2", "s_cbranch_scc1 Ldone", "s_barrier", "s_barrier", "s_barrier", "s_barrier"))
    a, b, c = p4()
    K.add("done", L("Ldone:") + stamp(11) + stamp(5, 2) + a + stamp_bars(b, list(range(6, 14)), 2) + c + prof_out(0, 15) + L("Lexit1:", "s_endpgm"))
    pf = ["pro", "front"]
    K.paths = [pf + ["headL", "loopD", "loopD", "loopD", "afterD", "ltail", "done"],
               pf + ["headL", "loopD", "loopD", "afterD", "final7", "bar7", "done"],
               pf + ["S0", "headS", "switch", "loopD", "loopD", "afterD", "final", "done"],
               pf + ["S0", "headS", "loopN", "loopN", "afterN", "switch", "final", "done"],
               pf + ["S0", "headS", "loopN", "afterN", "switch", "loopD", "afterD", "final", "done"],
               pf + ["S0", "headS", "loopN", "loopN", "afterN", "final7", "bar7", "done"],
               pf + ["S0", "switch0", "loopD", "loopD", "afterD", "final", "done"]]
    K.add("slow", [i for b in slow_blocks for i in b] + L("Lend:") + prepass())
    K.finish()
    return K
```

```python
from attn import *

def p4():
    DA = int(os.environ.get("DA", "8")); DC = int(os.environ.get("DC", "6")); CSP = int(os.environ.get("CSP", "24"))
    st_of = [s for s, n in enumerate(STG) for _ in range(n)]; sub_of = [q for n in STG for q in range(n)]
    spine = []; frags = []; done = {}
    NSEG = int(os.environ.get("NSEG", "8")); K0 = 34 - NSEG
    order = [(ks, mt) for ks in range(K0) for mt in range(9)] + [(ks, mt) for mt in range(9) for ks in range(K0, 34)]
    use = {}
    for ks, mt in order:
        w = r4("v", WF + 4 * (len(frags) % NF)); use.setdefault(ks, len(spine))
        for a in range(4):
            d = r4("v", acc(mt, a))
            spine.append(I(f"{MF} {d}, {w}, {bact(ks, a)}, {d if ks else '0'}")); done[(mt, a)] = len(spine) - 1
        frags.append((ks, mt, len(spine) - 1))
    N = len(spine)
    ds = []; pro_ds = []; bars = {}; bars_w = {}; barpos = {0: 0}; shift = 0
    for f, (ks, mt, b) in enumerate(frags):
        s = st_of[ks]
        e = frags[f - NF][2] if f >= NF else None
        if mt == 0 and sub_of[ks] == 0:
            w = [WAITG("w", s), I("s_barrier")]
            if f:
                w.insert(0, WAITLGKM(ds[-1])); barpos[s] = e + 4
                for x in w: x.earliest = e + 3; x.deadline = e + 4
                ds += w
            else: pro_ds += w
            bars[s] = w[-1]; bars_w[s] = w[0]
        for jj in range(2):
            x = I(f"ds_read_b64_tr_b16 {r2('v', WF + 4 * (f % NF) + 2 * jj)}, v{VA + s % 4} offset:{sub_of[ks] * 9216 + jj * 4608 + mt * 32}")
            if e is None: pro_ds.append(x)
            else:
                x.earliest = e + 2 * jj; x.deadline = e + 10 + 2 * jj; ds.append(x)
    al = {ks: aload(ks) for ks in range(6, 34)}
    vm = []
    for s in range(2, 9):
        o = wdma(s)
        t0 = barpos[s - 3] + 1 if s > 3 else 60 * (s - 2)
        for k, x in enumerate(o): x.earliest = t0 + 5 * k
        if s > 3: o[0].deps = [(bars[s - 3], 0)]
        vm += o
    av = []; aw = []
    pa, pb = poll2("ctx", VF + 2, 4, 4, 36 * (18 - DC) - 100, 36 * (18 - DC) - 4)
    for ks in range(6, 34):
        t0 = max(36 * (ks - DA), 24 * (ks - 6)) if ks < 18 else 36 * (18 - DC) + CSP * (ks - 18)
        for k, x in enumerate(al[ks]): x.earliest = t0 + 6 * k
        if ks == 18: al[ks][0].deps = [(pb, 0)]
        av += al[ks]
    for ks in range(1, 34):
        w = WAITG("a", ks); w.earliest = use[ks] - 4; w.deadline = use[ks] - 1; aw.append(w)
    for x in vm + av: x.maxlag = 6
    bars_w[1].waitfor += CTX_LAST
    misc = [Bundle(L(f"v_cmp_ne_u32 vcc, 0, v{VF}", "s_nop 4", "s_cbranch_vccnz Lrestart"), earliest=8)]
    slow_blocks.append(L(f"""Lrestart:
      s_waitcnt vmcnt(0) lgkmcnt(0)
      s_barrier
      s_movk_i32 s{S_SLOW}, 256
      s_branch Lstart"""))
    misc += [Bundle(L(f"s_cmp_lg_u32 s{S_W}, 0", f"s_cselect_b32 s{S_SIG}, 256, 0"))]
    misc += sig_group(4) + [Bundle(flag_addr(VF, 11, 4, None))] + [sig_store(VF)]
    misc[-1].deps = [(bars[1], 0)]
    misc += L(f"""s_lshr_b32 s{S_RB}, s2, 3
      s_lshl_b32 s{S_RB}, s{S_RB}, 2
      s_bfe_u32 s{S_PT}, s{S_H}, 0x20001
      s_add_u32 s{S_RB}, s{S_RB}, s{S_PT}
      s_lshl_b32 s{S_RB}, s{S_RB}, 4
      s_and_b32 s{S_PT}, s{S_H}, 1
      s_add_u32 s{S_RB}, s{S_RB}, s{S_PT}
      s_mul_i32 s{S_RB}, s{S_RB}, 9216
      s_add_u32 s{S_RB}, s{S_RB}, {hex(PART_BASE)}
      s_and_b32 s{S_PT}, s{S_H}, 7
      s_movk_i32 s{S_P0}, 8192
      s_movk_i32 s{S_P0+1}, 16384""")
    def pstore(b, mt, ap):
        n = 9 * ap + mt
        return I(f"buffer_store_dwordx4 {r4('v', b)}, v{VST2 if n & 4 else VST}, s[{SRD_PZ}:{SRD_PZ+3}], {f's{S_P0 + (n >> 3) - 1}' if n >> 3 else '0'} offen offset:{(n & 3) * 1024} sc1")
    misc += L(f"""s_and_b32 s{S_PO}, s2, 0xf8
      s_lshl_b32 s{S_OB}, s{S_W}, 1
      s_add_u32 s{S_PO}, s{S_PO}, s{S_OB}
      s_lshl_b32 s{S_PO}, s{S_PO}, 6
      s_add_u32 s{S_PO}, s{S_PO}, s{S_PT}
      s_lshl_b32 s{S_PO}, s{S_PO}, 2
      s_add_u32 s{S_PO}, s{S_PO}, {hex(INBOX + 32)}""") + [Bundle(flag_addr(VF, 8, 2, None))]
    misc += L(f"s_sub_u32 s{S_OB}, 15, s{S_J}") + [Bundle(L(f"s_cmp_lt_u32 s{S_PT}, 4", f"s_cselect_b32 s{S_OB}, s{S_OB}, s{S_J}"))]
    misc += L(f"""s_lshl_b32 s{S_OB}, s{S_OB}, 3
      s_bfe_u32 s{S_CNT}, s{S_PT}, 0x10001
      s_add_u32 s{S_OB}, s{S_OB}, s{S_CNT}
      s_and_b32 s{S_CNT}, s{S_PT}, 1
      s_lshl_b32 s{S_CNT}, s{S_CNT}, 2
      s_add_u32 s{S_OB}, s{S_OB}, s{S_CNT}
      s_mul_i32 s{S_OB}, s{S_OB}, {16 * 1152}
      s_lshr_b32 s{S_CNT}, s{S_H}, 3
      s_mul_i32 s{S_CNT}, s{S_CNT}, 288
      s_add_u32 s{S_OB}, s{S_OB}, s{S_CNT}""")
    R0, R1, O0, O1, T = 28, 29, 30, 31, 36
    misc += L(f"""s_lshl_b32 s{S_CNT}, s{S_W}, 11
      v_add_u32 v{R0}, s{S_CNT}, v{VST}
      s_lshl_b32 s{S_CNT}, s{S_W}, 8
      s_add_u32 s{S_CNT}, s{S_CNT}, 8192
      v_lshl_add_u32 v{R1}, v0, 2, s{S_CNT}
      v_and_b32 v{T}, 15, v0
      v_mul_u32_u24 v{T}, 1152, v{T}
      v_lshrrev_b32 v{T+1}, 4, v0
      v_lshl_add_u32 v{T}, v{T+1}, 3, v{T}
      s_lshl_b32 s{S_CNT}, s{S_W}, 6
      v_add_u32 v{O0}, s{S_CNT}, v{T}
      v_lshrrev_b32 v{T}, 2, v0
      v_bfe_u32 v{T+1}, v0, 1, 1
      v_lshl_add_u32 v{T}, v{T+1}, 5, v{T}
      v_mul_u32_u24 v{T}, 1152, v{T}
      v_and_b32 v{T+1}, 1, v0
      v_lshl_add_u32 v{T}, v{T+1}, 2, v{T}
      s_lshl_b32 s{S_CNT}, s{S_W}, 3
      s_add_u32 s{S_CNT}, s{S_CNT}, 256
      v_add_u32 v{O1}, s{S_CNT}, v{T}
      s_movk_i32 s{S_MASK}, 255
      s_add_u32 s{S_CNT}, s{S_OB}, {32 * 1152}""")
    A0 = 40
    misc += L(*[f"v_mov_b32 v{A0+d}, 0" for d in range(18)])
    FT = int(os.environ.get("FT", "150"))
    misc += [WAITVM(*PZ), sig_store(VF)]; misc[-2].deadline = 800; misc[-1].earliest = N - FT; misc[-1].deadline = N - FT + 6
    R0T = int(os.environ.get("R0T", "0")); R0S = int(os.environ.get("R0S", "0"))
    pr, prb = poll2("red", VF + 2, 8, 8, N - R0T - 70, N - R0T - 4)
    pol = pa + [pb] + pr + [prb]
    def rreg(p, d): return (ACC + 8 * p + d) if d < 8 else VZ + p
    def rload(p):
        return L(f"""s_add_u32 s{S_AT}, s{S_RB}, {18432 * p}
          buffer_load_dwordx4 {r4('v', rreg(p, 0))}, v{R0}, s[{SRD_WS}:{SRD_WS+3}], s{S_AT} offen sc1
          buffer_load_dwordx4 {r4('v', rreg(p, 4))}, v{R0}, s[{SRD_WS}:{SRD_WS+3}], s{S_AT} offen offset:1024 sc1
          buffer_load_dword v{rreg(p, 8)}, v{R1}, s[{SRD_WS}:{SRD_WS+3}], s{S_AT} offen sc1""")
    epi = []; est = []
    for mt in range(9):
        for ap in range(2):
            b0, b1 = acc(mt, 2 * ap), acc(mt, 2 * ap + 1)
            o = L(f"v_cvt_pk_bf16_f32 v{b0}, v{b0}, v{b0+1}", f"v_cvt_pk_bf16_f32 v{b0+1}, v{b0+2}, v{b0+3}",
                  f"v_cvt_pk_bf16_f32 v{b0+2}, v{b1}, v{b1+1}", f"v_cvt_pk_bf16_f32 v{b0+3}, v{b1+2}, v{b1+3}")
            o += L(*[f"v_min_u32 v{b0+r}, -2, v{b0+r}" for r in range(4)]) + [pstore(b0, mt, ap)]
            for x in o: x.earliest = done[(mt, 2 * ap + 1)] + 5
            o[-1].maxlag = 2
            epi += o; est.append(o[-1])
    r0 = []
    for p in range(8):
        o = rload(p)
        for k, x in enumerate(o): x.earliest = max(N - R0T + R0S * (3 * p + k), est[p].earliest); x.maxlag = 2
        o[1].deps = [(est[p], 2)]
        r0 += o
    r0[0].deps = [(prb, 0), (av[-1], 0)]
    if R0T == 0:
        prb.sub[0:0] = (stamp(14) if PROF != 3 else stamp(1, 3)) + [WAITVM(pr[-1])]; prb.sub += stamp(2, 3); prb.deps = [(est[-1], 0)]; prb.maxlag = 0
    main = fix_hazards(schedule(spine, [ds, aw, vm, av, pol, misc, epi, r0], verbose="p4", nprio=2))
    if PROF:
        mf = [i for i, x in enumerate(main) if x.kind == "mfma"]
        main[mf[648]:mf[648]] = stamp(13)
    red = (stamp(14) if R0T else []) + stamp(3, 3) + (L(*[f"s_mov_b32 s{S_PROF+2*k}, 1" for k in range(4, 14)]) if PROF == 3 else []) + L(f"s_load_dwordx2 s[{SRD_OUT}:{SRD_OUT+1}], s[0:1], 80") + srd(SRD_OUT, SRD_OUT, 2048 * 1152) + L("Lchk:")
    rt = L("Lretry:")
    if PROF == 3:
        rt += L(f"s_add_u32 s{S_PROF+26}, s{S_PROF+26}, 1")
        for k in range(4, 12): rt += L(f"s_cmp_eq_u32 s{S_PROF+26}, {k-2}", f"s_cbranch_scc0 Lps{k}") + stamp(k, 3) + L(f"Lps{k}:")
    for p in range(8):
        r = [rreg(p, d) for d in range(9)]
        red += L(f"""s_bitcmp1_b32 s{S_MASK}, {p}
          s_cbranch_scc0 Lskip{p}
          v_max3_u32 v{T}, v{r[0]}, v{r[1]}, v{r[2]}
          v_max3_u32 v{T}, v{T}, v{r[3]}, v{r[4]}
          v_max3_u32 v{T}, v{T}, v{r[5]}, v{r[6]}
          v_max3_u32 v{T}, v{T}, v{r[7]}, v{r[8]}
          v_cmp_eq_u32 vcc, -1, v{T}
          s_cbranch_vccnz Lskip{p}""")
        for d in range(9):
            red += L(f"v_lshlrev_b32 v{T}, 16, v{r[d]}", f"v_and_b32 v{T+1}, 0xffff0000, v{r[d]}",
                     f"v_pk_add_f32 {r2('v', A0+2*d)}, {r2('v', A0+2*d)}, {r2('v', T)}")
        red += L(f"s_bitset0_b32 s{S_MASK}, {p}", f"Lskip{p}:")
        rt += L(f"s_bitcmp1_b32 s{S_MASK}, {p}", f"s_cbranch_scc0 Lrskip{p}") + rload(p) + L(f"Lrskip{p}:")
    slow_blocks.insert(0, rt + L("s_waitcnt vmcnt(0)", "s_branch Lchk"))
    red += L(f"s_cmp_lg_u32 s{S_MASK}, 0", "s_cbranch_scc1 Lretry") + (stamp(14) if PROF == 3 else [])
    D0 = 64
    for d in range(9): red += L(f"v_cvt_pk_bf16_f32 v{D0+d}, v{A0+2*d}, v{A0+2*d+1}")
    for t in range(2):
        for a in range(2):
            red += L(f"buffer_store_dwordx2 {r2('v', D0 + 4 * t + 2 * a)}, v{O0}, s[{SRD_OUT}:{SRD_OUT+3}], s{S_CNT if a else S_OB} offen offset:{32 * t}")
    red += L(f"buffer_store_dword v{D0+8}, v{O1}, s[{SRD_OUT}:{SRD_OUT+3}], s{S_OB} offen")
    ck = L(f"""v_cmp_lt_u32 vcc, 0x40000000, v{VBAD}
      s_lshr_b32 s{S_PT}, s{S_SLOW}, 8
      s_lshl_b32 s{S_PO}, s{S_W}, 2
      v_mov_b32 v{VF+1}, s{S_PO}
      s_cmp_lg_u64 vcc, 0
      s_cselect_b32 s{S_PO}, 1, 0
      s_andn2_b32 s{S_PO}, s{S_PO}, s{S_PT}
      v_mov_b32 v{VF}, s{S_PO}
      ds_write_b32 v{VF+1}, v{VF}
      v_and_b32 v{VF+1}, 3, v0
      v_lshlrev_b32 v{VF+1}, 2, v{VF+1}
      s_waitcnt lgkmcnt(0)""")
    pro = fix_hazards(ck + pro_ds[:2] + [WAITG("a", 0)] + pro_ds[2:] + L(f"ds_read_b32 v{VF}, v{VF+1}") + stamp(12))
    return pro, main, fix_hazards(red)

def full(name):
    K = k12(name, p4)
    return K
```

```python
from asm import *
import os

NAME = "gated_mix__compressed_kv_cla__dense_activation_silu__prompt"
MF = "v_mfma_f32_16x16x32_bf16"

KV_BASE = 0x10000
KV_HEAD = 0x104000
ACT_BASE = 0x2100000
ACT_RB = 34 * 8 * 1024
ACT_G = 16 * ACT_RB
G_BASE = 0x4400000
INBOX = 0x4480000
PART_BASE = 0x4500000
XI_BASE = 0x5800000
WS_SIZE = 0x8000000

LOG2E = 1.4426950408889634
import struct
def f2u(x): return "0x%08x" % struct.unpack("<I", struct.pack("<f", x))[0]

def r4(f, b): return f"{f}[{b}:{b+3}]"
def r2(f, b): return f"{f}[{b}:{b+1}]"

def L(*lines):
    out = []
    for t in lines:
        for x in t.split("\n"):
            x = x.strip()
            if x and not x.startswith(";"): out.append(I(x))
    return out

def srd(d, slot_lo, nbytes):
    o = []
    if d != slot_lo:
        o += L(f"s_mov_b32 s{d}, s{slot_lo}", f"s_mov_b32 s{d+1}, s{slot_lo+1}")
    o += L(f"s_mov_b32 s{d+2}, {hex(nbytes)}", f"s_mov_b32 s{d+3}, 0x00020000")
    return o

class Kernel:
    def __init__(self, name, grid, lds, vgpr=512):
        self.name = name; self.grid = grid; self.lds = lds; self.vgpr = vgpr
        self.blocks = {}; self.order = []; self.paths = []
    def add(self, name, ins):
        assert name not in self.blocks
        self.blocks[name] = Block(name, ins); self.order.append(name)
    def finish(self, verbose=True):
        if not self.paths: self.paths = [list(self.order)]
        insert_waits(self.blocks, self.paths)
        errs = []
        for p in self.paths:
            errs += check_hazards([i for b in p for i in self.blocks[b].ins])
        errs = sorted(set(errs))
        if errs: raise Exception("hazards:\n" + "\n".join(errs[:30]))
        if verbose:
            if os.environ.get("AGES"):
                for p in self.paths: print("  young vm waits:", wait_ages([i for b in p for i in self.blocks[b].ins]))
            for b in self.order:
                ins = self.blocks[b].ins
                print(f"  {b}: {len(ins)} ins, mfma={sum(1 for i in ins if i.kind=='mfma')}, est={est_cycles(ins)} cyc", end="")
                if len(ins) < 3000:
                    parts = [[]]
                    for i in ins:
                        parts[-1].append(i)
                        if i.mn == "s_barrier": parts.append([])
                    print("  intervals:", [est_cycles(x) for x in parts], end="")
                print()
    def text(self):
        o = [f".globl {self.name}", ".p2align 8", f".type {self.name},@function", f"{self.name}:"]
        for b in self.order:
            o.append(f"; ---- {b}")
            for i in self.blocks[b].ins:
                o.append(i.text if i.kind == "label" else "  " + i.text)
        return "\n".join(o)
    def desc(self):
        acc = 256 if self.vgpr > 256 else (self.vgpr + 3) // 4 * 4
        return f""".p2align 6
.amdhsa_kernel {self.name}
  .amdhsa_next_free_vgpr {self.vgpr}
  .amdhsa_next_free_sgpr 102
  .amdhsa_accum_offset {acc}
  .amdhsa_group_segment_fixed_size 0
  .amdhsa_kernarg_size 104
  .amdhsa_user_sgpr_count 2
  .amdhsa_user_sgpr_kernarg_segment_ptr 1
  .amdhsa_system_sgpr_workgroup_id_x 1
.end_amdhsa_kernel"""

def emit(kernels, path):
    hdr = [l.rstrip("\n") for l in open(f"cdna_kernels/{NAME}.s.ref") if l.startswith(";") and "@launch" not in l]
    o = list(hdr)
    if len(kernels) == 1 and kernels[0].name == NAME + "_kernel":
        k = kernels[0]
        o.append(f"; @launch grid=({k.grid},1,1) block=(256,1,1) lds={k.lds}")
    else:
        for k in kernels: o.append(f"; @launch kernel={k.name} grid=({k.grid},1,1) block=(256,1,1) lds={k.lds}")
    o += ['.amdgcn_target "amdgcn-amd-amdhsa--gfx950"', ".text"]
    for k in kernels: o.append(k.text())
    o += ['.section .rodata,"a"']
    for k in kernels: o.append(k.desc())
    open(path, "w").write("\n".join(o) + "\n")

import os
PROF = int(os.environ.get("PROF", "0"))
TIMER = "s_memtime" if os.environ.get("CYC") else "s_memrealtime"
PROF_BASE = 0x7000000
S_PROF = 70
def stamp_bars(ins, ks, mode):
    if PROF != mode: return ins
    idx = [i for i, x in enumerate(ins) if x.mn == "s_barrier"][-len(ks):]
    for i, k in reversed(list(zip(idx, ks))): ins[i+1:i+1] = stamp(k, mode)
    return ins
def stamp(k, mode=1):
    if not PROF or (PROF != mode and k not in (0, 14)): return []
    return L(f"{TIMER} s[{S_PROF+2*k}:{S_PROF+2*k+1}]")
def prof_out(kidx, nst, srd_ws=20, s_w=3):
    if not PROF: return []
    o = L(f"""s_waitcnt vmcnt(0) lgkmcnt(0)
      {TIMER} s[{S_PROF+2*nst}:{S_PROF+2*nst+1}]
      s_lshl_b32 s24, s2, 2
      s_add_u32 s24, s24, s{s_w}
      s_lshl_b32 s24, s24, 6
      s_add_u32 s24, s24, {hex(PROF_BASE + kidx * 65536)}
      s_mov_b64 exec, 1
      v_mov_b32 v1, 0
      s_waitcnt lgkmcnt(0)""")
    for k in range(nst + 1):
        o += L(f"v_mov_b32 v2, s{S_PROF+2*k}", f"buffer_store_dword v2, v1, s[{srd_ws}:{srd_ws+3}], s24 offen offset:{4*k}")
    return o
```

```python
from front import *

SRD_OUT, SRD_PZ = 16, 8
VPZ, A_Z = 15, 244
PZ = []
S_WS, S_AB, S_AT, S_M0 = 44, 45, 46, 47
S_P0 = 50
S_IB = 54
S_RB, S_OB, S_MASK = 55, 56, 57
VZ = 232
ACC, WF, VD, VA = 64, 208, 1, 32
VF = 245
VHP = 38
NF = 6
STG = [4, 4, 4, 4, 2, 4, 4, 4, 4]
SLOT = 36864
PSLOT = [16384, 16384 + 3 * SLOT, 16384 + SLOT, 16384 + 2 * SLOT]
ARING = [212, 228, 176, 192, 144, 160] + [16 * i for i in range(8)]
def acc(mt, a): return ACC + 16 * mt + 4 * a
def bact(ks, a): return r4("a", ARING[ks % len(ARING)] + 4 * a)

def flag_addr(v, lane_shift, nl, word_ops):
    return L(f"""v_cmp_gt_u32 vcc, {nl}, v0
      v_lshlrev_b32 v{v}, {lane_shift}, v0
      v_mov_b32 v{v+1}, 1
      v_cndmask_b32 v{v}, -1, v{v}, vcc""")

def sig_group(word):
    o = L(f"""s_and_b32 s{S_PO}, s2, 0xe7
      s_lshl_b32 s{S_PO}, s{S_PO}, 6
      s_lshr_b32 s{S_PT}, s{S_H}, 3
      s_add_u32 s{S_PO}, s{S_PO}, s{S_PT}
      s_lshl_b32 s{S_PO}, s{S_PO}, 2
      s_add_u32 s{S_PO}, s{S_PO}, {hex(INBOX + 4 * word)}
      s_lshl_b32 s{S_PT}, s{S_SIG}, 20
      s_add_u32 s{S_PO}, s{S_PO}, s{S_PT}""")
    return o
def sig_store(v): return I(f"buffer_store_dword v{v+1}, v{v}, s[{SRD_WS}:{SRD_WS+3}], s{S_PO} offen sc1")

def poll2(tag, v, word, nw, t_issue=0, t_check=0):
    ld = f"buffer_load_dword v{v+1}, v{v}, s[{SRD_WS}:{SRD_WS+3}], s{S_IB} offen offset:{4 * word} sc1"
    a = L(f"v_and_b32 v{v}, {nw - 1}, v0", f"v_lshlrev_b32 v{v}, 2, v{v}", ld)
    for x in a: x.earliest = t_issue
    a[-1].deadline = t_issue + 8
    b = Bundle(L(f"v_cmp_ne_u32 vcc, 1, v{v+1}", "s_nop 4", f"s_cbranch_vccnz Lpoll_{tag}", f"Lback_{tag}:"), earliest=t_check)
    slow_blocks.append(L(f"""Lpoll_{tag}:
      {ld}
      s_waitcnt vmcnt(0)
      v_cmp_ne_u32 vcc, 1, v{v+1}
      s_nop 4
      s_cbranch_vccz Lback_{tag}
      s_branch Lpoll_{tag}"""))
    return a, b

def p4_setup():
    t = VHP
    o = L(f"""s_lshl_b32 s{S_IB}, s2, 8
      s_add_u32 s{S_IB}, s{S_IB}, {hex(INBOX)}
      s_mul_i32 s{S_M0}, s{S_W}, 9216
      s_lshr_b32 s{S_AT}, s{S_H}, 3
      s_lshl_b32 s{S_AB}, s{S_AT}, 15
      s_sub_u32 s{S_AB}, s{S_ACT}, s{S_AB}
      s_sub_u32 s{S_AB}, s{S_AB}, {18 * 8192}
      s_mul_i32 s{S_AT}, s{S_AT}, 288
      s_and_b32 s{S_WS}, s{S_H}, 7
      s_mul_i32 s{S_WS}, s{S_WS}, 18
      s_add_u32 s{S_WS}, s{S_WS}, s{S_W}
      s_mul_i32 s{S_WS}, s{S_WS}, {32 * 1152}
      s_add_u32 s{S_WS}, s{S_WS}, s{S_AT}""")
    o += L(*[f"v_accvgpr_write_b32 a{A_Z+r}, -1" for r in range(4)])
    o += L(f"s_movk_i32 s{S_AT}, 864", f"v_mul_u32_u24 v{t+1}, 3641, v0")
    for n in range(9):
        if n: o += L(f"v_add_u32 v{t+1}, {64 * 3641}, v{t+1}")
        o += L(f"v_lshrrev_b32 v{t}, 16, v{t+1}", f"v_mad_u32_u24 v{VD+n}, v{t}, s{S_AT}, v{VST2 if n >= 4 else VST}")
    o += L(f"v_add_u32 v{VD+8}, 4096, v{VD+8}")
    o += L(f"""v_lshrrev_b32 v{t}, 2, v0
      v_mul_u32_u24 v{t}, 288, v{t}
      v_and_b32 v{t+1}, 3, v0
      v_lshl_add_u32 v{t}, v{t+1}, 3, v{t}""")
    for s in range(4): o += L(f"v_add_u32 v{VA+s}, {PSLOT[s]}, v{t}")
    return o

def wdma(s):
    o = []
    if s == 5: o += L(f"""s_and_b32 s{S_DT}, s{S_H}, 7
          s_mul_i32 s{S_DT}, s{S_DT}, {(18 - 4) * 32 * 1152}
          s_sub_u32 s{S_WS}, s{S_WS}, s{S_DT}
          s_sub_u32 s{S_WS}, s{S_WS}, {4 * 128 * 1152}""")
    elif s: o += L(f"s_add_u32 s{S_WS}, s{S_WS}, {(128 if s < 5 else 1024) * 1152}")
    sr = SRD_W2 if s < 5 else SRD_WO
    if 'b' in os.environ.get('X', ''):
        sr = SRD_W2
        if s > 1: o = L(f"s_add_u32 s{S_WS}, s{S_WS}, {128 * 1152}" if s & 1 else f"s_sub_u32 s{S_WS}, s{S_WS}, {128 * 1152}")
    for n in range(9):
        if n % 4 == 0: o += L(f"s_add_u32 m0, s{S_M0}, {PSLOT[s % 4] + 1024 * n}")
        x = I(f"buffer_load_dwordx4 v{VD+n}, s[{sr}:{sr+3}], s{S_WS} offen" + (f" offset:{1024 * (n & 3)}" if n & 3 else "") + " lds"); x.grp = ("w", s)
        if n % 4 == 0: x.deps = [(o[-1], 1)]
        o.append(x)
    return o
def aload(ks):
    o = L(f"s_add_u32 s{S_AT}, s{S_AB}, {(ks % 6 if 'a' in os.environ.get('X', '') else ks) * 8192}")
    for a in range(4):
        o += L(f"buffer_load_dwordx4 {bact(ks, a)}, v{VST2 if a >= 2 else VST}, s[{SRD_WS}:{SRD_WS+3}], s{S_AT} offen offset:{(a & 1) * 2048} sc1"); o[-1].grp = ("a", ks)
    return o

def pz_setup():
    o = []
    o += L(f"""s_lshr_b32 s{SRD_PZ+2}, s2, 3
      s_lshl_b32 s{SRD_PZ+2}, s{SRD_PZ+2}, 2
      s_add_u32 s{SRD_PZ+2}, s{SRD_PZ+2}, s{S_W}
      s_lshl_b32 s{SRD_PZ+2}, s{SRD_PZ+2}, 3
      s_and_b32 s{SRD_PZ}, s{S_H}, 7
      s_add_u32 s{SRD_PZ+2}, s{SRD_PZ+2}, s{SRD_PZ}
      s_mul_i32 s{SRD_PZ+2}, s{SRD_PZ+2}, 18432
      s_add_u32 s{SRD_PZ+2}, s{SRD_PZ+2}, {hex(PART_BASE)}""")
    o += [Bundle(L(f"s_add_u32 s{SRD_PZ}, s{SRD_WS}, s{SRD_PZ+2}", f"s_addc_u32 s{SRD_PZ+1}, s{SRD_WS+1}, 0"))]
    o += L(f"s_movk_i32 s{SRD_PZ+2}, 18432", f"v_mov_b32 v{VPZ}, v{VST}")
    return o
```

```python
from p4base import *

VK, VV = 18, 19
VBAD, VGL = 43, 44
VNL, VLS = 10, 14
VX = 46
SB = [[U(2), U(0)], [U(8), U(9)]]
PB = [U(1), U(7)]
NEGM, MK = U(10), U(11)
A_L, A_K, A_V, A_ONE = 128, 144, 176, 208
def a_o(db, a): return 16 * db + 4 * a
S_DM0, S_DSO, S_CNT, S_ACT2, S_EO = 67, 68, 69, 7, 49
RING_A, RING_B, STASH = 0x10000, 0, 0x20000
LSUM = 0x10000 + 3 * 16384 + 4096
ALL = [0, 1, 2, 3]

class Per:
    def __init__(self, ph, qk=ALL, mask=None, pv=ALL, first=False, dma=(1, 1), dph=None, kph=None, vph=None, kread=True, vread=True,
                 amajor=None, vregs=A_V, bar=True, kregs=A_K, pad=0, early=False):
        self.ph = ph
        self.qk = qk; self.mask = mask; self.pv = pv; self.first = first
        self.dma = dma
        self.dph = ph if dph is None else dph
        self.kph = (ph + 1) % 4 if kph is None else kph
        self.vph = ph if vph is None else vph
        self.kread = kread; self.vread = vread; self.amajor = amajor; self.vregs = vregs; self.bar = bar
        self.kregs = kregs; self.pad = pad; self.early = early

NSPLIT = 5
def seq(name, pers, par0, carry_in=True, carry_out=True, extra=None, tail=None, tail_ok=False):
    spine = []; info = []
    for n, P in enumerate(pers):
        par = (par0 + n) & 1
        d = dict(start=len(spine), sdone={}, odone={}, vlast={}, klast={})
        order = [(kvb, ds) for kvb in range(2) for ds in range(4)] if len(P.qk) > 1 else [(kvb, ds) for ds in range(4) for kvb in range(2)]
        for kvb, ds in order:
            for a in P.qk:
                D = r4("v", SB[par][kvb] + 4 * a)
                C = D if ds else (r4("v", MK + 8 + 4 * kvb) if a == P.mask else r4("v", NEGM + 4 * a))
                spine.append(I(f"{MF} {D}, {r4('a', P.kregs + 16 * kvb + 4 * ds)}, {r4('v', q_reg(a, ds))}, {C}"))
                d["sdone"][(kvb, a)] = len(spine) - 1
        d["qkend"] = len(spine)
        spine += [None] * P.pad
        d["mid"] = len(spine)
        pp = PB[par ^ 1]
        def summ(a):
            D = r4("a", A_L + 4 * a)
            spine.append(I(f"{MF} {D}, {r4('a', A_ONE)}, {r4('v', pp + 4 * a)}, {'0' if P.first else D}"))
        def pv(db, a):
            D = r4("a", a_o(db, a))
            spine.append(I(f"{MF} {D}, {r4('a', P.vregs + 4 * db)}, {r4('v', pp + 4 * a)}, {'0' if P.first else D}"))
            d["odone"][a] = len(spine) - 1; d["vlast"][db] = len(spine) - 1
        if P.amajor:
            for a in P.amajor:
                summ(a)
                for db in range(8): pv(db, a)
        else:
            for a in P.pv: summ(a)
            for db in range(8):
                for a in P.pv: pv(db, a)
        d["end"] = len(spine)
        info.append(d)
    ds = []; vm = []; ex = []; cv = []; mk = []
    def softmax(par, tiles, done, dl=None):
        for (kvb, a) in tiles:
            e = done(kvb, a); b = SB[par][kvb] + 4 * a
            es = [I(f"v_exp_f32 v{b+r}, v{b+r}", earliest=e) for r in range(4)]
            ex.extend(es)
            for k in range(2):
                c = I(f"v_cvt_pk_bf16_f32 v{PB[par] + 4 * a + 2 * kvb + k}, v{b+2*k}, v{b+2*k+1}", earliest=e, deps=[(es[2 * k + 1], 1)])
                if dl is not None: c.deadline = dl
                cv.append(c)
    full = [(kvb, a) for kvb in range(2) for a in ALL]
    if carry_in: softmax(par0 ^ 1, full[NSPLIT:], lambda k, a: 0)
    bars = []
    for n, P in enumerate(pers):
        d = info[n]; par = (par0 + n) & 1
        if P.mask is not None and n > 0:
            e = max(d["start"] - 12, info[n - 1]["qkend"] - 4)
            for kvb in range(2):
                for r in range(4):
                    mk.append(I(f"v_add_f32 v{MK + 8 + 4 * kvb + r}, v{MK + 4 * kvb + r}, v{NEGM + 4 * P.mask}", earliest=e))
            d["mk"] = mk[-8:]
        lastv = None
        if P.vread and (P.pv or P.amajor):
            nq = d["mid"] - d["start"]
            for db in range(8):
                x = I(f"ds_read_b128 {r4('a', P.vregs + 4 * db)}, v{VV} offset:{P.vph * 16384 + db * 1024}")
                if P.vregs == A_V:
                    x.earliest = d["start"] + (db * max(nq - 10, 0)) // 10
                    if n and db in info[n - 1]["vlast"] and nq < 24: x.earliest = max(info[n - 1]["vlast"][db], info[n - 1]["klastpos"] + 1)
                else: x.earliest = info[n - 1]["mid"] + 2 * db
                ds.append(x); lastv = x; d.setdefault("vreads", []).append(x)
        if P.bar:
            e = d["mid"] - 1 if not P.early else d["start"] + 6
            w = [WAITG("kv", n + 1), I("s_barrier")]
            if lastv is not None: w.insert(0, WAITLGKM(lastv))
            if P.early: w.insert(0, I("s_waitcnt lgkmcnt(0)"))
            for x in w: x.earliest = max(e - 1, d["start"]); x.deadline = max(e, d["start"])
            ds += w; d["bar"] = w[-1]; d["barwait"] = w[0]
        d["klastpos"] = d["mid"]
        if P.kread:
            npv = d["end"] - d["mid"]
            for f in range(8):
                kvb, dsi = (f >> 2, f & 3) if (n + 1 >= len(pers) or len(pers[n + 1].qk) > 1) else (f & 1, f >> 1)
                kr = pers[n + 1].kregs if n + 1 < len(pers) else A_K
                x = I(f"ds_read_b128 {r4('a', kr + 16 * kvb + 4 * dsi)}, v{VK} offset:{P.kph * 16384 + 8192 + (4 * kvb + dsi) * 1024}")
                x.earliest = d["mid"] - 1 + (f * max(npv - 12, 0)) // 10 if not P.early else d["start"] + 7 + 2 * f
                d.setdefault("kreads", []).append(x)
                ds.append(x); d["klastpos"] = x.earliest
        def dmas(slot, h, goff, e0, span, dep):
            o = L(f"s_add_u32 m0, s{S_DM0}, {slot * 16384 + 4096 * h}")
            for k in range(4):
                x = I(f"buffer_load_dwordx4 v{VST}, s[{SRD_WS}:{SRD_WS+3}], s{S_DSO} offen offset:{1024 * k} sc1 lds"); x.grp = ("kv", goff)
                x.earliest = e0 + (k * span) // 4; x.maxlag = 4
                o.append(x)
            o += L(f"s_add_u32 s{S_DSO}, s{S_DSO}, {12288 if h else 4096}")
            o[0].earliest = e0; o[0].deps = [dep] if dep else []; o[1].deps = [(o[0], 1)]
            return o
        if P.dma[0]:
            o = dmas((P.dph + 3) % 4, 1, n + 3, d["start"], d["mid"] - d["start"] - 4, None)
            o[-2].deadline = d["end"] - 1
            vm += o
        if P.dma[1]:
            e0 = d["mid"] if not P.early else d["start"] + 8
            o = dmas(P.dph, 0, n + 4, e0, d["end"] - e0 - 4, (d["bar"], 0))
            o[-2].deadline = o[-1].deadline = d["end"] - 1
            vm += o
        tiles = [(kvb, a) for kvb in range(2) for a in P.qk]
        last = n == len(pers) - 1
        if last and carry_out:
            assert P.qk == ALL
            softmax(par, tiles[:NSPLIT], lambda k, a: d["sdone"][(k, a)] + 8, dl=d["end"] - 1)
        else:
            nx = pers[n + 1] if not last else None
            if nx is not None and nx.amajor: tiles = [(kvb, a) for kvb in range(2) for a in nx.amajor]
            softmax(par, tiles, lambda k, a: d["sdone"][(k, a)] + SLAG(P))
    xs = extra(info) if extra else []
    st = [ds, vm, mk, ex, cv] + xs
    if tail:
        tail.earliest = tail.deadline = len(spine) - 1
        st.append([tail])
    out = schedule(spine, st, verbose=name, tail_ok=tail_ok)
    out = fix_hazards(out)
    tk = [TICK("kv", len(pers))]
    if tail: return out[:-1] + tk + out[-1:]
    return out + tk

def SLAG(P): return 8 if len(P.qk) >= 3 else 4

A_K2 = 212
EG = [FR, FR + 8]
VL = 40
def store_ctx(b, sbase, ds, a):
    o = []
    if ds: o += L(f"s_add_u32 s{S_EO}, s{sbase}, {ds * 8192}")
    o += L(f"buffer_store_dwordx4 {r4('v', b)}, v{VST2 if a >= 2 else VST}, s[{SRD_WS}:{SRD_WS+3}], s{S_EO if ds else sbase} offen offset:{(a & 1) * 2048}{os.environ.get('SCC', SC)}")
    CTX_LAST.append(o[-1])
    return o
CTX_LAST = []
def p4_pro(tag, t_poll, bar0, t_v, t_k):
    ha, hb = poll2(tag, VHP, 0, 4, t_poll, t_poll + 64)
    o = ha + [hb] + aload(0) + aload(1)
    w = wdma(0); w[0].deps = [(bar0, 0)]
    o += w
    for k in (2, 3, 4, 5):
        x = aload(k); x[1].earliest = t_v if k < 4 else t_k
        o += x
    return o
def scale_ops(vl, vg):
    return L(f"""v_subrev_u32 v{vl+1}, 0x1f800000, v{vl}
      v_rcp_f32 v{vl}, v{vl}
      v_max_u32 v{VBAD}, v{VBAD}, v{vl+1}
      v_mul_f32 v{vl}, v{vl}, v{vg}""")
egc = [0]
def epi_own(a, e):
    o = L(f"v_accvgpr_read_b32 v{VL}, a{A_L + 4 * a}") + scale_ops(VL, VC + 2 * a)
    for ds in range(4):
        t = EG[egc[0] & 1]; egc[0] += 1
        for k in range(2):
            for r in range(4): o += L(f"v_accvgpr_read_b32 v{t+4*k+r}, a{a_o(2*ds+k, a)+r}")
            for r in range(4): o += L(f"v_mul_f32 v{t+4*k+r}, v{VL}, v{t+4*k+r}")
            o += L(f"v_cvt_pk_bf16_f32 v{t+2*k}, v{t+4*k}, v{t+4*k+1}", f"v_cvt_pk_bf16_f32 v{t+2*k+1}, v{t+4*k+2}, v{t+4*k+3}")
        st = store_ctx(t, S_ACT, ds, a); st[-1].maxlag = 2
        o += st
    for x in o: x.earliest = e
    return o

HL = []
def front_tail(ctx):
    S, misc, vm, bars, barpos = ctx["S"], ctx["misc"], ctx["vm"], ctx["bars"], ctx["barpos"]
    HL.append(ctx["h_last"])
    pl = poll("kv", VT + 10, L(f"s_lshl_b32 s{S_PO}, s{S_H}, 2", f"s_add_u32 s{S_PO}, s{S_PO}, {DBG_KV}"), 8, S[106], S[116])
    misc += pl
    su = L(f"""s_mul_i32 s{S_DSO}, s{S_H}, {hex(KV_HEAD)}
      s_add_u32 s{S_DSO}, s{S_DSO}, {hex(KV_BASE - 8192)}
      s_add_u32 s{S_CNT}, s{S_DSO}, s{S_WM0}""")
    misc += su
    o = []
    for sl in range(4):
        u = L(f"s_add_u32 m0, s{S_WM0}, {RING_A + sl * 16384}", f"s_add_u32 s{S_DT}, s{S_CNT}, {sl * 16384}")
        for k in range(4):
            x = I(f"buffer_load_dwordx4 v{VST}, s[{SRD_WS}:{SRD_WS+3}], s{S_DT} offen offset:{1024 * k} sc1 lds"); x.grp = ("kv", sl); u.append(x)
        o += u
    o[0].deps = [(su[-1], 0)]
    for x in o: x.earliest = S[123]
    assert vm[-1].earliest < S[123] + 16
    vm += o; ctx["cur"][0] = None
    su2 = L(f"""s_and_b32 s{S_PT}, s{S_W}, 1
      s_lshl_b32 s{S_PT}, s{S_PT}, 13
      s_add_u32 s{S_DSO}, s{S_DSO}, s{S_PT}""")
    su2 += [Bundle(L(f"s_cmp_lt_u32 s{S_W}, 2", f"s_cselect_b32 s{S_DM0}, {RING_A}, {RING_B}", f"s_cselect_b32 s{S_PO}, 4, 34"))]
    su2 += L(f"""s_lshl_b32 s{S_PO}, s{S_PO}, 14
      s_add_u32 s{S_DM0}, s{S_DM0}, s{S_PT}
      s_add_u32 s{S_DSO}, s{S_DSO}, s{S_PO}
      s_lshl_b32 s{S_PO}, s{S_J}, 1
      s_sub_u32 s{S_PO}, 15, s{S_PO}
      s_mul_i32 s{S_PO}, s{S_PO}, {hex(ACT_RB)}
      s_add_u32 s{S_ACT2}, s{S_ACT}, s{S_PO}
      v_add_u32 v{VK}, {RING_A}, v{VST}
      v_add_u32 v{VV}, {RING_A}, v{VST}
      v_mov_b32 v{VBAD}, 0
      s_lshl_b32 s{S_PT}, s{S_PT}, 1
      v_add_u32 v{VX}, s{S_PT}, v{VST}
      s_lshr_b32 s{S_PT}, s{S_PT}, 4
      s_add_u32 s{S_PT}, s{S_PT}, {LSUM}
      v_add_u32 v{VLS}, s{S_PT}, v{VST}""")
    misc += su2
    t = VT + 8
    mk = L(f"""v_and_b32 v{t}, 15, v0
      v_lshrrev_b32 v{t+1}, 4, v0
      v_lshlrev_b32 v{t+1}, 2, v{t+1}
      v_sub_u32 v{t}, v{t}, v{t+1}
      s_and_b32 s{S_PT}, s{S_W}, 1
      s_lshl_b32 s{S_PT}, s{S_PT}, 4
      v_add_u32 v{t}, s{S_PT}, v{t}
      v_mov_b32 v{t+1}, 0xff800000""")
    for kvb in range(2):
        for r in range(4):
            mk += [Bundle(L(f"v_cmp_le_i32 vcc, {16 * kvb + r}, v{t}", "s_nop 1", f"v_cndmask_b32 v{MK + 4 * kvb + r}, v{t+1}, 0, vcc".replace(", 0, vcc", f", v{VBAD}, vcc")))]
    for x in mk: x.earliest = S[121]
    misc += mk
    ng = L(*[f"v_mov_b32 v{NEGM + r}, 0" for r in range(16)]) + L(*[f"v_mov_b32 v{VNL + r}, 0" for r in range(4)])
    ng += L(*[f"v_mov_b32 v{MK + 8 + r}, v{MK + r}" for r in range(8)])
    for x in ng: x.earliest = S[121]
    misc += ng
    w = [WAITG("kv", 0), I("s_barrier")]
    w[0].deps = [(o[5], 100)]
    for f in range(8): w.append(I(f"ds_read_b128 {r4('a', A_K + 4 * f)}, v{VK} offset:{8192 + f * 1024}"))
    for x in w: x.earliest = S[134] + 4
    w[2].deps = [(su2[-1], 1)]
    pz = pz_setup()
    for x in pz: x.earliest = S[40]
    return [w, pz]

VCT, VWT = 29, 30
S_TW2, S_TWO, S_TWL, S_TWO2 = 59, 60, 61, 62
def wtouch_setup():
    return L(f"""s_sub_u32 s{S_TW2}, s{S_J}, 1
      s_sub_u32 s{S_TWO}, s{S_J}, 2
      s_mul_i32 s{S_TW2}, s{S_TW2}, s{S_TWO}
      s_and_b32 s{S_TWO}, s{S_W}, 1
      s_add_u32 s{S_TW2}, s{S_TW2}, s{S_TWO}
      s_mul_i32 s{S_TWL}, s{S_TW2}, {4 * 1152}
      s_mul_i32 s{S_TWO}, s{S_H}, {128 * 1152}
      s_add_u32 s{S_TWO2}, s{S_TWO}, {124 * 1152}
      s_add_u32 s{S_TWO}, s{S_TWO}, s{S_TWL}
      s_lshl_b32 s{S_TW2}, s{S_TW2}, 2
      s_lshr_b32 s{S_TWL}, s{S_H}, 3
      s_add_u32 s{S_TW2}, s{S_TW2}, s{S_TWL}
      s_mul_i32 s{S_TW2}, s{S_TW2}, {4 * 1152}
      s_and_b32 s{S_TWL}, s{S_H}, 7
      s_mul_i32 s{S_TWL}, s{S_TWL}, {576 * 1152}
      s_add_u32 s{S_TW2}, s{S_TW2}, s{S_TWL}
      s_add_u32 s{S_TWL}, s{S_TWL}, {572 * 1152}
      v_min_u32 v{VWT}, 17, v0
      v_lshlrev_b32 v{VWT}, 7, v{VWT}""")
def wtouch(info):
    o = L(f"""s_min_u32 s{S_TW2}, s{S_TW2}, s{S_TWL}
      buffer_load_dword a248, v{VWT}, s[{SRD_W2}:{SRD_W2+3}], s{S_TW2} offen
      s_min_u32 s{S_TWO}, s{S_TWO}, s{S_TWO2}
      buffer_load_dword a248, v{VWT}, s[{SRD_WO}:{SRD_WO+3}], s{S_TWO} offen
      buffer_load_dword a248, v{VWT}, s[{SRD_W2}:{SRD_W2+3}], s{S_TW2} offen offset:2304
      s_add_u32 s{S_TW2}, s{S_TW2}, {32 * 1152}
      buffer_load_dword a248, v{VWT}, s[{SRD_WO}:{SRD_WO+3}], s{S_TWO} offen offset:2304
      s_add_u32 s{S_TWO}, s{S_TWO}, {8 * 1152}""")
    for k, x in enumerate([x for x in o if x.kind == "vmem"]): x.wr = []; x.maxlag = 6; x.earliest = info[k]["start"] + 10
    return o
def ones():
    return (caddr(VCT, "Lpre_back") + [ctouch(VCT, "a248")] if "l" in CT else []) + L(f"v_mov_b32 v{VT}, 0x3f803f80") + L(*[f"v_accvgpr_write_b32 a{A_ONE + r}, v{VT}" for r in range(4)])

def head(isL):
    D = (1, 1) if isL else (0, 0)
    pers = [Per(0, pv=[], dma=(0, D[1]), early=True), Per(1, first=True, dma=D, kregs=A_K2), Per(2, dma=D), Per(3, dma=D)]
    def extra(info):
        xs = [ones()]
        info[3]["barwait"].waitfor.append(HL[0])
        if isL:
            sg = sig_group(0) + [Bundle(flag_addr(VL, 11, 4, None))] + [release("h"), sig_store(VL)]
            sg[-2].deps = [(info[3]["bar"], 0)]
            xs.append(sg)
            st = [I(f"ds_write_b128 v{VX+1}, {r4('v', q_reg(a, ds))} offset:{(4 * a + ds) * 1024}") for a in range(4) for ds in range(4)]
            st = L(f"v_add_u32 v{VX+1}, {STASH}, v{VX}") + st
            st[1].deps = [(info[0]["bar"], 0)]
            info[1]["barwait"].waitfor.append(st[-1]); info[1]["barwait"].deps.append((st[-1], 2))
            xs.append(st)
        if not isL:
            pf = L(f"""s_lshl_b32 s{S_PO}, s{S_J}, 1
              s_add_u32 s{S_PO}, s{S_PO}, s{S_W}
              s_sub_u32 s{S_PO}, s{S_PO}, 4
              s_mul_i32 s{S_PT}, s{S_H}, 18
              s_add_u32 s{S_PT}, s{S_PT}, s{S_PO}
              s_lshl_b32 s{S_PT}, s{S_PT}, 13
              v_lshlrev_b32 v{VL}, 7, v0
              buffer_load_dword v{VL+1}, v{VL}, s[{SRD_WO}:{SRD_WO+3}], s{S_PT} offen
              s_add_u32 s{S_PT}, s{S_PT}, {4 * 8192}
              buffer_load_dword v{VL+1}, v{VL}, s[{SRD_WO}:{SRD_WO+3}], s{S_PT} offen
              s_lshl_b32 s{S_PO}, s{S_PO}, 2
              s_lshr_b32 s{S_PT}, s{S_H}, 3
              s_add_u32 s{S_PO}, s{S_PO}, s{S_PT}
              s_and_b32 s{S_PT}, s{S_H}, 7
              s_mul_i32 s{S_PT}, s{S_PT}, 81
              s_add_u32 s{S_PT}, s{S_PT}, s{S_PO}
              s_lshl_b32 s{S_PT}, s{S_PT}, 13
              buffer_load_dword v{VL+1}, v{VL}, s[{SRD_W2}:{SRD_W2+3}], s{S_PT} offen
              s_add_u32 s{S_PT}, s{S_PT}, {25 * 8192}
              buffer_load_dword v{VL+1}, v{VL}, s[{SRD_W2}:{SRD_W2+3}], s{S_PT} offen""")
            ld = [x for x in pf if x.kind == "vmem"]
            for x in ld[:-1]: x.wr = []
            ld[0].deps = [(info[2]["bar"], 0)]
            xs.append(pf if "w" in os.environ.get("X", "") else wtouch_setup())
        cnt = L(f"s_mov_b32 s{S_CNT}, 7") if isL else L(f"s_sub_u32 s{S_CNT}, s{S_J}, 1")
        xs.append(cnt); xs.append(p4_setup())
        return xs
    return seq("head" + "SL"[isL], pers, 0, carry_in=False, extra=extra)

def loop(dma, label):
    D = (1, 1) if dma else (0, 0)
    pers = [Per(i, dma=D) for i in range(4)]
    tail = Bundle(L(f"s_cmp_lg_u32 s{S_CNT}, 0", f"s_cbranch_scc1 {label}"))
    def extra(info):
        pz = [I(f"buffer_store_dwordx4 {r4('a', A_Z)}, v{VPZ}, s[{SRD_PZ}:{SRD_PZ+3}], 0 offen offset:{1024 * k} sc1", earliest=info[k]["mid"] + 10) for k in range(4)]
        if "z" in os.environ.get("X", ""): pz = []
        PZ.extend(pz)
        return [L(f"s_sub_u32 s{S_CNT}, s{S_CNT}, 1") + ([ctouch(VCT, "a248", earliest=info[1]["mid"] + 20)] if "l" in CT else []), [] if dma or "o" in os.environ.get("X", "") else wtouch(info), pz + [I(f"v_add_u32 v{VPZ}, 0x1000, v{VPZ}", deadline=info[3]["end"] - 2)]]
    out = seq("loop" + "ND"[dma], pers, 0, extra=extra, tail=tail)
    pf = []
    if PROF == 4: pf = L(*[f"s_mov_b32 s{S_PROF+2*k}, s{S_PROF+2*k+2}" for k in range(2, 8)]) + stamp(8, 4)
    return L(label + ":") + pf + out

def gl_load():
    return L(f"""v_and_b32 v{VL+2}, 15, v0
        v_lshlrev_b32 v{VL+2}, 3, v{VL+2}
        s_sub_u32 s{S_PO}, 15, s{S_J}
        s_lshl_b32 s{S_PO}, s{S_PO}, 3
        s_and_b32 s{S_PT}, s{S_W}, 1
        s_add_u32 s{S_PO}, s{S_PO}, s{S_PT}
        s_lshl_b32 s{S_PO}, s{S_PO}, 7
        s_add_u32 s{S_PO}, s{S_PO}, {hex(G_BASE)}
        buffer_load_dword v{VGL}, v{VL+2}, s[{SRD_WS}:{SRD_WS+3}], s{S_PO} offen offset:512 sc1
        buffer_load_dword v{VGL+1}, v{VL+2}, s[{SRD_WS}:{SRD_WS+3}], s{S_PO} offen offset:768 sc1""")

def switch(j0):
    p0 = Per(0, mask=0, dma=(0, 1), dph=2) if not j0 else Per(0, mask=0, pv=[], dma=(0, 1), dph=2, early=True)
    pers = [p0,
            Per(1, qk=[1, 2, 3], mask=1, dph=3, pad=8, first=j0, kregs=A_K2 if j0 else A_K),
            Per(2, qk=[2, 3], mask=2, pv=[1, 2, 3], dph=0, pad=16),
            Per(3, qk=[3], mask=3, pv=[2, 3], dph=1, kph=2, pad=32),
            Per(2, pv=[3], vph=0, pad=18),
            Per(3, first=True, amajor=[0, 1, 2, 3], pad=26)]
    def extra(info):
        ep = []
        for a in range(4): ep += epi_own(a, info[a + 1]["odone"][a] + 8)
        q = L(f"v_add_u32 v{VX+1}, {STASH}, v{VX}")
        for a in range(4):
            for ds in range(4):
                q.append(I(f"ds_read_b128 {r4('v', q_reg(a, ds))}, v{VX+1} offset:{(4 * a + ds) * 1024}", earliest=max(info[a]["qkend"], info[2]["mid"])))
        sw = [I(f"v_add_u32 v{VK}, {RING_B - RING_A}, v{VK}", deps=[(info[2]["kreads"][-1], 0)]),
              I(f"v_add_u32 v{VV}, {RING_B - RING_A}, v{VV}", deps=[(info[4]["vreads"][-1], 0)])]
        info[3]["kreads"][0].deps.append((sw[0], 1)); info[5]["vreads"][0].deps.append((sw[1], 1))
        ng = []
        for a in range(4):
            for r in range(4): ng.append(I(f"v_mov_b32 v{NEGM + 4 * a + r}, v{VNL + a}", earliest=info[a]["qkend"] + 2))
        for r in range(8): ng.append(I(f"v_add_f32 v{MK + 8 + r}, v{MK + r}, v{NEGM}"))
        xs = [sw, q, ng, ep, gl_load() + L(f"s_sub_u32 s{S_CNT}, 6, s{S_J}")]
        if j0: xs.insert(0, ones()); info[3]["barwait"].waitfor.append(HL[0]); xs.append(p4_setup())
        return xs
    pre = []
    return seq("switch0" if j0 else "switch", pers, 0, carry_in=not j0, extra=extra, tail_ok=True)

def final(j7):
    pers = [Per(0, mask=0, dma=(1, 1)),
            Per(1, qk=[1, 2, 3], mask=1, dma=(1, 0), pad=0 if j7 else 8),
            Per(2, qk=[2, 3], mask=2, pv=[1, 2, 3], dma=(0, 0), pad=0 if j7 else 16),
            Per(3, qk=[3], mask=3, pv=[2, 3], dma=(0, 0), kread=False, pad=0 if j7 else 32),
            Per(0, qk=[], pv=[3], dma=(0, 0), kread=False, bar=False, vregs=A_K)]
    def extra(info):
        if j7:
            ep = []
            for a in range(4): ep += epi_own(a, info[a + 1]["odone"][a] + 8)
            pp = p4_pro("h7", 0, info[2]["bar"], info[3]["end"], info[4]["end"])
            w = wdma(1); w[0].deps = [(info[3]["bar"], 0)]
            return [pp + w, ep]
        x = L(f"v_add_u32 v{VX+1}, {STASH}, v{VX}")
        for a in range(2):
            e = info[a + 1]["odone"][a] + 8
            for db in range(8): x.append(I(f"ds_write_b128 v{VX+1}, {r4('a', a_o(db, a))} offset:{(8 * a + db) * 1024}", earliest=e))
            x.append(I(f"ds_write_b32 v{VLS}, a{A_L + 4 * a} offset:{4 * a}", earliest=e, deps=[(info[1]["bar"], 0)]))
        info[3]["barwait"].waitfor.append(x[-1]); info[3]["barwait"].deps.append((x[-1], 2))
        m = []
        for a in (2, 3):
            e = max(info[a + 1]["odone"][a] + 8, info[3]["qkend"] + 1)
            for db in range(8):
                for r in range(4): m.append(I(f"v_accvgpr_read_b32 v{mreg(a - 2, db) + r}, a{a_o(db, a) + r}", earliest=e))
            m.append(I(f"v_accvgpr_read_b32 v{VL + 2 * (a - 2)}, a{A_L + 4 * a}", earliest=e))
        return [x, p4_pro("hS", info[1]["start"], info[3]["bar"], info[3]["end"], info[4]["end"]), m]
    return seq("final7" if j7 else "final", pers, 0, carry_out=False, extra=extra, tail_ok=True)

def mreg(a2, db): return U(Q_UNITS[2 * a2 + (db >> 2)]) + 4 * (db & 3)
def nreg(a2, db): return SB[a2][db >> 2] + 4 * (db & 3)
VL2 = VT + 8

def finalize(isL):
    o = []
    for a2 in range(2):
        a = a2 if isL else a2 + 2
        vl = VL + 2 * a2
        sc = VT + 2 * a2
        o += L(f"v_add_f32 v{sc}, v{vl}, v{VL2 + a2}") + scale_ops(sc, VC + 2 * a if isL else VGL + a2) + L(f"v_mov_b32 v{sc+1}, v{sc}")
        for ds in range(4):
            for k in range(2):
                m, n = mreg(a2, 2 * ds + k), nreg(a2, 2 * ds + k)
                if isL:
                    for r in range(4): o += L(f"v_accvgpr_read_b32 v{n+r}, a{a_o(2*ds+k, a)+r}")
                for r in (0, 2): o += L(f"v_pk_add_f32 {r2('v', m+r)}, {r2('v', m+r)}, {r2('v', n+r)}")
                for r in (0, 2): o += L(f"v_pk_mul_f32 {r2('v', m+r)}, {r2('v', m+r)}, {r2('v', sc)}")
            m0, m1 = mreg(a2, 2 * ds), mreg(a2, 2 * ds + 1)
            o += L(f"v_cvt_pk_bf16_f32 v{m0}, v{m0}, v{m0+1}", f"v_cvt_pk_bf16_f32 v{m0+1}, v{m0+2}, v{m0+3}",
                   f"v_cvt_pk_bf16_f32 v{m0+2}, v{m1}, v{m1+1}", f"v_cvt_pk_bf16_f32 v{m0+3}, v{m1+2}, v{m1+3}")
            o += store_ctx(m0, S_ACT if isL else S_ACT2, ds, a)
    return o

def ltail():
    pers = [Per(0, dma=(0, 0)), Per(1, dma=(0, 0), kread=False),
            Per(2, qk=[], amajor=[2, 3, 0, 1], dma=(0, 0), kread=False, bar=False, vregs=A_K)]
    def extra(info):
        rd = L(f"v_add_u32 v{VX+1}, {STASH}, v{VX}")
        for a2 in range(2):
            for db in range(8): rd.append(I(f"ds_read_b128 {r4('v', mreg(a2, db))}, v{VX+1} offset:{(8 * a2 + db) * 1024}", earliest=info[1]["mid"] + 18))
            rd.append(I(f"ds_read_b32 v{VL2 + a2}, v{VLS} offset:{4 * a2}"))
        rd[1].deps = [(info[1]["bar"], 0)]
        x = rd + L(f"v_add_u32 v{VX+1}, {RING_A}, v{VX}")
        for a in (2, 3):
            e = info[2]["odone"][a] + 5
            x.append(I(f"ds_write_b32 v{VLS}, a{A_L + 4 * a} offset:{4 * a}", earliest=e))
            for db in range(8): x.append(I(f"ds_write_b128 v{VX+1}, {r4('a', a_o(db, a))} offset:{(8 * (a - 2) + db) * 1024}", earliest=e - 7 + db))
        x += [WAITLGKM(x[-1]), I("s_barrier")]
        return [x, p4_pro("hL", 0, info[1]["bar"], info[1]["end"], info[2]["end"])]
    o = seq("ltail", pers, 0, carry_out=False, extra=extra, tail_ok=True)
    o += wdma(1) + L(f"v_accvgpr_read_b32 v{VL}, a{A_L}", f"v_accvgpr_read_b32 v{VL+2}, a{A_L+4}") + finalize(True)
    return fix_hazards(o)

def smerge():
    o = L("s_barrier", f"v_add_u32 v{VX+1}, {RING_A}, v{VX}")
    for a2 in range(2):
        o += L(f"ds_read_b32 v{VL2 + a2}, v{VLS} offset:{4 * (a2 + 2)}")
        for db in range(8): o += L(f"ds_read_b128 {r4('v', nreg(a2, db))}, v{VX+1} offset:{(8 * a2 + db) * 1024}")
    return fix_hazards(o + wdma(1) + finalize(False))

def prepass():
    M = FR; T = FR + 4; CI = SB[1]; D = SB[0]
    o = L(f"""Lpre:
      s_waitcnt vmcnt(0) lgkmcnt(0)
      s_nop 7
      s_mul_i32 s{S_T0}, s{S_H}, {hex(KV_HEAD)}
      s_add_u32 s{S_T0}, s{S_T0}, {hex(KV_BASE)}
      s_lshl_b32 s{S_T1}, s{S_BLK}, 2
      s_sub_u32 s{S_T1}, 0, s{S_T1}
      v_mov_b32 v{T+1}, 0xff800000""")
    o += L(*[f"v_mov_b32 v{M+a}, v{T+1}" for a in range(4)])
    o += L(*[f"v_mov_b32 v{CI[k]+r}, 0" for k in range(2) for r in range(16)])
    o += L("Lpre_loop:")
    for f in range(8):
        o += L(f"buffer_load_dwordx4 {r4('a', A_V + 4 * f)}, v{VST2 if f >= 4 else VST}, s[{SRD_WS}:{SRD_WS+3}], s{S_T0} offen offset:{(f & 3) * 1024} sc1")
    for a in range(4):
        o += L(f"s_cmp_eq_i32 s{S_T1}, {a}", f"s_cbranch_scc0 Lpre_{a}")
        for k in range(2):
            for r in range(4):
                o += L(f"v_mov_b32 v{CI[k] + 4 * a + r}, v{MK + 4 * k + r}")
                if a: o += L(f"v_mov_b32 v{CI[k] + 4 * a - 4 + r}, v{T+1}")
        o += L(f"Lpre_{a}:")
    o += L("s_waitcnt vmcnt(0)", "s_nop 1")
    for k in range(2):
        for ds in range(4):
            for a in range(4):
                d = r4("v", D[k] + 4 * a)
                o += L(f"{MF} {d}, {r4('a', A_V + 16 * k + 4 * ds)}, {r4('v', q_reg(a, ds))}, {d if ds else r4('v', CI[k] + 4 * a)}")
    o += L("s_nop 7", "s_nop 7")
    for k in range(2):
        for a in range(4):
            for r in (0, 2): o += L(f"v_max3_f32 v{M+a}, v{D[k] + 4 * a + r}, v{D[k] + 4 * a + r + 1}, v{M+a}")
    o += L(f"""s_add_u32 s{S_T0}, s{S_T0}, 16384
      s_add_i32 s{S_T1}, s{S_T1}, 1
      s_cmp_lt_i32 s{S_T1}, 4
      s_cbranch_scc1 Lpre_loop""")
    for a in range(4):
        for sw in ("16", "32"):
            o += L(f"v_mov_b32 v{T}, v{M+a}", f"v_permlane{sw}_swap_b32 v{T}, v{M+a}", "s_nop 1", f"v_max_f32 v{M+a}, v{M+a}, v{T}")
        o += L(f"v_sub_f32 v{M+a}, 0, v{M+a}")
        o += L(*[f"v_mov_b32 v{NEGM + 4 * a + r}, v{M+a}" for r in range(4)])
    o += L(*[f"v_add_f32 v{MK + 8 + r}, v{MK + r}, v{M}" for r in range(8)])
    o += L(f"""s_lshr_b32 s{S_T0}, s{S_W}, 1
      s_lshl_b32 s{S_T0}, s{S_T0}, 10
      v_add_u32 v{VX+1}, {STASH}, v{VX}
      v_add_u32 v{T}, s{S_T0}, v{VX+1}
      ds_write_b128 v{T}, {r4('v', M)}
      s_waitcnt lgkmcnt(0)
      s_barrier
      ds_read_b128 {r4('v', VNL)}, v{VX+1}
      s_waitcnt lgkmcnt(0)
      s_branch Lpre_back""")
    return fix_hazards(o)

def k12(name, p4):
    K = Kernel(name, 256, 163840)
    pro, main = front(front_tail)
    K.add("pro", stamp(0) + entry("Lexit1") + pro)
    K.add("front", main + stamp(10) + stamp(1, 2) + stamp(1, 4) + L(f"s_cmp_lg_u32 s{S_SLOW}, 0", "s_cbranch_scc1 Lpre", "Lpre_back:", f"s_cmp_ge_u32 s{S_W}, 2", "s_cbranch_scc1 LS"))
    K.add("headL", head(True))
    K.add("loopD", loop(True, "LloopD"))
    K.add("afterD", stamp(9, 4) + L(f"s_cmp_eq_u32 s{S_J}, 7", "s_cbranch_scc1 Lfinal7", f"s_cmp_ge_u32 s{S_W}, 2", "s_cbranch_scc1 Lfinal"))
    K.add("ltail", stamp_bars(ltail(), [2, 3, 4], 2) + L("s_branch Ldone"))
    K.add("S0", L("LS:", f"s_cmp_eq_u32 s{S_J}, 0", "s_cbranch_scc1 Lswitch0"))
    K.add("headS", head(False) + L(f"s_cmp_eq_u32 s{S_CNT}, 0", "s_cbranch_scc1 Lswitch"))
    K.add("loopN", loop(False, "LloopN"))
    K.add("afterN", L(f"s_cmp_eq_u32 s{S_J}, 7", "s_cbranch_scc1 Lfinal7"))
    K.add("switch", L("Lswitch:") + switch(False) + L(f"s_cmp_lg_u32 s{S_CNT}, 0", "s_cbranch_scc1 LloopD"))
    K.add("final", L("Lfinal:") + stamp_bars(final(False) + smerge(), [2, 3, 4], 2) + L("s_branch Ldone"))
    K.add("switch0", L("Lswitch0:") + switch(True) + L("s_branch LloopD"))
    K.add("final7", L("Lfinal7:") + stamp_bars(final(True), [2, 3, 4], 2))
    K.add("bar7", L(f"s_cmp_lt_u32 s{S_W}, 2", "s_cbranch_scc1 Ldone", "s_barrier", "s_barrier", "s_barrier", "s_barrier"))
    a, b, c = p4()
    K.add("done", L("Ldone:") + stamp(11) + stamp(5, 2) + stamp(10, 4) + stamp(11, 4) + stamp(12, 4) + stamp(13, 4) + a + stamp_bars(b, list(range(6, 14)), 2) + c + prof_out(0, 15) + L("Lexit1:", "s_endpgm"))
    pf = ["pro", "front"]
    K.paths = [pf + ["headL", "loopD", "loopD", "loopD", "afterD", "ltail", "done"],
               pf + ["headL", "loopD", "loopD", "afterD", "final7", "bar7", "done"],
               pf + ["S0", "headS", "switch", "loopD", "loopD", "afterD", "final", "done"],
               pf + ["S0", "headS", "loopN", "loopN", "afterN", "switch", "final", "done"],
               pf + ["S0", "headS", "loopN", "afterN", "switch", "loopD", "afterD", "final", "done"],
               pf + ["S0", "headS", "loopN", "loopN", "afterN", "final7", "bar7", "done"],
               pf + ["S0", "switch0", "loopD", "loopD", "afterD", "final", "done"]]
    K.add("slow", [i for b in slow_blocks for i in b] + L("Lend:") + prepass())
    K.finish()
    return K
```

```python
from attn import *

def p4():
    DA = int(os.environ.get("DA", "8")); DC = int(os.environ.get("DC", "6")); CSP = int(os.environ.get("CSP", "24"))
    st_of = [s for s, n in enumerate(STG) for _ in range(n)]; sub_of = [q for n in STG for q in range(n)]
    spine = []; frags = []; done = {}
    NSEG = int(os.environ.get("NSEG", "8")); K0 = 34 - NSEG
    order = [(ks, mt) for ks in range(K0) for mt in range(9)] + [(ks, mt) for mt in range(9) for ks in range(K0, 34)]
    use = {}
    for ks, mt in order:
        w = r4("v", WF + 4 * (len(frags) % NF)); use.setdefault(ks, len(spine))
        for a in range(4):
            d = r4("v", acc(mt, a))
            spine.append(I(f"{MF} {d}, {w}, {bact(ks, a)}, {d if ks else '0'}")); done[(mt, a)] = len(spine) - 1
        frags.append((ks, mt, len(spine) - 1))
    N = len(spine)
    ds = []; pro_ds = []; bars = {}; bars_w = {}; barpos = {0: 0}; shift = 0
    for f, (ks, mt, b) in enumerate(frags):
        s = st_of[ks]
        e = frags[f - NF][2] if f >= NF else None
        if mt == 0 and sub_of[ks] == 0:
            w = [WAITG("w", s), I("s_barrier")]
            if f:
                w.insert(0, WAITLGKM(ds[-1])); barpos[s] = e + 4
                for x in w: x.earliest = e + 3; x.deadline = e + 4
                ds += w
            else: pro_ds += w
            bars[s] = w[-1]; bars_w[s] = w[0]
        for jj in range(2):
            x = I(f"ds_read_b64_tr_b16 {r2('v', WF + 4 * (f % NF) + 2 * jj)}, v{VA + s % 4} offset:{sub_of[ks] * 9216 + jj * 4608 + mt * 32}")
            if e is None: pro_ds.append(x)
            else:
                x.earliest = e + 2 * jj; x.deadline = e + 10 + 2 * jj; ds.append(x)
    al = {ks: aload(ks) for ks in range(6, 34)}
    vm = []
    for s in range(2, 9):
        o = wdma(s)
        t0 = barpos[s - 3] + 1 if s > 3 else 60 * (s - 2)
        for k, x in enumerate(o): x.earliest = t0 + 5 * k
        if s > 3: o[0].deps = [(bars[s - 3], 0)]
        vm += o
    av = []; aw = []
    pa, pb = poll2("ctx", VF + 2, 4, 4, 36 * (18 - DC) - 100, 36 * (18 - DC) - 4)
    for ks in range(6, 34):
        t0 = max(36 * (ks - DA), 24 * (ks - 6)) if ks < 18 else 36 * (18 - DC) + CSP * (ks - 18)
        for k, x in enumerate(al[ks]): x.earliest = t0 + 6 * k
        if ks == 18: al[ks][0].deps = [(pb, 0)]
        av += al[ks]
    for ks in range(1, 34):
        w = WAITG("a", ks); w.earliest = use[ks] - 4; w.deadline = use[ks] - 1; aw.append(w)
    for x in vm + av: x.maxlag = 6
    bars_w[1].waitfor += CTX_LAST
    misc = [Bundle(L(f"v_cmp_ne_u32 vcc, 0, v{VF}", "s_nop 4", "s_cbranch_vccnz Lrestart"), earliest=8)]
    slow_blocks.append(L(f"""Lrestart:
      s_waitcnt vmcnt(0) lgkmcnt(0)
      s_barrier
      s_movk_i32 s{S_SLOW}, 256
      s_branch Lstart"""))
    misc += [Bundle(L(f"s_cmp_lg_u32 s{S_W}, 0", f"s_cselect_b32 s{S_SIG}, 256, 0"))]
    misc += sig_group(4) + [Bundle(flag_addr(VF, 11, 4, None))] + [release("ctx"), sig_store(VF)]
    misc[-2].deps = [(bars[1], 0)]
    misc += L(f"""s_lshr_b32 s{S_RB}, s2, 3
      s_lshl_b32 s{S_RB}, s{S_RB}, 2
      s_bfe_u32 s{S_PT}, s{S_H}, 0x20001
      s_add_u32 s{S_RB}, s{S_RB}, s{S_PT}
      s_lshl_b32 s{S_RB}, s{S_RB}, 4
      s_and_b32 s{S_PT}, s{S_H}, 1
      s_add_u32 s{S_RB}, s{S_RB}, s{S_PT}
      s_mul_i32 s{S_RB}, s{S_RB}, 9216
      s_add_u32 s{S_RB}, s{S_RB}, {hex(PART_BASE)}
      s_and_b32 s{S_PT}, s{S_H}, 7
      s_movk_i32 s{S_P0}, 8192
      s_movk_i32 s{S_P0+1}, 16384""")
    def pstore(b, mt, ap):
        n = 9 * ap + mt
        return I(f"buffer_store_dwordx4 {r4('v', b)}, v{VST2 if n & 4 else VST}, s[{SRD_PZ}:{SRD_PZ+3}], {f's{S_P0 + (n >> 3) - 1}' if n >> 3 else '0'} offen offset:{(n & 3) * 1024} sc1")
    misc += L(f"""s_and_b32 s{S_PO}, s2, 0xf8
      s_lshl_b32 s{S_OB}, s{S_W}, 1
      s_add_u32 s{S_PO}, s{S_PO}, s{S_OB}
      s_lshl_b32 s{S_PO}, s{S_PO}, 6
      s_add_u32 s{S_PO}, s{S_PO}, s{S_PT}
      s_lshl_b32 s{S_PO}, s{S_PO}, 2
      s_add_u32 s{S_PO}, s{S_PO}, {hex(INBOX + 32)}""") + [Bundle(flag_addr(VF, 8, 2, None))]
    misc += L(f"s_sub_u32 s{S_OB}, 15, s{S_J}") + [Bundle(L(f"s_cmp_lt_u32 s{S_PT}, 4", f"s_cselect_b32 s{S_OB}, s{S_OB}, s{S_J}"))]
    misc += L(f"""s_lshl_b32 s{S_OB}, s{S_OB}, 3
      s_bfe_u32 s{S_CNT}, s{S_PT}, 0x10001
      s_add_u32 s{S_OB}, s{S_OB}, s{S_CNT}
      s_and_b32 s{S_CNT}, s{S_PT}, 1
      s_lshl_b32 s{S_CNT}, s{S_CNT}, 2
      s_add_u32 s{S_OB}, s{S_OB}, s{S_CNT}
      s_mul_i32 s{S_OB}, s{S_OB}, {16 * 1152}
      s_lshr_b32 s{S_CNT}, s{S_H}, 3
      s_mul_i32 s{S_CNT}, s{S_CNT}, 288
      s_add_u32 s{S_OB}, s{S_OB}, s{S_CNT}""")
    R0, R1, O0, O1, T = 28, 29, 30, 31, 36
    misc += L(f"""s_lshl_b32 s{S_CNT}, s{S_W}, 11
      v_add_u32 v{R0}, s{S_CNT}, v{VST}
      s_lshl_b32 s{S_CNT}, s{S_W}, 8
      s_add_u32 s{S_CNT}, s{S_CNT}, 8192
      v_lshl_add_u32 v{R1}, v0, 2, s{S_CNT}
      v_and_b32 v{T}, 15, v0
      v_mul_u32_u24 v{T}, 1152, v{T}
      v_lshrrev_b32 v{T+1}, 4, v0
      v_lshl_add_u32 v{T}, v{T+1}, 3, v{T}
      s_lshl_b32 s{S_CNT}, s{S_W}, 6
      v_add_u32 v{O0}, s{S_CNT}, v{T}
      v_lshrrev_b32 v{T}, 2, v0
      v_bfe_u32 v{T+1}, v0, 1, 1
      v_lshl_add_u32 v{T}, v{T+1}, 5, v{T}
      v_mul_u32_u24 v{T}, 1152, v{T}
      v_and_b32 v{T+1}, 1, v0
      v_lshl_add_u32 v{T}, v{T+1}, 2, v{T}
      s_lshl_b32 s{S_CNT}, s{S_W}, 3
      s_add_u32 s{S_CNT}, s{S_CNT}, 256
      v_add_u32 v{O1}, s{S_CNT}, v{T}
      s_movk_i32 s{S_MASK}, 255
      s_add_u32 s{S_CNT}, s{S_OB}, {32 * 1152}""")
    A0 = 40
    misc += L(*[f"v_mov_b32 v{A0+d}, 0" for d in range(18)])
    FT = int(os.environ.get("FT", "80"))
    misc += [WAITVM(*PZ), sig_store(VF)]; misc[-2].deadline = 800; misc[-1].earliest = N - FT; misc[-1].deadline = N - FT + 6
    R0T = int(os.environ.get("R0T", "0")); R0S = int(os.environ.get("R0S", "0"))
    pr, prb = poll2("red", VF + 2, 8, 8, N - R0T - 70, N - R0T - 4)
    pol = pa + [pb] + pr + [prb]
    def rreg(p, d): return (ACC + 8 * p + d) if d < 8 else VZ + p
    def rload(p):
        return L(f"""s_add_u32 s{S_AT}, s{S_RB}, {18432 * p}
          buffer_load_dwordx4 {r4('v', rreg(p, 0))}, v{R0}, s[{SRD_WS}:{SRD_WS+3}], s{S_AT} offen sc1
          buffer_load_dwordx4 {r4('v', rreg(p, 4))}, v{R0}, s[{SRD_WS}:{SRD_WS+3}], s{S_AT} offen offset:1024 sc1
          buffer_load_dword v{rreg(p, 8)}, v{R1}, s[{SRD_WS}:{SRD_WS+3}], s{S_AT} offen sc1""")
    epi = []; est = []
    for mt in range(9):
        for ap in range(2):
            b0, b1 = acc(mt, 2 * ap), acc(mt, 2 * ap + 1)
            o = L(f"v_cvt_pk_bf16_f32 v{b0}, v{b0}, v{b0+1}", f"v_cvt_pk_bf16_f32 v{b0+1}, v{b0+2}, v{b0+3}",
                  f"v_cvt_pk_bf16_f32 v{b0+2}, v{b1}, v{b1+1}", f"v_cvt_pk_bf16_f32 v{b0+3}, v{b1+2}, v{b1+3}")
            o += L(*[f"v_min_u32 v{b0+r}, -2, v{b0+r}" for r in range(4)]) + [pstore(b0, mt, ap)]
            for x in o: x.earliest = done[(mt, 2 * ap + 1)] + 5
            o[-1].maxlag = 2
            epi += o; est.append(o[-1])
    r0 = []
    for p in range(8):
        o = rload(p)
        for k, x in enumerate(o): x.earliest = max(N - R0T + R0S * (3 * p + k), est[p].earliest); x.maxlag = 2
        o[1].deps = [(est[p], 2)]
        r0 += o
    r0[0].deps = [(prb, 0), (av[-1], 0)]
    if R0T == 0:
        prb.sub[0:0] = (stamp(14) if PROF != 3 else stamp(1, 3)) + [WAITVM(pr[-1])]; prb.sub += stamp(2, 3); prb.deps = [(est[-1], 0)]; prb.maxlag = 0
    ct = caddr(249, "Ldone") + [ctouch(249, "a248", earliest=t) for t in (20, 300, 600, 850)] if "p" in CT else []
    main = fix_hazards(schedule(spine, [ds, aw, vm, av, pol, misc, epi, r0, ct], verbose="p4", nprio=2))
    if PROF:
        mf = [i for i, x in enumerate(main) if x.kind == "mfma"]
        main[mf[648]:mf[648]] = stamp(13)
    red = (stamp(14) if R0T else []) + stamp(3, 3) + (L(*[f"s_mov_b32 s{S_PROF+2*k}, 1" for k in range(4, 14)]) if PROF == 3 else []) + L(f"s_load_dwordx2 s[{SRD_OUT}:{SRD_OUT+1}], s[0:1], 80") + srd(SRD_OUT, SRD_OUT, 2048 * 1152) + L("Lchk:")
    rt = L("Lretry:")
    if PROF == 3:
        rt += L(f"s_add_u32 s{S_PROF+26}, s{S_PROF+26}, 1")
        for k in range(4, 12): rt += L(f"s_cmp_eq_u32 s{S_PROF+26}, {k-2}", f"s_cbranch_scc0 Lps{k}") + stamp(k, 3) + L(f"Lps{k}:")
    for p in range(8):
        r = [rreg(p, d) for d in range(9)]
        red += L(f"""s_bitcmp1_b32 s{S_MASK}, {p}
          s_cbranch_scc0 Lskip{p}
          v_max3_u32 v{T}, v{r[0]}, v{r[1]}, v{r[2]}
          v_max3_u32 v{T}, v{T}, v{r[3]}, v{r[4]}
          v_max3_u32 v{T}, v{T}, v{r[5]}, v{r[6]}
          v_max3_u32 v{T}, v{T}, v{r[7]}, v{r[8]}
          v_cmp_eq_u32 vcc, -1, v{T}
          s_cbranch_vccnz Lskip{p}""")
        for d in range(9):
            red += L(f"v_lshlrev_b32 v{T}, 16, v{r[d]}", f"v_and_b32 v{T+1}, 0xffff0000, v{r[d]}",
                     f"v_pk_add_f32 {r2('v', A0+2*d)}, {r2('v', A0+2*d)}, {r2('v', T)}")
        red += L(f"s_bitset0_b32 s{S_MASK}, {p}", f"Lskip{p}:")
        rt += L(f"s_bitcmp1_b32 s{S_MASK}, {p}", f"s_cbranch_scc0 Lrskip{p}") + rload(p) + L(f"Lrskip{p}:")
    slow_blocks.insert(0, rt + L("s_waitcnt vmcnt(0)", "s_branch Lchk"))
    red += L(f"s_cmp_lg_u32 s{S_MASK}, 0", "s_cbranch_scc1 Lretry") + (stamp(14) if PROF == 3 else [])
    D0 = 64
    for d in range(9): red += L(f"v_cvt_pk_bf16_f32 v{D0+d}, v{A0+2*d}, v{A0+2*d+1}")
    for t in range(2):
        for a in range(2):
            red += L(f"buffer_store_dwordx2 {r2('v', D0 + 4 * t + 2 * a)}, v{O0}, s[{SRD_OUT}:{SRD_OUT+3}], s{S_CNT if a else S_OB} offen offset:{32 * t}")
    red += L(f"buffer_store_dword v{D0+8}, v{O1}, s[{SRD_OUT}:{SRD_OUT+3}], s{S_OB} offen")
    ck = L(f"""v_cmp_lt_u32 vcc, 0x40000000, v{VBAD}
      s_lshr_b32 s{S_PT}, s{S_SLOW}, 8
      s_lshl_b32 s{S_PO}, s{S_W}, 2
      v_mov_b32 v{VF+1}, s{S_PO}
      s_cmp_lg_u64 vcc, 0
      s_cselect_b32 s{S_PO}, 1, 0
      s_andn2_b32 s{S_PO}, s{S_PO}, s{S_PT}
      v_mov_b32 v{VF}, s{S_PO}
      ds_write_b32 v{VF+1}, v{VF}
      v_and_b32 v{VF+1}, 3, v0
      v_lshlrev_b32 v{VF+1}, 2, v{VF+1}
      s_waitcnt lgkmcnt(0)""")
    pro = fix_hazards(ck + pro_ds[:2] + [WAITG("a", 0)] + pro_ds[2:] + L(f"ds_read_b32 v{VF}, v{VF+1}") + stamp(12))
    return pro, main, fix_hazards(red)

def full(name):
    K = k12(name, p4)
    return K
```

```python
from common import *

S_W, S_H, S_J, S_SLOW = 3, 4, 5, 6
SRD_C, SRD_X, SRD_UK, SRD_UV, SRD_WS, SRD_W1, SRD_WQ, SRD_DBG = 8, 12, 16, 24, 20, 28, 32, 36
SRD_G = 40
SRD_W2, SRD_WO = SRD_X, SRD_G
S_T0, S_T1, S_T2, S_T3 = 44, 45, 46, 47
S_DT = 48
S_ET = 49
S_WM0, S_AM0 = 50, 51
S_CB, S_XB = 52, 53
S_WB, S_W1B, S_W1X = 54, 55, 56
S_KV = 57
S_ACT = 58
S_HK = 59
S_HX = 60
S_KSC, S_NL2E = 61, 62
S_BLK = 63
VTR, VTRX, VDMA, VDMA1, VDMAX, VCD, VXD, VAR, VST, VST2, VC = 1, 5, 7, 8, 9, 10, 12, 14, 16, 17, 20
VC = 20
VG = 24
VPF = 47
VT = 28
FR = 48
U0 = 64
def U(n): return U0 + 16 * n
KSCALE = LOG2E / (128 ** 0.5)
S_LOC = 52
DBG_XC = 160
SC = os.environ.get("SC", ""); SCX = os.environ.get("SCX", " sc1")
DBG_G, DBG_KV = 0, 32

def setup():
    t0, t1, t2, t3 = VT, VT + 1, VT + 2, VT + 3
    o = L(f"""
      s_load_dwordx2 s[{SRD_X}:{SRD_X+1}], s[0:1], 0
      s_load_dwordx2 s[{SRD_G}:{SRD_G+1}], s[0:1], 72
      s_load_dwordx2 s[{SRD_C}:{SRD_C+1}], s[0:1], 8
      s_load_dwordx2 s[{SRD_UK}:{SRD_UK+1}], s[0:1], 24
      s_load_dwordx2 s[{SRD_UV}:{SRD_UV+1}], s[0:1], 32
      s_load_dwordx2 s[{SRD_WS}:{SRD_WS+1}], s[0:1], 96
      s_load_dwordx2 s[{SRD_W1}:{SRD_W1+1}], s[0:1], 56
      s_load_dwordx2 s[{SRD_WQ}:{SRD_WQ+1}], s[0:1], 16
      s_load_dwordx2 s[{SRD_DBG}:{SRD_DBG+1}], s[0:1], 88
      s_and_b32 s{S_H}, s2, 31
      s_lshr_b32 s{S_J}, s2, 5
    """)
    o += L(f"""
      v_lshrrev_b32 v{t0}, 3, v0
      s_lshl_b32 s{S_T0}, s{S_W}, 3
      v_add_u32 v{t0}, s{S_T0}, v{t0}
      v_and_b32 v{t2}, 3, v{t0}
      v_bfe_u32 v{t1}, v{t0}, 2, 2
      v_lshl_add_u32 v{t2}, v{t1}, 3, v{t2}
      v_lshrrev_b32 v{t1}, 4, v{t0}
      v_lshl_add_u32 v{t2}, v{t1}, 2, v{t2}
      v_bfe_u32 v{t0}, v{t0}, 1, 2
      v_bfe_u32 v{t1}, v0, 1, 2
      v_xor_b32 v{t0}, v{t0}, v{t1}
      v_and_b32 v{t1}, 1, v0
      v_lshlrev_b32 v{t1}, 4, v{t1}
      v_lshl_add_u32 v{t3}, v{t0}, 5, v{t1}
      v_lshl_add_u32 v{VDMA}, v{t2}, 13, v{t3}
      v_mul_u32_u24 v{t2}, 9216, v{t2}
      v_add_u32 v{VDMA1}, v{t2}, v{t3}
    """)
    o += L(f"""
      v_lshrrev_b32 v{t0}, 4, v0
      v_and_b32 v{t1}, 7, v0
      v_xor_b32 v{t0}, v{t0}, v{t1}
      v_lshlrev_b32 v{t0}, 4, v{t0}
      v_lshrrev_b32 v{t1}, 3, v0
      v_lshl_add_u32 v{VCD}, v{t1}, 10, v{t0}
      v_xor_b32 v{VCD+1}, 64, v{VCD}
      s_lshl_b32 s{S_WM0}, s{S_W}, 12
      s_mul_i32 s{S_AM0}, s{S_W}, 24576
      s_add_u32 s{S_AM0}, s{S_AM0}, 0x10000
      s_lshl_b32 s{S_T0}, s{S_J}, 2
      s_add_u32 s{S_T0}, s{S_T0}, s{S_W}
      s_lshl_b32 s{S_CB}, s{S_T0}, 16
      s_lshl_b32 s{S_WB}, s{S_H}, 8
    """)
    o += srd(SRD_C, SRD_C, 2048 * 1024) + srd(SRD_UK, SRD_UK, 512 * 8192) + srd(SRD_X, SRD_X, 2048 * 1152) + srd(SRD_G, SRD_G, 1152)
    return o

def setup2():
    t0, t1, t2, t3 = VT, VT + 1, VT + 2, VT + 3
    o = L(f"s_load_dwordx2 s[{SRD_W2}:{SRD_W2+1}], s[0:1], 64", f"s_load_dwordx2 s[{SRD_WO}:{SRD_WO+1}], s[0:1], 40",
          f"s_mov_b32 s{SRD_W2+2}, {4608 * 1152}", f"s_mov_b32 s{SRD_WO+2}, {4096 * 1152}")
    o += srd(SRD_UV, SRD_UV, 512 * 8192) + srd(SRD_WS, SRD_WS, WS_SIZE) + srd(SRD_W1, SRD_W1, 576 * 9216) + srd(SRD_WQ, SRD_WQ, 576 * 8192) + srd(SRD_DBG, SRD_DBG, 256)
    if "h" in os.environ.get("X", ""): o += L(f"s_add_u32 s{SRD_WS}, s{SRD_WS}, 0x8000000", f"s_addc_u32 s{SRD_WS+1}, s{SRD_WS+1}, 0")
    o += L(f"""
      v_bfe_u32 v{t0}, v0, 2, 3
      v_lshlrev_b32 v{t0}, 7, v{t0}
      v_and_b32 v{t1}, 3, v0
      v_lshl_add_u32 v{t0}, v{t1}, 3, v{t0}
      v_lshrrev_b32 v{t1}, 5, v0
      v_lshl_add_u32 v{t0}, v{t1}, 12, v{t0}
      v_bfe_u32 v{t1}, v0, 3, 2
    """)
    for nb in range(4):
        o += L(f"v_xor_b32 v{t2}, {nb}, v{t1}", f"v_lshl_add_u32 v{VTR+nb}, v{t2}, 5, v{t0}")
    o += L(f"""
      v_lshlrev_b32 v{t0}, 3, v0
      v_add_u32 v{VTRX}, {0x10000 + 16384}, v{t0}
      v_add_u32 v{VTRX+1}, {0x10000 + 16384 + 49152}, v{t0}
      v_lshrrev_b32 v{t0}, 1, v0
      v_and_b32 v{t2}, 3, v{t0}
      v_bfe_u32 v{t1}, v{t0}, 2, 2
      v_lshl_add_u32 v{t2}, v{t1}, 3, v{t2}
      v_lshrrev_b32 v{t1}, 4, v{t0}
      v_lshl_add_u32 v{t2}, v{t1}, 2, v{t2}
      s_lshl_b32 s{S_T0}, s{S_W}, 5
      v_add_u32 v{t2}, s{S_T0}, v{t2}
      v_mul_u32_u24 v{t2}, 9216, v{t2}
      v_and_b32 v{t1}, 1, v0
      v_lshl_add_u32 v{VDMAX}, v{t1}, 4, v{t2}
    """)
    o += L(f"""
      v_and_b32 v{t0}, 15, v0
      v_lshrrev_b32 v{t1}, 1, v{t0}
      v_lshrrev_b32 v{t2}, 4, v0
      v_xor_b32 v{t1}, v{t1}, v{t2}
      v_lshlrev_b32 v{t1}, 4, v{t1}
      v_lshl_add_u32 v{t1}, v{t0}, 7, v{t1}
      v_add_u32 v{VAR}, s{S_AM0}, v{t1}
      v_xor_b32 v{VAR+1}, 64, v{VAR}
      v_lshlrev_b32 v{VST}, 4, v0
      v_add_u32 v{VST2}, 0x1000, v{VST}
    """)
    o += L(f"""
      s_lshl_b32 s{S_T0}, s{S_J}, 2
      s_add_u32 s{S_T0}, s{S_T0}, s{S_W}
      s_lshl_b32 s{S_T0}, s{S_T0}, 15
      s_mul_i32 s{S_T1}, s{S_H}, {hex(KV_HEAD)}
      s_add_u32 s{S_T0}, s{S_T0}, s{S_T1}
      s_add_u32 s{S_KV}, s{S_T0}, {hex(KV_BASE)}
      s_mov_b32 s{S_KSC}, {f2u(KSCALE)}
      s_mov_b32 s{S_NL2E}, {f2u(-LOG2E)}
      s_sub_u32 s{S_T0}, 15, s{S_J}
      s_cmp_lt_u32 s{S_W}, 2
      s_cselect_b32 s{S_BLK}, s{S_T0}, s{S_J}
      s_and_b32 s{S_T1}, s{S_W}, 1
      s_mul_i32 s{S_T0}, s{S_BLK}, 144
      s_add_u32 s{S_T0}, s{S_T0}, s{S_T1}
      s_lshl_b32 s{S_XB}, s{S_T0}, 10
      s_add_u32 s{S_XB}, s{S_XB}, {hex(XI_BASE)}
      s_and_b32 s{S_T0}, s{S_H}, 7
      s_mul_i32 s{S_ACT}, s{S_T0}, {hex(ACT_G)}
      s_mul_i32 s{S_T2}, s{S_BLK}, {hex(ACT_RB)}
      s_add_u32 s{S_ACT}, s{S_ACT}, s{S_T2}
      s_lshl_b32 s{S_T1}, s{S_T1}, 10
      s_add_u32 s{S_ACT}, s{S_ACT}, s{S_T1}
      s_add_u32 s{S_ACT}, s{S_ACT}, {hex(ACT_BASE)}
      s_lshr_b32 s{S_T1}, s{S_H}, 4
      s_bfe_u32 s{S_T2}, s{S_H}, 0x10003
      s_lshl_b32 s{S_T0}, s{S_T0}, 1
      s_add_u32 s{S_T0}, s{S_T0}, s{S_T1}
      s_mul_i32 s{S_T0}, s{S_T0}, 576
      s_lshl_b32 s{S_T3}, s{S_T2}, 8
      s_add_u32 s{S_W1B}, s{S_T0}, s{S_T3}
      s_lshl_b32 s{S_T3}, s{S_T2}, 5
      s_add_u32 s{S_W1X}, s{S_T0}, s{S_T3}
      s_add_u32 s{S_W1X}, s{S_W1X}, 512
      s_mul_i32 s{S_T0}, s{S_T1}, {9 * 8192}
      s_add_u32 s{S_T0}, s{S_T0}, s{S_ACT}
      s_lshl_b32 s{S_T3}, s{S_T2}, 15
      s_add_u32 s{S_HK}, s{S_T0}, s{S_T3}
      s_lshl_b32 s{S_T3}, s{S_T2}, 3
      s_add_u32 s{S_HX}, s{S_T0}, s{S_T3}
      s_add_u32 s{S_HX}, s{S_HX}, {8 * 8192}
      s_lshr_b32 s{S_T1}, s{S_H}, 3
      s_lshl_b32 s{S_T1}, s{S_T1}, 15
      s_add_u32 s{S_ACT}, s{S_ACT}, s{S_T1}
      s_add_u32 s{S_ACT}, s{S_ACT}, {18 * 8192}
    """)
    return o

def gate_loads(vx, vg, voff, t0):
    return L(f"""
      v_lshrrev_b32 v{t0}, 5, v0
      s_sub_u32 s{S_T0}, 15, s{S_J}
      s_cmp_lt_u32 s{S_H}, 16
      s_cselect_b32 s{S_T0}, s{S_T0}, s{S_J}
      s_lshl_b32 s{S_T0}, s{S_T0}, 4
      s_and_b32 s{S_T1}, s{S_H}, 15
      s_add_u32 s{S_T0}, s{S_T0}, s{S_T1}
      s_lshl_b32 s{S_T0}, s{S_T0}, 2
      s_add_u32 s{S_T0}, s{S_T0}, s{S_W}
      s_lshl_b32 s{S_T0}, s{S_T0}, 1
      v_add_u32 v{voff+2}, s{S_T0}, v{t0}
      v_mul_u32_u24 v{voff}, 1152, v{voff+2}
      v_and_b32 v{t0}, 31, v0
      v_lshlrev_b32 v{voff+1}, 4, v{t0}
      v_add_u32 v{voff}, v{voff}, v{voff+1}
      buffer_load_dwordx4 {r4('v',vx)}, v{voff}, s[{SRD_X}:{SRD_X+3}], 0 offen
      buffer_load_dwordx4 {r4('v',vx+4)}, v{voff}, s[{SRD_X}:{SRD_X+3}], 0 offen offset:512
      buffer_load_dwordx4 {r4('v',vx+8)}, v{voff}, s[{SRD_X}:{SRD_X+3}], 0 offen offset:1024
      buffer_load_dwordx4 {r4('v',vg)}, v{voff+1}, s[{SRD_G}:{SRD_G+3}], 0 offen
      buffer_load_dwordx4 {r4('v',vg+4)}, v{voff+1}, s[{SRD_G}:{SRD_G+3}], 0 offen offset:512
      buffer_load_dwordx4 {r4('v',vg+8)}, v{voff+1}, s[{SRD_G}:{SRD_G+3}], 0 offen offset:1024
    """)

S_XS = 7
def ximg_loads(vd, t):
    return L(f"""
      s_sub_u32 s{S_T0}, 15, s{S_J}
      s_cmp_lt_u32 s{S_H}, 16
      s_cselect_b32 s{S_T0}, s{S_T0}, s{S_J}
      s_bfe_u32 s{S_T1}, s{S_H}, 0x30001
      s_and_b32 s{S_T2}, s{S_H}, 1
      s_mul_i32 s{S_T2}, s{S_T2}, 9
      s_mul_i32 s{S_XS}, s{S_T0}, 18
      s_add_u32 s{S_XS}, s{S_XS}, s{S_T2}
      s_lshl_b32 s{S_XS}, s{S_XS}, 3
      s_add_u32 s{S_XS}, s{S_XS}, s{S_T1}
      s_lshl_b32 s{S_XS}, s{S_XS}, 10
      s_add_u32 s{S_XS}, s{S_XS}, {hex(XI_BASE)}
      s_lshl_b32 s{S_T0}, s{S_T0}, 3
      s_add_u32 s{S_T0}, s{S_T0}, s{S_T1}
      s_mul_i32 s{S_T0}, s{S_T0}, {16 * 1152}
      s_lshl_b32 s{S_T2}, s{S_T2}, 6
      s_add_u32 s{S_T0}, s{S_T0}, s{S_T2}
      s_lshl_b32 s{S_T1}, s{S_W}, 6
      s_add_u32 s{S_T1}, s{S_T1}, s{S_T0}
      v_and_b32 v{t}, 15, v0
      v_mul_u32_u24 v{t}, 1152, v{t}
      v_and_b32 v{t+1}, 48, v0
      v_add_u32 v{t}, v{t}, v{t+1}
      buffer_load_dwordx4 {r4('v',vd)}, v{t}, s[{SRD_X}:{SRD_X+3}], s{S_T1} offen
      buffer_load_dwordx4 {r4('v',vd+4)}, v{t}, s[{SRD_X}:{SRD_X+3}], s{S_T1} offen offset:256
      buffer_load_dwordx4 {r4('v',vd+8)}, v{t}, s[{SRD_X}:{SRD_X+3}], s{S_T0} offen offset:512
    """)
def ximg_stores(vd):
    return L(f"""
      s_lshl_b32 s{S_PO}, s{S_W}, 13
      s_add_u32 s{S_PO}, s{S_PO}, s{S_XS}
      buffer_store_dwordx4 {r4('v',vd)}, v{VST}, s[{SRD_WS}:{SRD_WS+3}], s{S_PO} offen sc1
      s_add_u32 s{S_PO}, s{S_PO}, 32768
      buffer_store_dwordx4 {r4('v',vd+4)}, v{VST}, s[{SRD_WS}:{SRD_WS+3}], s{S_PO} offen sc1
      s_add_u32 s{S_PO}, s{S_XS}, 65536
      buffer_store_dwordx4 {r4('v',vd+8)}, v{VST}, s[{SRD_WS}:{SRD_WS+3}], s{S_PO} offen sc1
    """)

def gate_compute(vx, vg, voff, t):
    o = L(f"v_and_b32 v{t}, 31, v0", f"v_cmp_gt_u32 vcc, 8, v{t}", f"v_mov_b32 v{t+4}, 0", f"v_mov_b32 v{t+5}, 0")
    for r in range(8, 12): o += L(f"v_cndmask_b32 v{vx+r}, 0, v{vx+r}, vcc")
    for r in range(12):
        o += L(f"""
          v_lshlrev_b32 v{t}, 16, v{vx+r}
          v_and_b32 v{t+1}, 0xffff0000, v{vx+r}
          v_lshlrev_b32 v{t+2}, 16, v{vg+r}
          v_and_b32 v{t+3}, 0xffff0000, v{vg+r}
          v_fmac_f32 v{t+4}, v{t}, v{t+2}
          v_fmac_f32 v{t+5}, v{t+1}, v{t+3}""")
    z = t + 4
    o += L(f"""
      v_add_f32 v{z}, v{z}, v{t+5}
      v_add_f32_dpp v{z}, v{z}, v{z} quad_perm:[1,0,3,2] row_mask:0xf bank_mask:0xf
      v_add_f32_dpp v{z}, v{z}, v{z} quad_perm:[2,3,0,1] row_mask:0xf bank_mask:0xf
      v_add_f32_dpp v{z}, v{z}, v{z} row_half_mirror row_mask:0xf bank_mask:0xf
      v_add_f32_dpp v{z}, v{z}, v{z} row_mirror row_mask:0xf bank_mask:0xf
      v_mov_b32 v{t}, v{z}
      v_permlane16_swap_b32 v{t}, v{z}
      v_add_f32 v{z}, v{z}, v{t}
      v_mul_f32 v{t}, {f2u(LOG2E)}, v{z}
      v_exp_f32 v{t+3}, v{t}
      v_exp_f32 v{t+2}, -v{t}
      v_add_f32 v{t+3}, 1.0, v{t+3}
      v_add_f32 v{t+2}, 1.0, v{t+2}
      v_min_f32 v{t+3}, {f2u(1e30)}, v{t+3}
      v_rcp_f32 v{t+2}, v{t+2}
      v_lshlrev_b32 v{voff+2}, 3, v{voff+2}
      v_and_b32 v{t}, 31, v0
      v_cmp_eq_u32 vcc, 0, v{t}
      v_add_u32 v{voff+2}, {hex(G_BASE)}, v{voff+2}
      v_cndmask_b32 v{voff+2}, -1, v{voff+2}, vcc
      buffer_store_dwordx2 {r2('v',t+2)}, v{voff+2}, s[{SRD_WS}:{SRD_WS+3}], 0 offen sc1
    """)
    return fix_hazards(o)

def signal(soff_expr_ops, s_off, vt, inc=1):
    return L(f"""
      v_lshl_add_u32 v{vt}, v0, 8, s{S_SLOW}
      v_mov_b32 v{vt+1}, {inc}
    """) + soff_expr_ops + L(f"buffer_atomic_add v{vt+1}, v{vt}, s[{SRD_DBG}:{SRD_DBG+3}], s{s_off} offen sc1")

S_SIG = 64
S_PT = 65
S_PO = 66

class Panel:
    def __init__(self, name, nnb, srd, sbase, coff, kstride, vdma, wA, units, act):
        self.name = name; self.nnb = nnb; self.srd = srd; self.sbase = sbase; self.coff = coff
        self.kstride = kstride; self.vdma = vdma; self.wA = wA; self.units = units; self.act = act
        self.done = {}
    def acc(self, nb, a): return U(self.units[nb]) + 4 * a

def c_act(a, ks): return r4("a", 16 * ks + 4 * a)
def x_act(a, ks): return r4("v", U(10 + ks) + 4 * a) if ks < 2 else r4("a", 16 * (ks - 2) + 4 * a)
Q_UNITS = [5, 6, 4, 3]
def q_reg(a, ds): return U(Q_UNITS[ds]) + 4 * a

slow_blocks = []
def poll(tag, vf, soff_ops, count, t_issue, t_check):
    ld = f"buffer_load_dword v{vf}, off, s[{SRD_DBG}:{SRD_DBG+3}], s{S_PO} sc1"
    a = soff_ops + L(ld)
    for x in a: x.earliest = t_issue
    r = I(f"v_readfirstlane_b32 s{S_PT}, v{vf}", earliest=t_check, deps=[(a[-1], t_check - t_issue)])
    a[-1].deadline = t_issue + 8
    b = Bundle(L(f"s_cmp_ge_u32 s{S_PT}, {count}", f"s_cbranch_scc0 Lpoll_{tag}", f"Lback_{tag}:"), deps=[(r, 1)])
    slow_blocks.append(L(f"""Lpoll_{tag}:
      {ld}
      s_waitcnt vmcnt(0)
      v_readfirstlane_b32 s{S_PT}, v{vf}
      s_nop 1
      s_cmp_ge_u32 s{S_PT}, {count}
      s_cbranch_scc1 Lback_{tag}
      s_branch Lpoll_{tag}"""))
    return a + [r, b]

def signal(soff_ops, vt, inc=1):
    return L(f"v_lshl_add_u32 v{vt}, v0, 8, s{S_SIG}", f"v_mov_b32 v{vt+1}, {inc}") + soff_ops + \
           L(f"buffer_atomic_add v{vt+1}, v{vt}, s[{SRD_DBG}:{SRD_DBG+3}], s{S_PO} offen sc1")

S_PC = 100
def caddr(v, lo=None):
    o = L(f"v_lshlrev_b32 v{v}, 14, v0")
    if lo: o += L(f"v_add_u32 v{v}, {lo}-Lpc0, v{v}")
    return o + L(f"v_min_u32 v{v}, Lend-Lpc0-16388, v{v}")
def ctouch(v, dst, **kw):
    x = I(f"global_load_dword {dst}, v{v}, s[{S_PC}:{S_PC+1}]", **kw); x.wr = []; x.maxlag = 6
    return x
CT = os.environ.get("CT", "flp")

def xcc_ops():
    return L(f"""s_getreg_b32 s{S_PT}, hwreg(HW_REG_XCC_ID, 0, 3)
      s_and_b32 s{S_PO}, s{S_H}, 7
      s_lshl_b32 s{S_PO}, s{S_PO}, 3
      s_add_u32 s{S_PO}, s{S_PO}, s{S_PT}
      s_and_b32 s{S_PO}, s{S_PO}, 60
      s_add_u32 s{S_PO}, s{S_PO}, {DBG_XC}
      s_and_b32 s{S_PT}, s{S_PT}, 3
      s_lshl_b32 s{S_PT}, s{S_PT}, 3""")
def release(tag):
    slow_blocks.append(L(f"""Lwb_{tag}:
      buffer_wbl2 sc1
      s_waitcnt vmcnt(0)
      s_branch Lwbb_{tag}"""))
    return Bundle(L(f"s_cmp_eq_u32 s{S_LOC}, 0", f"s_cbranch_scc1 Lwb_{tag}", f"Lwbb_{tag}:"))

def front(tail_streams=None, qstore=False):
    K0 = Panel("K0", 4, SRD_UK, S_WB, 0, 32 * 8192, VDMA, True, [0, 1, 2, 3], c_act)
    K1 = Panel("K1", 4, SRD_UK, S_WB, 128, 32 * 8192, VDMA, True, [4, 5, 6, 7], c_act)
    V0 = Panel("V0", 4, SRD_UV, S_WB, 0, 32 * 8192, VDMA, False, [8, 10, 9, 11], c_act)
    V1 = Panel("V1", 4, SRD_UV, S_WB, 128, 32 * 8192, VDMA, False, [1, 3, 5, 7], c_act)
    Ha = Panel("Ha", 4, SRD_W1, S_W1B, 0, 32 * 9216, VDMA1, True, [0, 2, 4, 6], x_act)
    Hb = Panel("Hb", 5, SRD_W1, S_W1B, 128, 32 * 9216, VDMA1, True, [3, 7, 8, 9, 1], x_act)
    Q0 = Panel("Q0", 4, SRD_WQ, S_WB, 0, 32 * 8192, VDMA, True, [5, 2, 6, 0], x_act)
    Q1 = Panel("Q1", 4, SRD_WQ, S_WB, 128, 32 * 8192, VDMA, True, [4, 1, 3, 7], x_act)
    steps = []
    for ks in range(16): steps += [(K0, ks), (K1, ks)]
    SK = int(os.environ.get("SK", "6"))
    steps += [(V0, ks) for ks in range(SK)]
    for ks in range(16 - SK): steps += [(V1, ks), (V0, ks + SK)]
    steps += [(V1, ks) for ks in range(16 - SK, 16)]
    steps += [(Ha, ks) for ks in list(range(2, 18)) + [0, 1]]
    for P in (Hb, Q0, Q1): steps += [(P, ks) for ks in range(18)]
    T = len(steps); NF = 4
    spine = []; frags = []; S = []
    for t, (P, ks) in enumerate(steps):
        S.append(len(spine))
        for nb in range(P.nnb):
            w = r4("v", FR + 4 * (len(frags) % NF)); first = len(spine)
            for a in range(4):
                d = r4("v", P.acc(nb, a)); c = d if (nb, a) in P.done else "0"
                A, B = (w, P.act(a, ks)) if P.wA else (P.act(a, ks), w)
                spine.append(I(f"{MF} {d}, {A}, {B}, {c}")); P.done[(nb, a)] = len(spine) - 1
            frags.append((t, nb, first, len(spine) - 1))
    S.append(len(spine))
    ds = []; bars = {}; pro_ds = []; barpos = {}
    for f, (t, nb, a, b) in enumerate(frags):
        P, ks = steps[t]
        if nb == 0 and t % 2 == 0:
            wv = WAITG("w", t // 2); br = I("s_barrier"); bars[t // 2] = br
            if f >= NF:
                e = frags[f - NF][3]; barpos[t // 2] = e
                wv.earliest = br.earliest = max(0, e - 2); wv.deadline = br.deadline = e
                ds += [wv, br]
            else: pro_ds += [wv, br]; barpos[0] = 0
        for jj in range(2):
            r = FR + 4 * (f % NF) + 2 * jj
            if nb < 4:
                off = ((t % 16) >> 2) * 16384 + (t & 3) * 1024 + jj * 8192
                x = I(f"ds_read_b64_tr_b16 {r2('v', r)}, v{VTR+nb} offset:{off}")
            else:
                wq = ks & 3
                off = (wq & 1) * 24576 + (ks >> 2) * 1024 + jj * 512
                x = I(f"ds_read_b64_tr_b16 {r2('v', r)}, v{VTRX + (wq >> 1)} offset:{off}")
            if f < NF: pro_ds.append(x)
            else:
                e = frags[f - NF][3]; x.earliest = e + 2 * jj; x.deadline = e + 1 + 2 * jj
                ds.append(x)
    epi = []; hepi = []
    def pack(b0, b1, d=None):
        d = b0 if d is None else d
        return L(f"v_cvt_pk_bf16_f32 v{d}, v{b0}, v{b0+1}", f"v_cvt_pk_bf16_f32 v{d+1}, v{b0+2}, v{b0+3}",
                 f"v_cvt_pk_bf16_f32 v{d+2}, v{b1}, v{b1+1}", f"v_cvt_pk_bf16_f32 v{d+3}, v{b1+2}, v{b1+3}")
    def store4(b, sbase, off):
        hi = off & ~0x1fff
        o = []
        if hi: o += L(f"s_add_u32 s{S_ET}, s{sbase}, {hi}")
        o += L(f"buffer_store_dwordx4 {r4('v', b)}, v{VST2 if off & 0x1000 else VST}, s[{SRD_WS}:{SRD_WS+3}], s{S_ET if hi else sbase} offen offset:{off & 0xfff}{SC}")
        return o
    lastop = {}; sts = []
    SP = int(os.environ.get("SP", "26"))
    n_st = 0
    for P in (K0, K1, V0, V1):
        isK = P.name[0] == "K"; half = int(P.name[1])
        for n in range(8):
            x, y = (n >> 2, n & 3) if isK else (n & 1, n >> 1)
            tl = [(2 * x, y), (2 * x + 1, y)] if isK else [(y, 2 * x), (y, 2 * x + 1)]
            e = max(P.done[t] for t in tl) + 8
            ops = []
            if isK:
                for t in tl:
                    for r in range(4): ops += L(f"v_mul_f32 v{P.acc(*t)+r}, s{S_KSC}, v{P.acc(*t)+r}")
            d = P.acc(*tl[0]) if isK else P.acc(y & 2, n & 3)
            ops += pack(P.acc(*tl[0]), P.acc(*tl[1]), d)
            for q in ops: q.earliest = e
            epi += ops
            off = ((y >> 1) * 16384 + (y & 1) * 4096 + (2 * half + x) * 1024) if isK else (x * 16384 + 8192 + (4 * half + y) * 1024)
            st = store4(d, S_KV, off)
            te = S[32] + 24 + SP * n_st
            n_st += 1
            for q in st: q.earliest = max(e, te)
            st[-1].deps = [(ops[-1], 1)]
            sts += st
            lastop[(P.name, n)] = ops[-1]
    kv_te = te
    kv_last = sts[-1]
    hA, hB, hC, hD, hE = [], [], [], [], []
    NT = 8
    n = 0; tmp_free = {}
    gl_done = I("s_nop 0")
    first_fma = []
    for P in (Ha, Hb):
        for x in ([0, 1] if P.nnb == 4 else [2, 0, 1]):
            for a in range(4):
                tl = [(2 * x, a), (2 * x + 1, a)] if 2 * x + 1 < P.nnb else [(2 * x, a)]
                fin = []
                for t in tl:
                    e = P.done[t] + 8
                    for r in range(4):
                        v = P.acc(*t) + r; tm = VT + (n % NT)
                        m = I(f"v_mul_f32 v{tm}, s{S_NL2E}, v{v}", earliest=e)
                        if tm in tmp_free: m.deps = [(tmp_free[tm], 0)]
                        ex = I(f"v_exp_f32 v{tm}, v{tm}", earliest=e, deps=[(m, 0)])
                        fm = I(f"v_fma_f32 v{tm}, v{tm}, v{VC+2*a+1}, v{VC+2*a+1}", earliest=e, deps=[(ex, 1)])
                        rc = I(f"v_rcp_f32 v{tm}, v{tm}", earliest=e, deps=[(fm, 0)])
                        mu = I(f"v_mul_f32 v{v}, v{v}, v{tm}", earliest=e, deps=[(rc, 1)])
                        if not first_fma: first_fma.append(fm)
                        tmp_free[tm] = mu; n += 1; mu.span = 4
                        hA.append(m); hB.append(ex); hC.append(fm); hD.append(rc); hE.append(mu)
                    b = P.acc(*t); b0 = P.acc(*tl[0]); k = 2 * tl.index(t)
                    hE += [I(f"v_cvt_pk_bf16_f32 v{b0+k}, v{b}, v{b+1}", earliest=e), I(f"v_cvt_pk_bf16_f32 v{b0+k+1}, v{b+2}, v{b+3}", earliest=e)]
                b0 = P.acc(*tl[0])
                if len(tl) == 2:
                    st = store4(b0, S_HK, ((0 if P is Ha else 2) + x) * 8192 + a * 2048)
                else:
                    st = L(f"buffer_store_dwordx2 {r2('v', b0)}, v{VST2 if a >= 2 else VST}, s[{SRD_WS}:{SRD_WS+3}], s{S_HX} offen offset:{(a & 1) * 2048}{SCX}")
                for q in st: q.earliest = e
                st[0].deps = [(hE[-1], 0)]; st[-1].deps = [(hE[-1], 1)]
                sts += st
    h_last = sts[-1]
    qepi = []
    for pi, P in enumerate((Q0, Q1)):
        for x in range(2):
            for a in range(4):
                e = max(P.done[(2 * x, a)], P.done[(2 * x + 1, a)]) + 8
                assert P.acc(2 * x, a) == q_reg(a, 2 * pi + x)
                ops = pack(P.acc(2 * x, a), P.acc(2 * x + 1, a))
                for q in ops: q.earliest = e
                qepi += ops
    units = []
    for G in range(T // 2):
        tm = -1 if G < 8 else barpos[G - 6]
        for t in (2 * G, 2 * G + 1):
            P, ks = steps[t]
            if P.nnb == 5 and ks % 4 == 0: units.append((tm, "x", t))
            units.append((tm, "w", t))
    rd_time = [None] + [S[4 * c - 2] for c in range(1, 8)]
    areads = []; pro_ar = []; last_rd = {}
    for c in range(8):
        ops = [WAITG("act", c)]
        for kb in range(2):
            for a in range(4):
                ops.append(I(f"ds_read_b128 {c_act(a, 2 * c + kb)}, v{VAR+kb} offset:{(c % 3) * 8192 + a * 2048}"))
        last_rd[c] = ops[-1]
        if c == 0: pro_ar = ops; continue
        for q in ops: q.earliest = rd_time[c]
        areads += ops
    for c in range(8):
        tm = -1 if c < 3 else (rd_time[c - 3] or 0) + 16
        for nn in range(8): units.append((tm + (3 * nn if tm >= 0 else 0), "a", (c, nn)))
    first = [u for u in units if u[0] < 0]; rest = sorted([u for u in units if u[0] >= 0], key=lambda u: u[0])
    W = [u for u in first if u[1] == "w"]; A = [u for u in first if u[1] == "a"]
    first = W[0:2] + A[0:8] + W[2:4] + A[8:16] + W[4:8] + A[16:24] + W[8:]
    cur = [None]
    def emit_unit(u):
        tm, kind, arg = u
        o = []; deps = []
        if kind == "w":
            t = arg; P, ks = steps[t]
            m0 = (S_WM0, ((t % 16) >> 2) * 16384); imm = (t & 3) * 1024
            so = P.coff + ks * P.kstride; sb = P.sbase; v = P.vdma; sr = P.srd; grp = ("w", t // 2)
            if t // 2 >= 8: deps = [(bars[t // 2 - 6], 0)]
        elif kind == "x":
            t = arg; P, ks = steps[t]
            m0 = (S_AM0, 16384 + (ks >> 4) * 4096); imm = ((ks >> 2) & 3) * 1024
            so = ks * P.kstride; sb = S_W1X; v = VDMAX; sr = P.srd; grp = ("w", t // 2)
        else:
            c, nn = arg
            m0 = (S_AM0, (c % 3) * 8192 + (nn >> 2) * 4096); imm = (nn & 3) * 1024
            so = 8 * nn * 1024 + (c % 3 if 'r' in os.environ.get('X', '') else c) * 128
            sb = S_CB; v = VCD + (nn & 1); sr = SRD_C; grp = ("act", c)
            if nn == 0 and c >= 3:
                o.append(WAITLGKM(last_rd[c - 3]))
                if c > 3: deps = [(last_rd[c - 3], 8)]
        if so < imm: m0 = (m0[0], m0[1] + imm); imm = 0
        if cur[0] != m0:
            o += L(f"s_add_u32 m0, s{m0[0]}, {m0[1]}"); cur[0] = m0
        o += L(f"s_add_u32 s{S_DT}, s{sb}, {so - imm}",
               f"buffer_load_dwordx4 v{v}, s[{sr}:{sr+3}], s{S_DT} offen" + (f" offset:{imm}" if imm else "") + " lds")
        o[-1].grp = grp
        for x in o: x.earliest = max(tm, 0)
        o[0].deps = deps
        return o
    pro_vm = [x for u in first for x in emit_unit(u)]
    vm = [x for u in rest for x in emit_unit(u)]
    lastd = {}
    for x in vm:
        if x.tag == "dma": lastd[x.grp] = x
    for x in ds + areads:
        if x.mn == "WAIT" and x.grp in lastd: x.deps = x.deps + [(lastd[x.grp], 64)]
    GX, GG, GO, GI = U(8), U(9), U(10), U(11)
    gl = gate_loads(GX, GG, GO, GO + 4) + ximg_loads(GI, GI + 12)
    gc = gate_compute(GX, GG, GO, GO + 8)
    misc = L(f"""s_lshl_b32 s{S_PO}, s{S_SIG}, 20
      v_lshl_add_u32 v{VT+8}, v0, 2, s{S_PO}
      v_mov_b32 v{VT+9}, 0
      s_lshl_b32 s{S_PO}, s2, 8
      s_add_u32 s{S_PO}, s{S_PO}, {hex(INBOX)}
      buffer_store_dword v{VT+9}, v{VT+8}, s[{SRD_WS}:{SRD_WS+3}], s{S_PO} offen sc1""")
    misc += xcc_ops() + L(f"s_lshl_b32 s{S_PT}, 1, s{S_PT}") + signal([], VT + 8, f"s{S_PT}")
    xs = ximg_stores(GI)
    for q in xs + gc: q.earliest = S[1]
    misc += xs + gc
    wv = WAITVM(gc[-1]); wv.earliest = S[14]; wv.deadline = barpos[9] - 3; wv.deps = [(gc[-1], 140)]
    misc += [wv]
    sg = signal(L(f"s_lshl_b32 s{S_PO}, s{S_J}, 2"), VT + 8); sg[-1].deps = [(bars[9], 0)]
    misc += sg
    misc += poll("g", VT + 10, L(f"s_lshl_b32 s{S_PO}, s{S_J}, 2"), 32, S[23 + SK], S[32 + SK])
    gpoll = misc[-1]
    xl = []; XSP = int(os.environ.get("XSP", "30")); te = 0
    for ks in list(range(2, 18)) + [0, 1]:
        o = L(f"s_add_u32 s{S_XS}, s{S_XB}, {(ks % 4 if 'y' in os.environ.get('X', '') else ks) * 8192}")
        for a in range(4):
            o += L(f"buffer_load_dwordx4 {x_act(a, ks)}, v{VST2 if a >= 2 else VST}, s[{SRD_WS}:{SRD_WS+3}], s{S_XS} offen offset:{(a & 1) * 2048} sc1")
        te = max(te + XSP, S[steps.index((V1, ks - 2)) + 1] if ks >= 2 else 0)
        for k, q in enumerate(o): q.earliest = te + (XSP * k) // 5
        if ks < 2: o[1].deps = [(lastop[("V0", 3 + 4 * ks)], 1)]
        u = S[steps.index((Ha, ks))]
        w = WAITVM(o[-1]); w.earliest = u - 4; w.deadline = u - 1
        areads.append(w); xl += o
    xl[0].deps = [(gpoll, 0)]
    misc += L(f"""v_and_b32 v{VT+8}, 15, v0
        v_lshlrev_b32 v{VT+8}, 3, v{VT+8}
        s_lshl_b32 s{S_PO}, s{S_BLK}, 3
        s_and_b32 s{S_PT}, s{S_W}, 1
        s_add_u32 s{S_PO}, s{S_PO}, s{S_PT}
        s_lshl_b32 s{S_PO}, s{S_PO}, 7
        s_add_u32 s{S_PO}, s{S_PO}, {hex(G_BASE)}""")
    for a in range(4): misc += L(f"buffer_load_dwordx2 {r2('v', VC + 2 * a)}, v{VT+8}, s[{SRD_WS}:{SRD_WS+3}], s{S_PO} offen offset:{256 * a} sc1")
    first_fma[0].deps.append((misc[-1], 160)); misc[-1].deadline = S[70]
    kb = min(b for b in barpos if barpos[b] - 3 >= kv_te + 190)
    wv = WAITVM(kv_last); wv.earliest = barpos[kb] - 8; wv.deadline = barpos[kb] - 3; wv.deps = [(kv_last, 170)]
    sg = signal(L(f"s_lshl_b32 s{S_PO}, s{S_H}, 2", f"s_add_u32 s{S_PO}, s{S_PO}, {DBG_KV}"), VT + 8)
    xc = xcc_ops() + L(f"buffer_load_dword v{VT+10}, off, s[{SRD_DBG}:{SRD_DBG+3}], s{S_PO} sc1")
    xr = L(f"v_lshrrev_b32 v{VT+10}, s{S_PT}, v{VT+10}", f"v_and_b32 v{VT+10}, 255, v{VT+10}", f"v_readfirstlane_b32 s{S_LOC}, v{VT+10}")
    xr[0].deps = [(xc[-1], 150)]; xr[2].deps = [(xr[1], 1)]
    xr += [Bundle(L(f"s_cmp_eq_u32 s{S_LOC}, {33 if 'n' in os.environ.get('X', '') else 32}", f"s_cselect_b32 s{S_LOC}, 1, s{S_W}"), deps=[(xr[2], 1)])]
    rl = release("kv"); rl.deps = [(bars[kb], 0)]
    misc += xc + xr + [wv] + sg[:-1] + [rl, sg[-1]]
    PT = [int(v) for v in os.environ.get("PT", "0,15,17").split(",")]
    H64 = "6" in os.environ.get("X", "")
    a, b2 = 44, 45
    def touch(sr, so, off=0, dup=True):
        o = L(f"buffer_load_dword v{VPF}, v{a}, s[{sr}:{sr+3}], s{so} offen" + (f" offset:{off}" if off else ""))
        if H64 and dup: o += L(f"buffer_load_dword v{VPF}, v{a}, s[{sr}:{sr+3}], s{so} offen offset:{off + 64}")
        for x in o: x.wr = []
        return o
    t1 = L(f"""s_lshl_b32 s{S_T0}, s{S_J}, 2
      s_add_u32 s{S_T0}, s{S_T0}, s{S_W}
      s_lshl_b32 s{S_T1}, s{S_T0}, 17
      s_add_u32 s{S_T1}, s{S_T1}, s{S_WB}
      v_lshrrev_b32 v{a}, 2, v0
      v_and_b32 v{b2}, 3, v0
      v_lshlrev_b32 v{b2}, 6, v{b2}
      v_lshl_add_u32 v{a}, v{a}, 13, v{b2}""") + touch(SRD_UV, S_T1, dup=False)
    EC = os.environ.get("EC", "m1")
    t0 = L(*[x.text for x in t1[:-1]]) + touch(SRD_UK, S_T1, dup=False)
    if EC[0] == "m":
        t0 += L(f"""s_lshl_b32 s{S_T1}, s2, 2
          s_add_u32 s{S_T1}, s{S_T1}, s{S_W}
          s_lshl_b32 s{S_T1}, s{S_T1}, 11
          v_lshlrev_b32 v{a}, 5, v0""") + touch(SRD_C, S_T1, dup=False)
    elif EC[0] == "l":
        t0 += L(f"""s_lshr_b32 s{S_T1}, s{S_H}, 3
          s_lshl_b32 s{S_T1}, s{S_T1}, 14
          s_add_u32 s{S_T1}, s{S_T1}, s{S_CB}
          v_lshlrev_b32 v{a}, 7, v0""") + touch(SRD_C, S_T1, dup=False) + L(f"s_add_u32 s{S_T1}, s{S_T1}, 8192") + touch(SRD_C, S_T1, dup=False)
    else: t0 = []
    t3 = L(f"""s_lshr_b32 s{S_T2}, s{S_H}, 3
      s_lshl_b32 s{S_T2}, s{S_T2}, 5
      s_add_u32 s{S_T2}, s{S_T2}, s{S_T0}
      s_mul_i32 s{S_T2}, s{S_T2}, 9
      s_lshr_b32 s{S_T2}, s{S_T2}, 1
      s_mul_i32 s{S_T2}, s{S_T2}, 9216
      s_and_b32 s{S_T1}, s{S_H}, 7
      s_mul_i32 s{S_T1}, s{S_T1}, 1152
      s_add_u32 s{S_T1}, s{S_T1}, s{S_T2}
      v_min_u32 v{a}, 44, v0
      v_mul_u32_u24 v{b2}, 57, v{a}
      v_lshrrev_b32 v{b2}, 9, v{b2}
      v_mul_u32_u24 v{b2}, 8064, v{b2}
      v_lshl_add_u32 v{a}, v{a}, 7, v{b2}""") + touch(SRD_W1, S_T1)
    t4 = L(f"""s_mul_i32 s{S_T1}, s{S_T0}, {18 * 8192}
      s_add_u32 s{S_T1}, s{S_T1}, s{S_WB}
      v_min_u32 v{a}, 35, v0
      v_and_b32 v{b2}, 1, v{a}
      v_lshrrev_b32 v{a}, 1, v{a}
      v_lshlrev_b32 v{b2}, 7, v{b2}
      v_lshl_add_u32 v{a}, v{a}, 13, v{b2}""") + touch(SRD_WQ, S_T1)
    pf = []
    for t, e in ((t1, S[PT[0]]), (t3, S[PT[1]]), (t4, S[PT[2]])):
        for x in t: x.earliest = e
        pf += t
    if "p" in os.environ.get("X", ""): pf = []
    if "f" in CT:
        ca = caddr(46)
        for x in ca: x.earliest = S[18]
        pf += ca + [ctouch(46, f"v{VPF}", earliest=S[t], deadline=S[t + 2]) for t in [int(v) for v in os.environ.get("CTF", "24,40,56,72,88,104").split(",")]]
    ctx = dict(S=S, bars=bars, barpos=barpos, steps=steps, misc=misc, vm=vm, cur=cur, qepi=qepi, h_last=h_last, spine=spine)
    extra = tail_streams(ctx) if tail_streams else []
    for x in vm + sts + xl: x.maxlag = 6
    streams = [ds, areads, vm, xl, pf, misc, sts, epi, hD, hB, hE, hC, hA, qepi] + extra
    main = schedule(spine, streams, verbose="front", nprio=2)
    last = max(i for i, x in enumerate(main) if x.kind == "mfma")
    body, tl = main[:last + 1], main[last + 1:]
    fixed = fix_hazards(body[-14:] + tl)
    assert fixed[:14] == body[-14:]
    main = body + fixed[14:]
    X = os.environ.get("X", "")
    if "s" in X: main = [x for x in main if not x.mn.startswith("buffer_store_dwordx4")]
    if "f" in X: main = [x for x in main if not (x.mn.startswith("buffer_atomic") or x.mn == "buffer_load_dword" or "Lpoll" in x.text)]
    if "x" in X: main = [x for x in main if not (x.tag == "dma" and f"s[{SRD_X}:" in x.text)]
    if PROF:
        mf = [i for i, x in enumerate(main) if x.kind == "mfma"]
        cut = [0] + [mf[S[t]] for t in (16, 32, 48, 64, 82, 100, 118)] + [len(main)]
        print("front est:", [est_cycles(main[a:b]) for a, b in zip(cut, cut[1:])])
        for q, t in reversed(list(enumerate((16, 32, 48, 64, 82, 100, 118)))): main[mf[S[t]]:mf[S[t]]] = stamp(3 + q)
    sig = L(f"s_cmp_lg_u32 s{S_W}, 0", f"s_cselect_b32 s{S_SIG}, 256, 0", f"s_add_u32 s{S_SIG}, s{S_SIG}, s{S_SLOW}")
    dm = [i for i, x in enumerate(pro_vm) if x.tag == "dma"]
    e0 = 0 if EC[1] == "0" else dm[9] + 1
    pro = fix_hazards(setup()) + pro_vm[:e0] + fix_hazards(t0) + pro_vm[e0:45] + stamp(1) + fix_hazards(gl) + pro_vm[45:] + fix_hazards(setup2() + sig) + pro_ar + pro_ds + stamp(2)
    return pro, main

def entry(exit_label):
    return fix_hazards(L(f"""
      s_cmp_ge_u32 s2, 256
      s_cbranch_scc1 {exit_label}
      v_lshrrev_b32 v1, 6, v0
      v_and_b32 v0, 63, v0
      v_readfirstlane_b32 s{S_W}, v1
      s_mov_b32 s{S_SLOW}, 0
    """) + (L(f"""
      s_getpc_b64 s[{S_T2}:{S_T3}]
      Lpc0:
      s_lshr_b32 s{S_T0}, s2, 1
      s_and_b32 s{S_T0}, s{S_T0}, 12
      s_add_u32 s{S_T0}, s{S_T0}, s{S_W}
      s_lshl_b32 s{S_T0}, s{S_T0}, 13
      v_lshl_add_u32 v1, v0, 7, s{S_T0}
      v_min_u32 v1, Lend-Lpc0-4, v1
      global_load_dword v{VPF}, v1, s[{S_T2}:{S_T3}]
      s_lshr_b32 s{S_T0}, s2, 1
      s_and_b32 s{S_T0}, s{S_T0}, 0x7c
      s_add_u32 s{S_T0}, s{S_T0}, s{S_W}
      s_lshl_b32 s{S_T0}, s{S_T0}, 7
      s_add_u32 s{S_PC}, s{S_T2}, s{S_T0}
      s_addc_u32 s{S_PC+1}, s{S_T3}, 0
    """) if "c" not in os.environ.get("X", "") else []) + L("Lstart:"))

def k1():
    K = Kernel("k1_kernel", 256, 163840)
    pro, main = front()
    K.add("pro", stamp(0) + entry("Lexit1") + pro)
    K.add("main", main + stamp(10) + prof_out(0, 11) + L("Lexit1:", "s_endpgm"))
    K.paths = [["pro", "main"]]
    K.add("slow", [i for b in slow_blocks for i in b])
    K.finish()
    return K
```

```python
from common import *

S_W, S_H, S_J, S_SLOW = 3, 4, 5, 6
SRD_C, SRD_X, SRD_UK, SRD_UV, SRD_WS, SRD_W1, SRD_WQ, SRD_DBG = 8, 12, 16, 24, 20, 28, 32, 36
SRD_G = 40
SRD_W2, SRD_WO = SRD_X, SRD_G
S_T0, S_T1, S_T2, S_T3 = 44, 45, 46, 47
S_DT = 48
S_ET = 49
S_WM0, S_AM0 = 50, 51
S_CB, S_XB = 52, 53
S_WB, S_W1B, S_W1X = 54, 55, 56
S_KV = 57
S_ACT = 58
S_HK = 59
S_HX = 60
S_KSC, S_NL2E = 61, 62
S_BLK = 63
VTR, VTRX, VDMA, VDMA1, VDMAX, VCD, VXD, VAR, VST, VST2, VC = 1, 5, 7, 8, 9, 10, 12, 14, 16, 17, 20
VC = 20
VG = 24
VPF = 47
VT = 28
FR = 48
U0 = 64
def U(n): return U0 + 16 * n
KSCALE = LOG2E / (128 ** 0.5)
S_LOC = 52
DBG_XC = 160
SC = os.environ.get("SC", ""); SCX = os.environ.get("SCX", " sc1")
DBG_G, DBG_KV = 0, 32

def setup():
    t0, t1, t2, t3 = VT, VT + 1, VT + 2, VT + 3
    o = L(f"""
      s_load_dwordx2 s[{SRD_X}:{SRD_X+1}], s[0:1], 0
      s_load_dwordx2 s[{SRD_G}:{SRD_G+1}], s[0:1], 72
      s_load_dwordx2 s[{SRD_C}:{SRD_C+1}], s[0:1], 8
      s_load_dwordx2 s[{SRD_UK}:{SRD_UK+1}], s[0:1], 24
      s_load_dwordx2 s[{SRD_UV}:{SRD_UV+1}], s[0:1], 32
      s_load_dwordx2 s[{SRD_WS}:{SRD_WS+1}], s[0:1], 96
      s_load_dwordx2 s[{SRD_W1}:{SRD_W1+1}], s[0:1], 56
      s_load_dwordx2 s[{SRD_WQ}:{SRD_WQ+1}], s[0:1], 16
      s_load_dwordx2 s[{SRD_DBG}:{SRD_DBG+1}], s[0:1], 88
      s_and_b32 s{S_H}, s2, 31
      s_lshr_b32 s{S_J}, s2, 5
    """)
    o += L(f"""
      v_lshrrev_b32 v{t0}, 3, v0
      s_lshl_b32 s{S_T0}, s{S_W}, 3
      v_add_u32 v{t0}, s{S_T0}, v{t0}
      v_and_b32 v{t2}, 3, v{t0}
      v_bfe_u32 v{t1}, v{t0}, 2, 2
      v_lshl_add_u32 v{t2}, v{t1}, 3, v{t2}
      v_lshrrev_b32 v{t1}, 4, v{t0}
      v_lshl_add_u32 v{t2}, v{t1}, 2, v{t2}
      v_bfe_u32 v{t0}, v{t0}, 1, 2
      v_bfe_u32 v{t1}, v0, 1, 2
      v_xor_b32 v{t0}, v{t0}, v{t1}
      v_and_b32 v{t1}, 1, v0
      v_lshlrev_b32 v{t1}, 4, v{t1}
      v_lshl_add_u32 v{t3}, v{t0}, 5, v{t1}
      v_lshl_add_u32 v{VDMA}, v{t2}, 13, v{t3}
      v_mul_u32_u24 v{t2}, 9216, v{t2}
      v_add_u32 v{VDMA1}, v{t2}, v{t3}
    """)
    o += L(f"""
      v_lshrrev_b32 v{t0}, 4, v0
      v_and_b32 v{t1}, 7, v0
      v_xor_b32 v{t0}, v{t0}, v{t1}
      v_lshlrev_b32 v{t0}, 4, v{t0}
      v_lshrrev_b32 v{t1}, 3, v0
      v_lshl_add_u32 v{VCD}, v{t1}, 10, v{t0}
      v_xor_b32 v{VCD+1}, 64, v{VCD}
      s_lshl_b32 s{S_WM0}, s{S_W}, 12
      s_mul_i32 s{S_AM0}, s{S_W}, 24576
      s_add_u32 s{S_AM0}, s{S_AM0}, 0x10000
      s_lshl_b32 s{S_T0}, s{S_J}, 2
      s_add_u32 s{S_T0}, s{S_T0}, s{S_W}
      s_lshl_b32 s{S_CB}, s{S_T0}, 16
      s_lshl_b32 s{S_WB}, s{S_H}, 8
    """)
    o += srd(SRD_C, SRD_C, 2048 * 1024) + srd(SRD_UK, SRD_UK, 512 * 8192) + srd(SRD_X, SRD_X, 2048 * 1152) + srd(SRD_G, SRD_G, 1152)
    return o

def setup2():
    t0, t1, t2, t3 = VT, VT + 1, VT + 2, VT + 3
    o = L(f"s_load_dwordx2 s[{SRD_W2}:{SRD_W2+1}], s[0:1], 64", f"s_load_dwordx2 s[{SRD_WO}:{SRD_WO+1}], s[0:1], 40",
          f"s_mov_b32 s{SRD_W2+2}, {4608 * 1152}", f"s_mov_b32 s{SRD_WO+2}, {4096 * 1152}")
    o += srd(SRD_UV, SRD_UV, 512 * 8192) + srd(SRD_WS, SRD_WS, WS_SIZE) + srd(SRD_W1, SRD_W1, 576 * 9216) + srd(SRD_WQ, SRD_WQ, 576 * 8192) + srd(SRD_DBG, SRD_DBG, 256)
    if "h" in os.environ.get("X", ""): o += L(f"s_add_u32 s{SRD_WS}, s{SRD_WS}, 0x8000000", f"s_addc_u32 s{SRD_WS+1}, s{SRD_WS+1}, 0")
    o += L(f"""
      v_bfe_u32 v{t0}, v0, 2, 3
      v_lshlrev_b32 v{t0}, 7, v{t0}
      v_and_b32 v{t1}, 3, v0
      v_lshl_add_u32 v{t0}, v{t1}, 3, v{t0}
      v_lshrrev_b32 v{t1}, 5, v0
      v_lshl_add_u32 v{t0}, v{t1}, 12, v{t0}
      v_bfe_u32 v{t1}, v0, 3, 2
    """)
    for nb in range(4):
        o += L(f"v_xor_b32 v{t2}, {nb}, v{t1}", f"v_lshl_add_u32 v{VTR+nb}, v{t2}, 5, v{t0}")
    o += L(f"""
      v_lshlrev_b32 v{t0}, 3, v0
      v_add_u32 v{VTRX}, {0x10000 + 16384}, v{t0}
      v_add_u32 v{VTRX+1}, {0x10000 + 16384 + 49152}, v{t0}
      v_lshrrev_b32 v{t0}, 1, v0
      v_and_b32 v{t2}, 3, v{t0}
      v_bfe_u32 v{t1}, v{t0}, 2, 2
      v_lshl_add_u32 v{t2}, v{t1}, 3, v{t2}
      v_lshrrev_b32 v{t1}, 4, v{t0}
      v_lshl_add_u32 v{t2}, v{t1}, 2, v{t2}
      s_lshl_b32 s{S_T0}, s{S_W}, 5
      v_add_u32 v{t2}, s{S_T0}, v{t2}
      v_mul_u32_u24 v{t2}, 9216, v{t2}
      v_and_b32 v{t1}, 1, v0
      v_lshl_add_u32 v{VDMAX}, v{t1}, 4, v{t2}
    """)
    o += L(f"""
      v_and_b32 v{t0}, 15, v0
      v_lshrrev_b32 v{t1}, 1, v{t0}
      v_lshrrev_b32 v{t2}, 4, v0
      v_xor_b32 v{t1}, v{t1}, v{t2}
      v_lshlrev_b32 v{t1}, 4, v{t1}
      v_lshl_add_u32 v{t1}, v{t0}, 7, v{t1}
      v_add_u32 v{VAR}, s{S_AM0}, v{t1}
      v_xor_b32 v{VAR+1}, 64, v{VAR}
      v_lshlrev_b32 v{VST}, 4, v0
      v_add_u32 v{VST2}, 0x1000, v{VST}
    """)
    o += L(f"""
      s_lshl_b32 s{S_T0}, s{S_J}, 2
      s_add_u32 s{S_T0}, s{S_T0}, s{S_W}
      s_lshl_b32 s{S_T0}, s{S_T0}, 15
      s_mul_i32 s{S_T1}, s{S_H}, {hex(KV_HEAD)}
      s_add_u32 s{S_T0}, s{S_T0}, s{S_T1}
      s_add_u32 s{S_KV}, s{S_T0}, {hex(KV_BASE)}
      s_mov_b32 s{S_KSC}, {f2u(KSCALE)}
      s_mov_b32 s{S_NL2E}, {f2u(-LOG2E)}
      s_sub_u32 s{S_T0}, 15, s{S_J}
      s_cmp_lt_u32 s{S_W}, 2
      s_cselect_b32 s{S_BLK}, s{S_T0}, s{S_J}
      s_and_b32 s{S_T1}, s{S_W}, 1
      s_mul_i32 s{S_T0}, s{S_BLK}, 144
      s_add_u32 s{S_T0}, s{S_T0}, s{S_T1}
      s_lshl_b32 s{S_XB}, s{S_T0}, 10
      s_add_u32 s{S_XB}, s{S_XB}, {hex(XI_BASE)}
      s_and_b32 s{S_T0}, s{S_H}, 7
      s_mul_i32 s{S_ACT}, s{S_T0}, {hex(ACT_G)}
      s_mul_i32 s{S_T2}, s{S_BLK}, {hex(ACT_RB)}
      s_add_u32 s{S_ACT}, s{S_ACT}, s{S_T2}
      s_lshl_b32 s{S_T1}, s{S_T1}, 10
      s_add_u32 s{S_ACT}, s{S_ACT}, s{S_T1}
      s_add_u32 s{S_ACT}, s{S_ACT}, {hex(ACT_BASE)}
      s_lshr_b32 s{S_T1}, s{S_H}, 4
      s_bfe_u32 s{S_T2}, s{S_H}, 0x10003
      s_lshl_b32 s{S_T0}, s{S_T0}, 1
      s_add_u32 s{S_T0}, s{S_T0}, s{S_T1}
      s_mul_i32 s{S_T0}, s{S_T0}, 576
      s_lshl_b32 s{S_T3}, s{S_T2}, 8
      s_add_u32 s{S_W1B}, s{S_T0}, s{S_T3}
      s_lshl_b32 s{S_T3}, s{S_T2}, 5
      s_add_u32 s{S_W1X}, s{S_T0}, s{S_T3}
      s_add_u32 s{S_W1X}, s{S_W1X}, 512
      s_mul_i32 s{S_T0}, s{S_T1}, {9 * 8192}
      s_add_u32 s{S_T0}, s{S_T0}, s{S_ACT}
      s_lshl_b32 s{S_T3}, s{S_T2}, 15
      s_add_u32 s{S_HK}, s{S_T0}, s{S_T3}
      s_lshl_b32 s{S_T3}, s{S_T2}, 3
      s_add_u32 s{S_HX}, s{S_T0}, s{S_T3}
      s_add_u32 s{S_HX}, s{S_HX}, {8 * 8192}
      s_lshr_b32 s{S_T1}, s{S_H}, 3
      s_lshl_b32 s{S_T1}, s{S_T1}, 15
      s_add_u32 s{S_ACT}, s{S_ACT}, s{S_T1}
      s_add_u32 s{S_ACT}, s{S_ACT}, {18 * 8192}
    """)
    return o

def gate_loads(vx, vg, voff, t0):
    return L(f"""
      v_lshrrev_b32 v{t0}, 5, v0
      s_sub_u32 s{S_T0}, 15, s{S_J}
      s_cmp_lt_u32 s{S_H}, 16
      s_cselect_b32 s{S_T0}, s{S_T0}, s{S_J}
      s_lshl_b32 s{S_T0}, s{S_T0}, 4
      s_and_b32 s{S_T1}, s{S_H}, 15
      s_add_u32 s{S_T0}, s{S_T0}, s{S_T1}
      s_lshl_b32 s{S_T0}, s{S_T0}, 2
      s_add_u32 s{S_T0}, s{S_T0}, s{S_W}
      s_lshl_b32 s{S_T0}, s{S_T0}, 1
      v_add_u32 v{voff+2}, s{S_T0}, v{t0}
      v_mul_u32_u24 v{voff}, 1152, v{voff+2}
      v_and_b32 v{t0}, 31, v0
      v_lshlrev_b32 v{voff+1}, 4, v{t0}
      v_add_u32 v{voff}, v{voff}, v{voff+1}
      buffer_load_dwordx4 {r4('v',vx)}, v{voff}, s[{SRD_X}:{SRD_X+3}], 0 offen
      buffer_load_dwordx4 {r4('v',vx+4)}, v{voff}, s[{SRD_X}:{SRD_X+3}], 0 offen offset:512
      buffer_load_dwordx4 {r4('v',vx+8)}, v{voff}, s[{SRD_X}:{SRD_X+3}], 0 offen offset:1024
      buffer_load_dwordx4 {r4('v',vg)}, v{voff+1}, s[{SRD_G}:{SRD_G+3}], 0 offen
      buffer_load_dwordx4 {r4('v',vg+4)}, v{voff+1}, s[{SRD_G}:{SRD_G+3}], 0 offen offset:512
      buffer_load_dwordx4 {r4('v',vg+8)}, v{voff+1}, s[{SRD_G}:{SRD_G+3}], 0 offen offset:1024
    """)

S_XS = 7
def ximg_loads(vd, t):
    return L(f"""
      s_sub_u32 s{S_T0}, 15, s{S_J}
      s_cmp_lt_u32 s{S_H}, 16
      s_cselect_b32 s{S_T0}, s{S_T0}, s{S_J}
      s_bfe_u32 s{S_T1}, s{S_H}, 0x30001
      s_and_b32 s{S_T2}, s{S_H}, 1
      s_mul_i32 s{S_T2}, s{S_T2}, 9
      s_mul_i32 s{S_XS}, s{S_T0}, 18
      s_add_u32 s{S_XS}, s{S_XS}, s{S_T2}
      s_lshl_b32 s{S_XS}, s{S_XS}, 3
      s_add_u32 s{S_XS}, s{S_XS}, s{S_T1}
      s_lshl_b32 s{S_XS}, s{S_XS}, 10
      s_add_u32 s{S_XS}, s{S_XS}, {hex(XI_BASE)}
      s_lshl_b32 s{S_T0}, s{S_T0}, 3
      s_add_u32 s{S_T0}, s{S_T0}, s{S_T1}
      s_mul_i32 s{S_T0}, s{S_T0}, {16 * 1152}
      s_lshl_b32 s{S_T2}, s{S_T2}, 6
      s_add_u32 s{S_T0}, s{S_T0}, s{S_T2}
      s_lshl_b32 s{S_T1}, s{S_W}, 6
      s_add_u32 s{S_T1}, s{S_T1}, s{S_T0}
      v_and_b32 v{t}, 15, v0
      v_mul_u32_u24 v{t}, 1152, v{t}
      v_and_b32 v{t+1}, 48, v0
      v_add_u32 v{t}, v{t}, v{t+1}
      buffer_load_dwordx4 {r4('v',vd)}, v{t}, s[{SRD_X}:{SRD_X+3}], s{S_T1} offen
      buffer_load_dwordx4 {r4('v',vd+4)}, v{t}, s[{SRD_X}:{SRD_X+3}], s{S_T1} offen offset:256
      buffer_load_dwordx4 {r4('v',vd+8)}, v{t}, s[{SRD_X}:{SRD_X+3}], s{S_T0} offen offset:512
    """)
def ximg_stores(vd):
    return L(f"""
      s_lshl_b32 s{S_PO}, s{S_W}, 13
      s_add_u32 s{S_PO}, s{S_PO}, s{S_XS}
      buffer_store_dwordx4 {r4('v',vd)}, v{VST}, s[{SRD_WS}:{SRD_WS+3}], s{S_PO} offen sc1
      s_add_u32 s{S_PO}, s{S_PO}, 32768
      buffer_store_dwordx4 {r4('v',vd+4)}, v{VST}, s[{SRD_WS}:{SRD_WS+3}], s{S_PO} offen sc1
      s_add_u32 s{S_PO}, s{S_XS}, 65536
      buffer_store_dwordx4 {r4('v',vd+8)}, v{VST}, s[{SRD_WS}:{SRD_WS+3}], s{S_PO} offen sc1
    """)

def gate_compute(vx, vg, voff, t):
    o = L(f"v_and_b32 v{t}, 31, v0", f"v_cmp_gt_u32 vcc, 8, v{t}", f"v_mov_b32 v{t+4}, 0", f"v_mov_b32 v{t+5}, 0")
    for r in range(8, 12): o += L(f"v_cndmask_b32 v{vx+r}, 0, v{vx+r}, vcc")
    for r in range(12):
        o += L(f"""
          v_lshlrev_b32 v{t}, 16, v{vx+r}
          v_and_b32 v{t+1}, 0xffff0000, v{vx+r}
          v_lshlrev_b32 v{t+2}, 16, v{vg+r}
          v_and_b32 v{t+3}, 0xffff0000, v{vg+r}
          v_fmac_f32 v{t+4}, v{t}, v{t+2}
          v_fmac_f32 v{t+5}, v{t+1}, v{t+3}""")
    z = t + 4
    o += L(f"""
      v_add_f32 v{z}, v{z}, v{t+5}
      v_add_f32_dpp v{z}, v{z}, v{z} quad_perm:[1,0,3,2] row_mask:0xf bank_mask:0xf
      v_add_f32_dpp v{z}, v{z}, v{z} quad_perm:[2,3,0,1] row_mask:0xf bank_mask:0xf
      v_add_f32_dpp v{z}, v{z}, v{z} row_half_mirror row_mask:0xf bank_mask:0xf
      v_add_f32_dpp v{z}, v{z}, v{z} row_mirror row_mask:0xf bank_mask:0xf
      v_mov_b32 v{t}, v{z}
      v_permlane16_swap_b32 v{t}, v{z}
      v_add_f32 v{z}, v{z}, v{t}
      v_mul_f32 v{t}, {f2u(LOG2E)}, v{z}
      v_exp_f32 v{t+3}, v{t}
      v_exp_f32 v{t+2}, -v{t}
      v_add_f32 v{t+3}, 1.0, v{t+3}
      v_add_f32 v{t+2}, 1.0, v{t+2}
      v_min_f32 v{t+3}, {f2u(1e30)}, v{t+3}
      v_rcp_f32 v{t+2}, v{t+2}
      v_lshlrev_b32 v{voff+2}, 3, v{voff+2}
      v_and_b32 v{t}, 31, v0
      v_cmp_eq_u32 vcc, 0, v{t}
      v_add_u32 v{voff+2}, {hex(G_BASE)}, v{voff+2}
      v_cndmask_b32 v{voff+2}, -1, v{voff+2}, vcc
      buffer_store_dwordx2 {r2('v',t+2)}, v{voff+2}, s[{SRD_WS}:{SRD_WS+3}], 0 offen sc1
    """)
    return fix_hazards(o)

def signal(soff_expr_ops, s_off, vt, inc=1):
    return L(f"""
      v_lshl_add_u32 v{vt}, v0, 8, s{S_SLOW}
      v_mov_b32 v{vt+1}, {inc}
    """) + soff_expr_ops + L(f"buffer_atomic_add v{vt+1}, v{vt}, s[{SRD_DBG}:{SRD_DBG+3}], s{s_off} offen sc1")

S_SIG = 64
S_PT = 65
S_PO = 66

class Panel:
    def __init__(self, name, nnb, srd, sbase, coff, kstride, vdma, wA, units, act):
        self.name = name; self.nnb = nnb; self.srd = srd; self.sbase = sbase; self.coff = coff
        self.kstride = kstride; self.vdma = vdma; self.wA = wA; self.units = units; self.act = act
        self.done = {}
    def acc(self, nb, a): return U(self.units[nb]) + 4 * a

def c_act(a, ks): return r4("a", 16 * ks + 4 * a)
def x_act(a, ks): return r4("v", U(10 + ks) + 4 * a) if ks < 2 else r4("a", 16 * (ks - 2) + 4 * a)
Q_UNITS = [5, 6, 4, 3]
def q_reg(a, ds): return U(Q_UNITS[ds]) + 4 * a

slow_blocks = []
def poll(tag, vf, soff_ops, count, t_issue, t_check):
    ld = f"buffer_load_dword v{vf}, off, s[{SRD_DBG}:{SRD_DBG+3}], s{S_PO} sc1"
    a = soff_ops + L(ld)
    for x in a: x.earliest = t_issue
    r = I(f"v_readfirstlane_b32 s{S_PT}, v{vf}", earliest=t_check, deps=[(a[-1], t_check - t_issue)])
    a[-1].deadline = t_issue + 8
    b = Bundle(L(f"s_cmp_ge_u32 s{S_PT}, {count}", f"s_cbranch_scc0 Lpoll_{tag}", f"Lback_{tag}:"), deps=[(r, 1)])
    slow_blocks.append(L(f"""Lpoll_{tag}:
      {ld}
      s_waitcnt vmcnt(0)
      v_readfirstlane_b32 s{S_PT}, v{vf}
      s_nop 1
      s_cmp_ge_u32 s{S_PT}, {count}
      s_cbranch_scc1 Lback_{tag}
      s_branch Lpoll_{tag}"""))
    return a + [r, b]

def signal(soff_ops, vt, inc=1):
    return L(f"v_lshl_add_u32 v{vt}, v0, 8, s{S_SIG}", f"v_mov_b32 v{vt+1}, {inc}") + soff_ops + \
           L(f"buffer_atomic_add v{vt+1}, v{vt}, s[{SRD_DBG}:{SRD_DBG+3}], s{S_PO} offen sc1")

S_PC = 100
def caddr(v, lo=None):
    o = L(f"v_lshlrev_b32 v{v}, 14, v0")
    if lo: o += L(f"v_add_u32 v{v}, {lo}-Lpc0, v{v}")
    return o + L(f"v_min_u32 v{v}, Lend-Lpc0-16388, v{v}")
def ctouch(v, dst, **kw):
    x = I(f"global_load_dword {dst}, v{v}, s[{S_PC}:{S_PC+1}]", **kw); x.wr = []; x.maxlag = 6
    return x
CT = os.environ.get("CT", "flp")
NTS = os.environ.get("NT", ""); NTM = os.environ.get("NTM", " nt")

def xcc_ops():
    return L(f"""s_getreg_b32 s{S_PT}, hwreg(HW_REG_XCC_ID, 0, 3)
      s_and_b32 s{S_PO}, s{S_H}, 7
      s_lshl_b32 s{S_PO}, s{S_PO}, 3
      s_add_u32 s{S_PO}, s{S_PO}, s{S_PT}
      s_and_b32 s{S_PO}, s{S_PO}, 60
      s_add_u32 s{S_PO}, s{S_PO}, {DBG_XC}
      s_and_b32 s{S_PT}, s{S_PT}, 3
      s_lshl_b32 s{S_PT}, s{S_PT}, 3""")
def release(tag):
    slow_blocks.append(L(f"""Lwb_{tag}:
      buffer_wbl2 sc1
      s_waitcnt vmcnt(0)
      s_branch Lwbb_{tag}"""))
    return Bundle(L(f"s_cmp_eq_u32 s{S_LOC}, 0", f"s_cbranch_scc1 Lwb_{tag}", f"Lwbb_{tag}:"))

def front(tail_streams=None, qstore=False):
    K0 = Panel("K0", 4, SRD_UK, S_WB, 0, 32 * 8192, VDMA, True, [0, 1, 2, 3], c_act)
    K1 = Panel("K1", 4, SRD_UK, S_WB, 128, 32 * 8192, VDMA, True, [4, 5, 6, 7], c_act)
    V0 = Panel("V0", 4, SRD_UV, S_WB, 0, 32 * 8192, VDMA, False, [8, 10, 9, 11], c_act)
    V1 = Panel("V1", 4, SRD_UV, S_WB, 128, 32 * 8192, VDMA, False, [1, 3, 5, 7], c_act)
    Ha = Panel("Ha", 4, SRD_W1, S_W1B, 0, 32 * 9216, VDMA1, True, [0, 2, 4, 6], x_act)
    Hb = Panel("Hb", 5, SRD_W1, S_W1B, 128, 32 * 9216, VDMA1, True, [3, 7, 8, 9, 1], x_act)
    Q0 = Panel("Q0", 4, SRD_WQ, S_WB, 0, 32 * 8192, VDMA, True, [5, 2, 6, 0], x_act)
    Q1 = Panel("Q1", 4, SRD_WQ, S_WB, 128, 32 * 8192, VDMA, True, [4, 1, 3, 7], x_act)
    steps = []
    for ks in range(16): steps += [(K0, ks), (K1, ks)]
    SK = int(os.environ.get("SK", "6"))
    steps += [(V0, ks) for ks in range(SK)]
    for ks in range(16 - SK): steps += [(V1, ks), (V0, ks + SK)]
    steps += [(V1, ks) for ks in range(16 - SK, 16)]
    steps += [(Ha, ks) for ks in list(range(2, 18)) + [0, 1]]
    for P in (Hb, Q0, Q1): steps += [(P, ks) for ks in range(18)]
    T = len(steps); NF = 4
    spine = []; frags = []; S = []
    for t, (P, ks) in enumerate(steps):
        S.append(len(spine))
        for nb in range(P.nnb):
            w = r4("v", FR + 4 * (len(frags) % NF)); first = len(spine)
            for a in range(4):
                d = r4("v", P.acc(nb, a)); c = d if (nb, a) in P.done else "0"
                A, B = (w, P.act(a, ks)) if P.wA else (P.act(a, ks), w)
                spine.append(I(f"{MF} {d}, {A}, {B}, {c}")); P.done[(nb, a)] = len(spine) - 1
            frags.append((t, nb, first, len(spine) - 1))
    S.append(len(spine))
    ds = []; bars = {}; pro_ds = []; barpos = {}
    for f, (t, nb, a, b) in enumerate(frags):
        P, ks = steps[t]
        if nb == 0 and t % 2 == 0:
            wv = WAITG("w", t // 2); br = I("s_barrier"); bars[t // 2] = br
            if f >= NF:
                e = frags[f - NF][3]; barpos[t // 2] = e
                wv.earliest = br.earliest = max(0, e - 2); wv.deadline = br.deadline = e
                ds += [wv, br]
            else: pro_ds += [wv, br]; barpos[0] = 0
        for jj in range(2):
            r = FR + 4 * (f % NF) + 2 * jj
            if nb < 4:
                off = ((t % 16) >> 2) * 16384 + (t & 3) * 1024 + jj * 8192
                x = I(f"ds_read_b64_tr_b16 {r2('v', r)}, v{VTR+nb} offset:{off}")
            else:
                wq = ks & 3
                off = (wq & 1) * 24576 + (ks >> 2) * 1024 + jj * 512
                x = I(f"ds_read_b64_tr_b16 {r2('v', r)}, v{VTRX + (wq >> 1)} offset:{off}")
            if f < NF: pro_ds.append(x)
            else:
                e = frags[f - NF][3]; x.earliest = e + 2 * jj; x.deadline = e + 1 + 2 * jj
                ds.append(x)
    epi = []; hepi = []
    def pack(b0, b1, d=None):
        d = b0 if d is None else d
        return L(f"v_cvt_pk_bf16_f32 v{d}, v{b0}, v{b0+1}", f"v_cvt_pk_bf16_f32 v{d+1}, v{b0+2}, v{b0+3}",
                 f"v_cvt_pk_bf16_f32 v{d+2}, v{b1}, v{b1+1}", f"v_cvt_pk_bf16_f32 v{d+3}, v{b1+2}, v{b1+3}")
    def store4(b, sbase, off):
        hi = off & ~0x1fff
        o = []
        if hi: o += L(f"s_add_u32 s{S_ET}, s{sbase}, {hi}")
        o += L(f"buffer_store_dwordx4 {r4('v', b)}, v{VST2 if off & 0x1000 else VST}, s[{SRD_WS}:{SRD_WS+3}], s{S_ET if hi else sbase} offen offset:{off & 0xfff}{SC}")
        return o
    lastop = {}; sts = []
    SP = int(os.environ.get("SP", "26"))
    n_st = 0
    for P in (K0, K1, V0, V1):
        isK = P.name[0] == "K"; half = int(P.name[1])
        for n in range(8):
            x, y = (n >> 2, n & 3) if isK else (n & 1, n >> 1)
            tl = [(2 * x, y), (2 * x + 1, y)] if isK else [(y, 2 * x), (y, 2 * x + 1)]
            e = max(P.done[t] for t in tl) + 8
            ops = []
            if isK:
                for t in tl:
                    for r in range(4): ops += L(f"v_mul_f32 v{P.acc(*t)+r}, s{S_KSC}, v{P.acc(*t)+r}")
            d = P.acc(*tl[0]) if isK else P.acc(y & 2, n & 3)
            ops += pack(P.acc(*tl[0]), P.acc(*tl[1]), d)
            for q in ops: q.earliest = e
            epi += ops
            off = ((y >> 1) * 16384 + (y & 1) * 4096 + (2 * half + x) * 1024) if isK else (x * 16384 + 8192 + (4 * half + y) * 1024)
            st = store4(d, S_KV, off)
            te = S[32] + 24 + SP * n_st
            n_st += 1
            for q in st: q.earliest = max(e, te)
            st[-1].deps = [(ops[-1], 1)]
            sts += st
            lastop[(P.name, n)] = ops[-1]
    kv_te = te
    kv_last = sts[-1]
    hA, hB, hC, hD, hE = [], [], [], [], []
    NT = 8
    n = 0; tmp_free = {}
    gl_done = I("s_nop 0")
    first_fma = []
    for P in (Ha, Hb):
        for x in ([0, 1] if P.nnb == 4 else [2, 0, 1]):
            for a in range(4):
                tl = [(2 * x, a), (2 * x + 1, a)] if 2 * x + 1 < P.nnb else [(2 * x, a)]
                fin = []
                for t in tl:
                    e = P.done[t] + 8
                    for r in range(4):
                        v = P.acc(*t) + r; tm = VT + (n % NT)
                        m = I(f"v_mul_f32 v{tm}, s{S_NL2E}, v{v}", earliest=e)
                        if tm in tmp_free: m.deps = [(tmp_free[tm], 0)]
                        ex = I(f"v_exp_f32 v{tm}, v{tm}", earliest=e, deps=[(m, 0)])
                        fm = I(f"v_fma_f32 v{tm}, v{tm}, v{VC+2*a+1}, v{VC+2*a+1}", earliest=e, deps=[(ex, 1)])
                        rc = I(f"v_rcp_f32 v{tm}, v{tm}", earliest=e, deps=[(fm, 0)])
                        mu = I(f"v_mul_f32 v{v}, v{v}, v{tm}", earliest=e, deps=[(rc, 1)])
                        if not first_fma: first_fma.append(fm)
                        tmp_free[tm] = mu; n += 1; mu.span = 4
                        hA.append(m); hB.append(ex); hC.append(fm); hD.append(rc); hE.append(mu)
                    b = P.acc(*t); b0 = P.acc(*tl[0]); k = 2 * tl.index(t)
                    hE += [I(f"v_cvt_pk_bf16_f32 v{b0+k}, v{b}, v{b+1}", earliest=e), I(f"v_cvt_pk_bf16_f32 v{b0+k+1}, v{b+2}, v{b+3}", earliest=e)]
                b0 = P.acc(*tl[0])
                if len(tl) == 2:
                    st = store4(b0, S_HK, ((0 if P is Ha else 2) + x) * 8192 + a * 2048)
                else:
                    st = L(f"buffer_store_dwordx2 {r2('v', b0)}, v{VST2 if a >= 2 else VST}, s[{SRD_WS}:{SRD_WS+3}], s{S_HX} offen offset:{(a & 1) * 2048}{SCX}")
                for q in st: q.earliest = e
                st[0].deps = [(hE[-1], 0)]; st[-1].deps = [(hE[-1], 1)]
                sts += st
    h_last = sts[-1]
    qepi = []
    for pi, P in enumerate((Q0, Q1)):
        for x in range(2):
            for a in range(4):
                e = max(P.done[(2 * x, a)], P.done[(2 * x + 1, a)]) + 8
                assert P.acc(2 * x, a) == q_reg(a, 2 * pi + x)
                ops = pack(P.acc(2 * x, a), P.acc(2 * x + 1, a))
                for q in ops: q.earliest = e
                qepi += ops
    units = []
    for G in range(T // 2):
        tm = -1 if G < 8 else barpos[G - 6]
        for t in (2 * G, 2 * G + 1):
            P, ks = steps[t]
            if P.nnb == 5 and ks % 4 == 0: units.append((tm, "x", t))
            units.append((tm, "w", t))
    rd_time = [None] + [S[4 * c - 2] for c in range(1, 8)]
    areads = []; pro_ar = []; last_rd = {}
    for c in range(8):
        ops = [WAITG("act", c)]
        for kb in range(2):
            for a in range(4):
                ops.append(I(f"ds_read_b128 {c_act(a, 2 * c + kb)}, v{VAR+kb} offset:{(c % 3) * 8192 + a * 2048}"))
        last_rd[c] = ops[-1]
        if c == 0: pro_ar = ops; continue
        for q in ops: q.earliest = rd_time[c]
        areads += ops
    for c in range(8):
        tm = -1 if c < 3 else (rd_time[c - 3] or 0) + 16
        for nn in range(8): units.append((tm + (3 * nn if tm >= 0 else 0), "a", (c, nn)))
    first = [u for u in units if u[0] < 0]; rest = sorted([u for u in units if u[0] >= 0], key=lambda u: u[0])
    W = [u for u in first if u[1] == "w"]; A = [u for u in first if u[1] == "a"]
    first = W[0:2] + A[0:8] + W[2:4] + A[8:16] + W[4:8] + A[16:24] + W[8:]
    cur = [None]
    def emit_unit(u):
        tm, kind, arg = u
        o = []; deps = []
        if kind == "w":
            t = arg; P, ks = steps[t]
            m0 = (S_WM0, ((t % 16) >> 2) * 16384); imm = (t & 3) * 1024
            so = P.coff + ks * P.kstride; sb = P.sbase; v = P.vdma; sr = P.srd; grp = ("w", t // 2)
            if t // 2 >= 8: deps = [(bars[t // 2 - 6], 0)]
        elif kind == "x":
            t = arg; P, ks = steps[t]
            m0 = (S_AM0, 16384 + (ks >> 4) * 4096); imm = ((ks >> 2) & 3) * 1024
            so = ks * P.kstride; sb = S_W1X; v = VDMAX; sr = P.srd; grp = ("w", t // 2)
        else:
            c, nn = arg
            m0 = (S_AM0, (c % 3) * 8192 + (nn >> 2) * 4096); imm = (nn & 3) * 1024
            so = 8 * nn * 1024 + (c % 3 if 'r' in os.environ.get('X', '') else c) * 128
            sb = S_CB; v = VCD + (nn & 1); sr = SRD_C; grp = ("act", c)
            if nn == 0 and c >= 3:
                o.append(WAITLGKM(last_rd[c - 3]))
                if c > 3: deps = [(last_rd[c - 3], 8)]
        if so < imm: m0 = (m0[0], m0[1] + imm); imm = 0
        if cur[0] != m0:
            o += L(f"s_add_u32 m0, s{m0[0]}, {m0[1]}"); cur[0] = m0
        o += L(f"s_add_u32 s{S_DT}, s{sb}, {so - imm}",
               f"buffer_load_dwordx4 v{v}, s[{sr}:{sr+3}], s{S_DT} offen" + (f" offset:{imm}" if imm else "") + (NTM if sr == SRD_UK and tm < 0 and "k" in NTS else "") + " lds")
        o[-1].grp = grp
        for x in o: x.earliest = max(tm, 0)
        o[0].deps = deps
        return o
    pro_vm = [x for u in first for x in emit_unit(u)]
    vm = [x for u in rest for x in emit_unit(u)]
    lastd = {}
    for x in vm:
        if x.tag == "dma": lastd[x.grp] = x
    for x in ds + areads:
        if x.mn == "WAIT" and x.grp in lastd: x.deps = x.deps + [(lastd[x.grp], 64)]
    GX, GG, GO, GI = U(8), U(9), U(10), U(11)
    gl = gate_loads(GX, GG, GO, GO + 4) + ximg_loads(GI, GI + 12)
    gc = gate_compute(GX, GG, GO, GO + 8)
    misc = L(f"""s_lshl_b32 s{S_PO}, s{S_SIG}, 20
      v_lshl_add_u32 v{VT+8}, v0, 2, s{S_PO}
      v_mov_b32 v{VT+9}, 0
      s_lshl_b32 s{S_PO}, s2, 8
      s_add_u32 s{S_PO}, s{S_PO}, {hex(INBOX)}
      buffer_store_dword v{VT+9}, v{VT+8}, s[{SRD_WS}:{SRD_WS+3}], s{S_PO} offen sc1""")
    misc += xcc_ops() + L(f"s_lshl_b32 s{S_PT}, 1, s{S_PT}") + signal([], VT + 8, f"s{S_PT}")
    xs = ximg_stores(GI)
    for q in xs + gc: q.earliest = S[1]
    misc += xs + gc
    wv = WAITVM(gc[-1]); wv.earliest = S[14]; wv.deadline = barpos[9] - 3; wv.deps = [(gc[-1], 140)]
    misc += [wv]
    sg = signal(L(f"s_lshl_b32 s{S_PO}, s{S_J}, 2"), VT + 8); sg[-1].deps = [(bars[9], 0)]
    misc += sg
    misc += poll("g", VT + 10, L(f"s_lshl_b32 s{S_PO}, s{S_J}, 2"), 32, S[23 + SK], S[32 + SK])
    gpoll = misc[-1]
    xl = []; XSP = int(os.environ.get("XSP", "30")); te = 0
    for ks in list(range(2, 18)) + [0, 1]:
        o = L(f"s_add_u32 s{S_XS}, s{S_XB}, {(ks % 4 if 'y' in os.environ.get('X', '') else ks) * 8192}")
        for a in range(4):
            o += L(f"buffer_load_dwordx4 {x_act(a, ks)}, v{VST2 if a >= 2 else VST}, s[{SRD_WS}:{SRD_WS+3}], s{S_XS} offen offset:{(a & 1) * 2048} sc1")
        te = max(te + XSP, S[steps.index((V1, ks - 2)) + 1] if ks >= 2 else 0)
        for k, q in enumerate(o): q.earliest = te + (XSP * k) // 5
        if ks < 2: o[1].deps = [(lastop[("V0", 3 + 4 * ks)], 1)]
        u = S[steps.index((Ha, ks))]
        w = WAITVM(o[-1]); w.earliest = u - 4; w.deadline = u - 1
        areads.append(w); xl += o
    xl[0].deps = [(gpoll, 0)]
    misc += L(f"""v_and_b32 v{VT+8}, 15, v0
        v_lshlrev_b32 v{VT+8}, 3, v{VT+8}
        s_lshl_b32 s{S_PO}, s{S_BLK}, 3
        s_and_b32 s{S_PT}, s{S_W}, 1
        s_add_u32 s{S_PO}, s{S_PO}, s{S_PT}
        s_lshl_b32 s{S_PO}, s{S_PO}, 7
        s_add_u32 s{S_PO}, s{S_PO}, {hex(G_BASE)}""")
    for a in range(4): misc += L(f"buffer_load_dwordx2 {r2('v', VC + 2 * a)}, v{VT+8}, s[{SRD_WS}:{SRD_WS+3}], s{S_PO} offen offset:{256 * a} sc1")
    first_fma[0].deps.append((misc[-1], 160)); misc[-1].deadline = S[70]
    kb = min(b for b in barpos if barpos[b] - 3 >= kv_te + 190)
    wv = WAITVM(kv_last); wv.earliest = barpos[kb] - 8; wv.deadline = barpos[kb] - 3; wv.deps = [(kv_last, 170)]
    sg = signal(L(f"s_lshl_b32 s{S_PO}, s{S_H}, 2", f"s_add_u32 s{S_PO}, s{S_PO}, {DBG_KV}"), VT + 8)
    xc = xcc_ops() + L(f"buffer_load_dword v{VT+10}, off, s[{SRD_DBG}:{SRD_DBG+3}], s{S_PO} sc1")
    xr = L(f"v_lshrrev_b32 v{VT+10}, s{S_PT}, v{VT+10}", f"v_and_b32 v{VT+10}, 255, v{VT+10}", f"v_readfirstlane_b32 s{S_LOC}, v{VT+10}")
    xr[0].deps = [(xc[-1], 150)]; xr[2].deps = [(xr[1], 1)]
    xr += [Bundle(L(f"s_cmp_eq_u32 s{S_LOC}, {33 if 'n' in os.environ.get('X', '') else 32}", f"s_cselect_b32 s{S_LOC}, 1, s{S_W}"), deps=[(xr[2], 1)])]
    rl = release("kv"); rl.deps = [(bars[kb], 0)]
    misc += xc + xr + [wv] + sg[:-1] + [rl, sg[-1]]
    PT = [int(v) for v in os.environ.get("PT", "0,15,17").split(",")]
    H64 = "6" in os.environ.get("X", "")
    a, b2 = 44, 45
    def touch(sr, so, off=0, dup=True):
        o = L(f"buffer_load_dword v{VPF}, v{a}, s[{sr}:{sr+3}], s{so} offen" + (f" offset:{off}" if off else ""))
        if H64 and dup: o += L(f"buffer_load_dword v{VPF}, v{a}, s[{sr}:{sr+3}], s{so} offen offset:{off + 64}")
        for x in o: x.wr = []
        return o
    t1 = L(f"""s_lshl_b32 s{S_T0}, s{S_J}, 2
      s_add_u32 s{S_T0}, s{S_T0}, s{S_W}
      s_lshl_b32 s{S_T1}, s{S_T0}, 17
      s_add_u32 s{S_T1}, s{S_T1}, s{S_WB}
      v_lshrrev_b32 v{a}, 2, v0
      v_and_b32 v{b2}, 3, v0
      v_lshlrev_b32 v{b2}, 6, v{b2}
      v_lshl_add_u32 v{a}, v{a}, 13, v{b2}""") + touch(SRD_UV, S_T1, dup=False)
    EC = os.environ.get("EC", "m1")
    t0 = L(*[x.text for x in t1[:-1]]) + touch(SRD_UK, S_T1, dup=False)
    if "k" in NTS: t0[-1].text += NTM
    if EC[0] == "m":
        t0 += L(f"""s_lshl_b32 s{S_T1}, s2, 2
          s_add_u32 s{S_T1}, s{S_T1}, s{S_W}
          s_lshl_b32 s{S_T1}, s{S_T1}, 11
          v_lshlrev_b32 v{a}, 5, v0""") + touch(SRD_C, S_T1, dup=False)
    elif EC[0] == "l":
        t0 += L(f"""s_lshr_b32 s{S_T1}, s{S_H}, 3
          s_lshl_b32 s{S_T1}, s{S_T1}, 14
          s_add_u32 s{S_T1}, s{S_T1}, s{S_CB}
          v_lshlrev_b32 v{a}, 7, v0""") + touch(SRD_C, S_T1, dup=False) + L(f"s_add_u32 s{S_T1}, s{S_T1}, 8192") + touch(SRD_C, S_T1, dup=False)
    else: t0 = []
    t3 = L(f"""s_lshr_b32 s{S_T2}, s{S_H}, 3
      s_lshl_b32 s{S_T2}, s{S_T2}, 5
      s_add_u32 s{S_T2}, s{S_T2}, s{S_T0}
      s_mul_i32 s{S_T2}, s{S_T2}, 9
      s_lshr_b32 s{S_T2}, s{S_T2}, 1
      s_mul_i32 s{S_T2}, s{S_T2}, 9216
      s_and_b32 s{S_T1}, s{S_H}, 7
      s_mul_i32 s{S_T1}, s{S_T1}, 1152
      s_add_u32 s{S_T1}, s{S_T1}, s{S_T2}
      v_min_u32 v{a}, 44, v0
      v_mul_u32_u24 v{b2}, 57, v{a}
      v_lshrrev_b32 v{b2}, 9, v{b2}
      v_mul_u32_u24 v{b2}, 8064, v{b2}
      v_lshl_add_u32 v{a}, v{a}, 7, v{b2}""") + touch(SRD_W1, S_T1)
    t4 = L(f"""s_mul_i32 s{S_T1}, s{S_T0}, {18 * 8192}
      s_add_u32 s{S_T1}, s{S_T1}, s{S_WB}
      v_min_u32 v{a}, 35, v0
      v_and_b32 v{b2}, 1, v{a}
      v_lshrrev_b32 v{a}, 1, v{a}
      v_lshlrev_b32 v{b2}, 7, v{b2}
      v_lshl_add_u32 v{a}, v{a}, 13, v{b2}""") + touch(SRD_WQ, S_T1)
    pf = []
    for t, e in ((t1, S[PT[0]]), (t3, S[PT[1]]), (t4, S[PT[2]])):
        for x in t: x.earliest = e
        pf += t
    PS = os.environ.get("PS", "uuuuwwwwwqqqqq,240,540")
    if PS:
        pf = L(f"""s_lshl_b32 s{S_T0}, s{S_J}, 2
          s_add_u32 s{S_T0}, s{S_T0}, s{S_W}
          s_lshl_b32 s{S_T1}, s{S_T0}, 15
          s_add_u32 s{S_T1}, s{S_T1}, s{S_WB}
          v_min_u32 v{a}, 7, v0
          v_and_b32 v{b2}, 1, v{a}
          v_lshrrev_b32 v{a}, 1, v{a}
          v_lshlrev_b32 v{b2}, 7, v{b2}
          v_lshl_add_u32 v{a}, v{a}, 13, v{b2}
          s_lshr_b32 s{S_T2}, s{S_H}, 3
          s_lshl_b32 s{S_T2}, s{S_T2}, 5
          s_add_u32 s{S_T2}, s{S_T2}, s{S_T0}
          s_mul_i32 s{S_T2}, s{S_T2}, 9216
          s_and_b32 s{S_T3}, s{S_H}, 7
          s_mul_i32 s{S_T3}, s{S_T3}, 1152
          s_add_u32 s{S_T2}, s{S_T2}, s{S_T3}
          s_mov_b32 s{S_T0}, s{S_T1}
          v_min_u32 v{b2}, 8, v0
          v_lshlrev_b32 v{b2}, 7, v{b2}""")
        order, p0, p1 = PS.split(","); p0 = int(p0); p1 = int(p1)
        for k, m in enumerate(order):
            if m == "-": continue
            sr, so, v, st = {"u": (SRD_UV, S_T1, a, 128 * 8192), "q": (SRD_WQ, S_T0, a, 128 * 8192), "w": (SRD_W1, S_T2, b2, 128 * 9216)}[m]
            o = L(f"buffer_load_dword v{VPF}, v{v}, s[{sr}:{sr+3}], s{so} offen" + (NTM if m in NTS else ""), f"s_add_u32 s{so}, s{so}, {st}")
            o[0].wr = []; o[0].earliest = p0 + (p1 - p0) * k // len(order); o[0].maxlag = 4
            pf += o
    if "p" in os.environ.get("X", ""): pf = []
    pc = []
    if "f" in CT:
        ca = caddr(46)
        for x in ca: x.earliest = S[18]
        pc = ca + [ctouch(46, f"v{VPF}", earliest=S[t], deadline=S[t + 2]) for t in [int(v) for v in os.environ.get("CTF", "24,40,56,72,88,104").split(",")]]
    ctx = dict(S=S, bars=bars, barpos=barpos, steps=steps, misc=misc, vm=vm, cur=cur, qepi=qepi, h_last=h_last, spine=spine)
    extra = tail_streams(ctx) if tail_streams else []
    for x in vm + sts + xl: x.maxlag = 6
    streams = [ds, areads, vm, xl, pf, pc, misc, sts, epi, hD, hB, hE, hC, hA, qepi] + extra
    main = schedule(spine, streams, verbose="front", nprio=2)
    last = max(i for i, x in enumerate(main) if x.kind == "mfma")
    body, tl = main[:last + 1], main[last + 1:]
    fixed = fix_hazards(body[-14:] + tl)
    assert fixed[:14] == body[-14:]
    main = body + fixed[14:]
    X = os.environ.get("X", "")
    if "s" in X: main = [x for x in main if not x.mn.startswith("buffer_store_dwordx4")]
    if "f" in X: main = [x for x in main if not (x.mn.startswith("buffer_atomic") or x.mn == "buffer_load_dword" or "Lpoll" in x.text)]
    if "x" in X: main = [x for x in main if not (x.tag == "dma" and f"s[{SRD_X}:" in x.text)]
    if PROF:
        mf = [i for i, x in enumerate(main) if x.kind == "mfma"]
        cut = [0] + [mf[S[t]] for t in (16, 32, 48, 64, 82, 100, 118)] + [len(main)]
        print("front est:", [est_cycles(main[a:b]) for a, b in zip(cut, cut[1:])])
        for q, t in reversed(list(enumerate((16, 32, 48, 64, 82, 100, 118)))): main[mf[S[t]]:mf[S[t]]] = stamp(3 + q)
    sig = L(f"s_cmp_lg_u32 s{S_W}, 0", f"s_cselect_b32 s{S_SIG}, 256, 0", f"s_add_u32 s{S_SIG}, s{S_SIG}, s{S_SLOW}")
    dm = [i for i, x in enumerate(pro_vm) if x.tag == "dma"]
    e0 = 0 if EC[1] == "0" else dm[9] + 1
    pro = fix_hazards(setup()) + pro_vm[:e0] + fix_hazards(t0) + pro_vm[e0:45] + stamp(1) + fix_hazards(gl) + pro_vm[45:] + fix_hazards(setup2() + sig + (t1 if os.environ.get("PU") else [])) + pro_ar + pro_ds + stamp(2)
    return pro, main

def entry(exit_label):
    return fix_hazards(L(f"""
      s_cmp_ge_u32 s2, 256
      s_cbranch_scc1 {exit_label}
      v_lshrrev_b32 v1, 6, v0
      v_and_b32 v0, 63, v0
      v_readfirstlane_b32 s{S_W}, v1
      s_mov_b32 s{S_SLOW}, 0
    """) + (L(f"""
      s_getpc_b64 s[{S_T2}:{S_T3}]
      Lpc0:
      s_lshr_b32 s{S_T0}, s2, 1
      s_and_b32 s{S_T0}, s{S_T0}, 12
      s_add_u32 s{S_T0}, s{S_T0}, s{S_W}
      s_lshl_b32 s{S_T0}, s{S_T0}, 13
      v_lshl_add_u32 v1, v0, 7, s{S_T0}
      v_min_u32 v1, Lend-Lpc0-4, v1
      global_load_dword v{VPF}, v1, s[{S_T2}:{S_T3}]
      s_lshr_b32 s{S_T0}, s2, 1
      s_and_b32 s{S_T0}, s{S_T0}, 0x7c
      s_add_u32 s{S_T0}, s{S_T0}, s{S_W}
      s_lshl_b32 s{S_T0}, s{S_T0}, 7
      s_add_u32 s{S_PC}, s{S_T2}, s{S_T0}
      s_addc_u32 s{S_PC+1}, s{S_T3}, 0
    """) if "c" not in os.environ.get("X", "") else []) + L("Lstart:"))

def k1():
    K = Kernel("k1_kernel", 256, 163840)
    pro, main = front()
    K.add("pro", stamp(0) + entry("Lexit1") + pro)
    K.add("main", main + stamp(10) + prof_out(0, 11) + L("Lexit1:", "s_endpgm"))
    K.paths = [["pro", "main"]]
    K.add("slow", [i for b in slow_blocks for i in b])
    K.finish()
    return K
```

```python
from asm import *
import os

NAME = "gated_mix__compressed_kv_cla__dense_activation_silu__prompt"
MF = "v_mfma_f32_16x16x32_bf16"

KV_BASE = 0x10000
KV_HEAD = 0x104000
ACT_BASE = 0x2100000
ACT_RB = 34 * 8 * 1024
ACT_G = 16 * ACT_RB
G_BASE = 0x4400000
INBOX = 0x4480000
PART_BASE = 0x4500000
XI_BASE = 0x5800000
WS_SIZE = 0x8000000

LOG2E = 1.4426950408889634
import struct
def f2u(x): return "0x%08x" % struct.unpack("<I", struct.pack("<f", x))[0]

def r4(f, b): return f"{f}[{b}:{b+3}]"
def r2(f, b): return f"{f}[{b}:{b+1}]"

def L(*lines):
    out = []
    for t in lines:
        for x in t.split("\n"):
            x = x.strip()
            if x and not x.startswith(";"): out.append(I(x))
    return out

def srd(d, slot_lo, nbytes):
    o = []
    if d != slot_lo:
        o += L(f"s_mov_b32 s{d}, s{slot_lo}", f"s_mov_b32 s{d+1}, s{slot_lo+1}")
    o += L(f"s_mov_b32 s{d+2}, {hex(nbytes)}", f"s_mov_b32 s{d+3}, 0x00020000")
    return o

class Kernel:
    def __init__(self, name, grid, lds, vgpr=512):
        self.name = name; self.grid = grid; self.lds = lds; self.vgpr = vgpr
        self.blocks = {}; self.order = []; self.paths = []
    def add(self, name, ins):
        assert name not in self.blocks
        self.blocks[name] = Block(name, ins); self.order.append(name)
    def finish(self, verbose=True):
        if not self.paths: self.paths = [list(self.order)]
        insert_waits(self.blocks, self.paths)
        errs = []
        for p in self.paths:
            errs += check_hazards([i for b in p for i in self.blocks[b].ins])
        errs = sorted(set(errs))
        if errs: raise Exception("hazards:\n" + "\n".join(errs[:30]))
        if verbose:
            if os.environ.get("AGES"):
                for p in self.paths: print("  young vm waits:", wait_ages([i for b in p for i in self.blocks[b].ins]))
            for b in self.order:
                ins = self.blocks[b].ins
                print(f"  {b}: {len(ins)} ins, mfma={sum(1 for i in ins if i.kind=='mfma')}, est={est_cycles(ins)} cyc", end="")
                if len(ins) < 3000:
                    parts = [[]]
                    for i in ins:
                        parts[-1].append(i)
                        if i.mn == "s_barrier": parts.append([])
                    print("  intervals:", [est_cycles(x) for x in parts], end="")
                print()
    def text(self):
        o = [f".globl {self.name}", ".p2align 8", f".type {self.name},@function", f"{self.name}:"]
        for b in self.order:
            o.append(f"; ---- {b}")
            for i in self.blocks[b].ins:
                o.append(i.text if i.kind == "label" else "  " + i.text)
        return "\n".join(o)
    def desc(self):
        acc = 256 if self.vgpr > 256 else (self.vgpr + 3) // 4 * 4
        return f""".p2align 6
.amdhsa_kernel {self.name}
  .amdhsa_next_free_vgpr {self.vgpr}
  .amdhsa_next_free_sgpr 102
  .amdhsa_accum_offset {acc}
  .amdhsa_group_segment_fixed_size 0
  .amdhsa_kernarg_size 104
  .amdhsa_user_sgpr_count 2
  .amdhsa_user_sgpr_kernarg_segment_ptr 1
  .amdhsa_system_sgpr_workgroup_id_x 1
.end_amdhsa_kernel"""

def emit(kernels, path):
    hdr = [l.rstrip("\n") for l in open(f"cdna_kernels/{NAME}.s.ref") if l.startswith(";") and "@launch" not in l]
    o = list(hdr)
    if len(kernels) == 1 and kernels[0].name == NAME + "_kernel":
        k = kernels[0]
        o.append(f"; @launch grid=({k.grid},1,1) block=(256,1,1) lds={k.lds}")
    else:
        for k in kernels: o.append(f"; @launch kernel={k.name} grid=({k.grid},1,1) block=(256,1,1) lds={k.lds}")
    o += ['.amdgcn_target "amdgcn-amd-amdhsa--gfx950"', ".text"]
    for k in kernels: o.append(k.text())
    o += ['.section .rodata,"a"']
    for k in kernels: o.append(k.desc())
    open(path, "w").write("\n".join(o) + "\n")

import os
PROF = int(os.environ.get("PROF", "0"))
TIMER = "s_memtime" if os.environ.get("CYC") else "s_memrealtime"
PROF_BASE = 0x7000000
S_PROF = 70
def stamp_bars(ins, ks, mode):
    if PROF != mode: return ins
    idx = [i for i, x in enumerate(ins) if x.mn == "s_barrier"][-len(ks):]
    for i, k in reversed(list(zip(idx, ks))): ins[i+1:i+1] = stamp(k, mode)
    return ins
def stamp(k, mode=1):
    if not PROF or (PROF != mode and k not in (0, 14)): return []
    return L(f"{TIMER} s[{S_PROF+2*k}:{S_PROF+2*k+1}]")
def prof_out(kidx, nst, srd_ws=20, s_w=3):
    if not PROF: return []
    if os.environ.get("PROBE"):
        k, wg, mul = [int(x) for x in os.environ["PROBE"].split(",")]
        return L(f"""s_waitcnt vmcnt(0) lgkmcnt(0)
      {TIMER} s[{S_PROF+2*nst}:{S_PROF+2*nst+1}]
      s_waitcnt lgkmcnt(0)""" + ("""
      buffer_wbl2 sc1
      s_waitcnt vmcnt(0)""" if os.environ.get("WBE") else "") + (f"""
      s_cmp_lg_u32 s2, {wg}
      s_cbranch_scc1 Lexit1""" if wg >= 0 else "") + f"""
      s_cmp_lg_u32 s{s_w}, 0
      s_cbranch_scc1 Lexit1
      s_sub_u32 s24, s{S_PROF+2*k}, s{S_PROF}
      s_mul_i32 s24, s24, {mul}
      s_add_u32 s24, s24, 12000
      Lspin:
      s_memrealtime s[26:27]
      s_waitcnt lgkmcnt(0)
      s_sub_u32 s26, s26, s{S_PROF}
      s_cmp_lt_u32 s26, s24
      s_cbranch_scc1 Lspin""")
    o = L(f"""s_waitcnt vmcnt(0) lgkmcnt(0)
      {TIMER} s[{S_PROF+2*nst}:{S_PROF+2*nst+1}]
      s_lshl_b32 s24, s2, 2
      s_add_u32 s24, s24, s{s_w}
      s_lshl_b32 s24, s24, 6
      s_add_u32 s24, s24, {hex(PROF_BASE + kidx * 65536)}
      s_mov_b64 exec, 1
      v_mov_b32 v1, 0
      s_waitcnt lgkmcnt(0)""")
    for k in range(nst + 1):
        o += L(f"v_mov_b32 v2, s{S_PROF+2*k}", f"buffer_store_dword v2, v1, s[{srd_ws}:{srd_ws+3}], s24 offen offset:{4*k}")
    return o
```

```python
from p4base import *

VK, VV = 18, 19
VBAD, VGL = 43, 44
VNL, VLS = 10, 14
VX = 46
SB = [[U(2), U(0)], [U(8), U(9)]]
PB = [U(1), U(7)]
NEGM, MK = U(10), U(11)
A_L, A_K, A_V, A_ONE = 128, 144, 176, 208
def a_o(db, a): return 16 * db + 4 * a
S_DM0, S_DSO, S_CNT, S_ACT2, S_EO = 67, 68, 69, 7, 49
RING_A, RING_B, STASH = 0x10000, 0, 0x20000
LSUM = 0x10000 + 3 * 16384 + 4096
ALL = [0, 1, 2, 3]

class Per:
    def __init__(self, ph, qk=ALL, mask=None, pv=ALL, first=False, dma=(1, 1), dph=None, kph=None, vph=None, kread=True, vread=True,
                 amajor=None, vregs=A_V, bar=True, kregs=A_K, pad=0, early=False):
        self.ph = ph
        self.qk = qk; self.mask = mask; self.pv = pv; self.first = first
        self.dma = dma
        self.dph = ph if dph is None else dph
        self.kph = (ph + 1) % 4 if kph is None else kph
        self.vph = ph if vph is None else vph
        self.kread = kread; self.vread = vread; self.amajor = amajor; self.vregs = vregs; self.bar = bar
        self.kregs = kregs; self.pad = pad; self.early = early

NSPLIT = 5
def seq(name, pers, par0, carry_in=True, carry_out=True, extra=None, tail=None, tail_ok=False):
    spine = []; info = []
    for n, P in enumerate(pers):
        par = (par0 + n) & 1
        d = dict(start=len(spine), sdone={}, odone={}, vlast={}, klast={})
        order = [(kvb, ds) for kvb in range(2) for ds in range(4)] if len(P.qk) > 1 else [(kvb, ds) for ds in range(4) for kvb in range(2)]
        order = [(kvb, ds, a) for kvb, ds in order for a in P.qk]
        if "q" in CH: order = [(kvb, ds ^ (3 * (i & 1)), a) for kvb in range(2) for i, a in enumerate(P.qk) for ds in range(4)]
        for kvb, ds, a in order:
                D = r4("v", SB[par][kvb] + 4 * a)
                C = D if (kvb, a) in d["sdone"] else (r4("v", MK + 8 + 4 * kvb) if a == P.mask else r4("v", NEGM + 4 * a))
                spine.append(I(f"{MF} {D}, {r4('a', P.kregs + 16 * kvb + 4 * ds)}, {r4('v', q_reg(a, ds))}, {C}"))
                d["sdone"][(kvb, a)] = len(spine) - 1
        d["qkend"] = len(spine)
        spine += [None] * P.pad
        d["mid"] = len(spine)
        pp = PB[par ^ 1]
        def summ(a):
            D = r4("a", A_L + 4 * a)
            spine.append(I(f"{MF} {D}, {r4('a', A_ONE)}, {r4('v', pp + 4 * a)}, {'0' if P.first else D}"))
        def pv(db, a):
            D = r4("a", a_o(db, a))
            spine.append(I(f"{MF} {D}, {r4('a', P.vregs + 4 * db)}, {r4('v', pp + 4 * a)}, {'0' if P.first else D}"))
            d["odone"][a] = len(spine) - 1; d["vlast"][db] = len(spine) - 1
        if P.amajor:
            for a in P.amajor:
                summ(a)
                for db in range(8): pv(db, a)
        else:
            for a in P.pv: summ(a)
            for db in range(8):
                for a in (P.pv[::-1] if "q" in CH and db % 2 == 0 else P.pv): pv(db, a)
        d["end"] = len(spine)
        info.append(d)
    ds = []; vm = []; ex = []; cv = []; mk = []
    def softmax(par, tiles, done, dl=None):
        for (kvb, a) in tiles:
            e = done(kvb, a); b = SB[par][kvb] + 4 * a
            es = [I(f"v_exp_f32 v{b+r}, v{b+r}", earliest=e) for r in range(4)]
            ex.extend(es)
            for k in range(2):
                c = I(f"v_cvt_pk_bf16_f32 v{PB[par] + 4 * a + 2 * kvb + k}, v{b+2*k}, v{b+2*k+1}", earliest=e, deps=[(es[2 * k + 1], 1)])
                if dl is not None: c.deadline = dl
                cv.append(c)
    full = [(kvb, a) for kvb in range(2) for a in ALL]
    if carry_in: softmax(par0 ^ 1, full[NSPLIT:], lambda k, a: 0)
    bars = []
    for n, P in enumerate(pers):
        d = info[n]; par = (par0 + n) & 1
        if P.mask is not None and n > 0:
            e = max(d["start"] - 12, info[n - 1]["qkend"] - 4)
            for kvb in range(2):
                for r in range(4):
                    mk.append(I(f"v_add_f32 v{MK + 8 + 4 * kvb + r}, v{MK + 4 * kvb + r}, v{NEGM + 4 * P.mask}", earliest=e))
            d["mk"] = mk[-8:]
        lastv = None
        if P.vread and (P.pv or P.amajor):
            nq = d["mid"] - d["start"]
            for db in range(8):
                x = I(f"ds_read_b128 {r4('a', P.vregs + 4 * db)}, v{VV} offset:{P.vph * 16384 + db * 1024}")
                if P.vregs == A_V:
                    x.earliest = d["start"] + (db * max(nq - 10, 0)) // 10
                    if n and db in info[n - 1]["vlast"] and nq < 24: x.earliest = max(info[n - 1]["vlast"][db], info[n - 1]["klastpos"] + 1)
                else: x.earliest = info[n - 1]["mid"] + 2 * db
                ds.append(x); lastv = x; d.setdefault("vreads", []).append(x)
        if P.bar:
            e = d["mid"] - 1 if not P.early else d["start"] + 6
            w = [WAITG("kv", n + 1), I("s_barrier")]
            if lastv is not None: w.insert(0, WAITLGKM(lastv))
            if P.early: w.insert(0, I("s_waitcnt lgkmcnt(0)"))
            for x in w: x.earliest = max(e - 1, d["start"]); x.deadline = max(e, d["start"])
            ds += w; d["bar"] = w[-1]; d["barwait"] = w[0]
        d["klastpos"] = d["mid"]
        if P.kread:
            npv = d["end"] - d["mid"]
            for f in range(8):
                kvb, dsi = (f >> 2, f & 3) if (n + 1 >= len(pers) or len(pers[n + 1].qk) > 1 or "q" in CH) else (f & 1, f >> 1)
                kr = pers[n + 1].kregs if n + 1 < len(pers) else A_K
                x = I(f"ds_read_b128 {r4('a', kr + 16 * kvb + 4 * dsi)}, v{VK} offset:{P.kph * 16384 + 8192 + (4 * kvb + dsi) * 1024}")
                x.earliest = d["mid"] - 1 + (f * max(npv - 12, 0)) // 10 if not P.early else d["start"] + 7 + 2 * f
                d.setdefault("kreads", []).append(x)
                ds.append(x); d["klastpos"] = x.earliest
        def dmas(slot, h, goff, e0, span, dep):
            o = L(f"s_add_u32 m0, s{S_DM0}, {slot * 16384 + 4096 * h}")
            for k in range(4):
                x = I(f"buffer_load_dwordx4 v{VST}, s[{SRD_WS}:{SRD_WS+3}], s{S_DSO} offen offset:{1024 * k} sc1 lds"); x.grp = ("kv", goff)
                x.earliest = e0 + (k * span) // 4; x.maxlag = 4
                o.append(x)
            o += L(f"s_add_u32 s{S_DSO}, s{S_DSO}, {12288 if h else 4096}")
            o[0].earliest = e0; o[0].deps = [dep] if dep else []; o[1].deps = [(o[0], 1)]
            return o
        if P.dma[0]:
            o = dmas((P.dph + 3) % 4, 1, n + 3, d["start"], d["mid"] - d["start"] - 4, None)
            o[-2].deadline = d["end"] - 1
            vm += o
        if P.dma[1]:
            e0 = d["mid"] if not P.early else d["start"] + 8
            o = dmas(P.dph, 0, n + 4, e0, d["end"] - e0 - 4, (d["bar"], 0))
            o[-2].deadline = o[-1].deadline = d["end"] - 1
            vm += o
        tiles = [(kvb, a) for kvb in range(2) for a in P.qk]
        last = n == len(pers) - 1
        if last and carry_out:
            assert P.qk == ALL
            softmax(par, tiles[:NSPLIT], lambda k, a: d["sdone"][(k, a)] + 8, dl=d["end"] - 1)
        else:
            nx = pers[n + 1] if not last else None
            if nx is not None and nx.amajor: tiles = [(kvb, a) for kvb in range(2) for a in nx.amajor]
            softmax(par, tiles, lambda k, a: d["sdone"][(k, a)] + SLAG(P))
    xs = extra(info) if extra else []
    st = [ds, vm, mk, ex, cv] + xs
    if tail:
        tail.earliest = tail.deadline = len(spine) - 1
        st.append([tail])
    out = schedule(spine, st, verbose=name, tail_ok=tail_ok)
    out = fix_hazards(out)
    tk = [TICK("kv", len(pers))]
    if tail: return out[:-1] + tk + out[-1:]
    return out + tk

def SLAG(P): return 8 if len(P.qk) >= 3 else 4

A_K2 = 212
EG = [FR, FR + 8]
VL = 40
def store_ctx(b, sbase, ds, a):
    o = []
    if ds: o += L(f"s_add_u32 s{S_EO}, s{sbase}, {ds * 8192}")
    o += L(f"buffer_store_dwordx4 {r4('v', b)}, v{VST2 if a >= 2 else VST}, s[{SRD_WS}:{SRD_WS+3}], s{S_EO if ds else sbase} offen offset:{(a & 1) * 2048}{os.environ.get('SCC', ' sc1')}")
    CTX_LAST.append(o[-1])
    return o
CTX_LAST = []
def p4_pro(tag, t_poll, bar0, t_v, t_k):
    ha, hb = poll2(tag, VHP, 0, 4, t_poll, t_poll + 64)
    o = ha + [hb] + aload(0) + aload(1)
    w = wdma(0); w[0].deps = [(bar0, 0)]
    o += w
    for k in (2, 3, 4, 5):
        x = aload(k); x[1].earliest = t_v if k < 4 else t_k
        o += x
    return o
def scale_ops(vl, vg):
    return L(f"""v_subrev_u32 v{vl+1}, 0x1f800000, v{vl}
      v_rcp_f32 v{vl}, v{vl}
      v_max_u32 v{VBAD}, v{VBAD}, v{vl+1}
      v_mul_f32 v{vl}, v{vl}, v{vg}""")
egc = [0]
def epi_own(a, e):
    o = L(f"v_accvgpr_read_b32 v{VL}, a{A_L + 4 * a}") + scale_ops(VL, VC + 2 * a)
    for ds in range(4):
        t = EG[egc[0] & 1]; egc[0] += 1
        for k in range(2):
            for r in range(4): o += L(f"v_accvgpr_read_b32 v{t+4*k+r}, a{a_o(2*ds+k, a)+r}")
            for r in range(4): o += L(f"v_mul_f32 v{t+4*k+r}, v{VL}, v{t+4*k+r}")
            o += L(f"v_cvt_pk_bf16_f32 v{t+2*k}, v{t+4*k}, v{t+4*k+1}", f"v_cvt_pk_bf16_f32 v{t+2*k+1}, v{t+4*k+2}, v{t+4*k+3}")
        st = store_ctx(t, S_ACT, ds, a); st[-1].maxlag = 2
        o += st
    for x in o: x.earliest = e
    return o

HL = []
def front_tail(ctx):
    S, misc, vm, bars, barpos = ctx["S"], ctx["misc"], ctx["vm"], ctx["bars"], ctx["barpos"]
    HL.append(ctx["h_last"])
    pl = poll("kv", VT + 10, L(f"s_lshl_b32 s{S_PO}, s{S_H}, 2", f"s_add_u32 s{S_PO}, s{S_PO}, {DBG_KV}"), 8, S[106], S[116])
    misc += pl
    su = L(f"""s_mul_i32 s{S_DSO}, s{S_H}, {hex(KV_HEAD)}
      s_add_u32 s{S_DSO}, s{S_DSO}, {hex(KV_BASE - 8192)}
      s_add_u32 s{S_CNT}, s{S_DSO}, s{S_WM0}""")
    misc += su
    o = []
    for sl in range(4):
        u = L(f"s_add_u32 m0, s{S_WM0}, {RING_A + sl * 16384}", f"s_add_u32 s{S_DT}, s{S_CNT}, {sl * 16384}")
        for k in range(4):
            x = I(f"buffer_load_dwordx4 v{VST}, s[{SRD_WS}:{SRD_WS+3}], s{S_DT} offen offset:{1024 * k} sc1 lds"); x.grp = ("kv", sl); u.append(x)
        o += u
    o[0].deps = [(su[-1], 0)]
    for x in o: x.earliest = S[123]
    assert vm[-1].earliest < S[123] + 16
    vm += o; ctx["cur"][0] = None
    su2 = L(f"""s_and_b32 s{S_PT}, s{S_W}, 1
      s_lshl_b32 s{S_PT}, s{S_PT}, 13
      s_add_u32 s{S_DSO}, s{S_DSO}, s{S_PT}""")
    su2 += [Bundle(L(f"s_cmp_lt_u32 s{S_W}, 2", f"s_cselect_b32 s{S_DM0}, {RING_A}, {RING_B}", f"s_cselect_b32 s{S_PO}, 4, 34"))]
    su2 += L(f"""s_lshl_b32 s{S_PO}, s{S_PO}, 14
      s_add_u32 s{S_DM0}, s{S_DM0}, s{S_PT}
      s_add_u32 s{S_DSO}, s{S_DSO}, s{S_PO}
      s_lshl_b32 s{S_PO}, s{S_J}, 1
      s_sub_u32 s{S_PO}, 15, s{S_PO}
      s_mul_i32 s{S_PO}, s{S_PO}, {hex(ACT_RB)}
      s_add_u32 s{S_ACT2}, s{S_ACT}, s{S_PO}
      v_add_u32 v{VK}, {RING_A}, v{VST}
      v_add_u32 v{VV}, {RING_A}, v{VST}
      s_lshl_b32 s{S_PT}, s{S_PT}, 1
      v_add_u32 v{VX}, s{S_PT}, v{VST}
      s_lshr_b32 s{S_PT}, s{S_PT}, 4
      s_add_u32 s{S_PT}, s{S_PT}, {LSUM}
      v_add_u32 v{VLS}, s{S_PT}, v{VST}""")
    misc += su2
    t = VT + 8
    mk = L(f"""v_and_b32 v{t}, 15, v0
      v_lshrrev_b32 v{t+1}, 4, v0
      v_lshlrev_b32 v{t+1}, 2, v{t+1}
      v_sub_u32 v{t}, v{t}, v{t+1}
      s_and_b32 s{S_PT}, s{S_W}, 1
      s_lshl_b32 s{S_PT}, s{S_PT}, 4
      v_add_u32 v{t}, s{S_PT}, v{t}
      v_mov_b32 v{t+1}, 0xff800000""")
    for kvb in range(2):
        for r in range(4):
            mk += [Bundle(L(f"v_cmp_le_i32 vcc, {16 * kvb + r}, v{t}", "s_nop 1", f"v_cndmask_b32_e64 v{MK + 4 * kvb + r}, v{t+1}, 0, vcc"))]
    for x in mk: x.earliest = S[121]
    misc += mk
    ng = L(*[f"v_mov_b32 v{NEGM + r}, 0" for r in range(16)]) + L(*[f"v_mov_b32 v{VNL + r}, 0" for r in range(4)])
    ng += L(*[f"v_mov_b32 v{MK + 8 + r}, v{MK + r}" for r in range(8)])
    for x in ng: x.earliest = S[121]
    misc += ng
    w = [WAITG("kv", 0), I("s_barrier")]
    w[0].deps = [(o[5], 100)]
    for f in range(8): w.append(I(f"ds_read_b128 {r4('a', A_K + 4 * f)}, v{VK} offset:{8192 + f * 1024}"))
    for x in w: x.earliest = S[134] + 4
    w[2].deps = [(su2[-1], 1)]
    pz = pz_setup()
    for x in pz: x.earliest = S[40]
    return [w, pz]

VCT, VWT = 29, 30
S_TW2, S_TWO, S_TWL, S_TWO2 = 59, 60, 61, 62
def wtouch_setup():
    return L(f"""s_sub_u32 s{S_TW2}, s{S_J}, 1
      s_sub_u32 s{S_TWO}, s{S_J}, 2
      s_mul_i32 s{S_TW2}, s{S_TW2}, s{S_TWO}
      s_and_b32 s{S_TWO}, s{S_W}, 1
      s_add_u32 s{S_TW2}, s{S_TW2}, s{S_TWO}
      s_mul_i32 s{S_TWL}, s{S_TW2}, {4 * 1152}
      s_mul_i32 s{S_TWO}, s{S_H}, {128 * 1152}
      s_add_u32 s{S_TWO2}, s{S_TWO}, {124 * 1152}
      s_add_u32 s{S_TWO}, s{S_TWO}, s{S_TWL}
      s_lshl_b32 s{S_TW2}, s{S_TW2}, 2
      s_lshr_b32 s{S_TWL}, s{S_H}, 3
      s_add_u32 s{S_TW2}, s{S_TW2}, s{S_TWL}
      s_mul_i32 s{S_TW2}, s{S_TW2}, {4 * 1152}
      s_and_b32 s{S_TWL}, s{S_H}, 7
      s_mul_i32 s{S_TWL}, s{S_TWL}, {576 * 1152}
      s_add_u32 s{S_TW2}, s{S_TW2}, s{S_TWL}
      s_add_u32 s{S_TWL}, s{S_TWL}, {572 * 1152}
      v_min_u32 v{VWT}, 17, v0
      v_lshlrev_b32 v{VWT}, 7, v{VWT}""")
def wtouch(info):
    o = L(f"""s_min_u32 s{S_TW2}, s{S_TW2}, s{S_TWL}
      buffer_load_dword a248, v{VWT}, s[{SRD_W2}:{SRD_W2+3}], s{S_TW2} offen
      s_min_u32 s{S_TWO}, s{S_TWO}, s{S_TWO2}
      buffer_load_dword a248, v{VWT}, s[{SRD_WO}:{SRD_WO+3}], s{S_TWO} offen
      buffer_load_dword a248, v{VWT}, s[{SRD_W2}:{SRD_W2+3}], s{S_TW2} offen offset:2304
      s_add_u32 s{S_TW2}, s{S_TW2}, {32 * 1152}
      buffer_load_dword a248, v{VWT}, s[{SRD_WO}:{SRD_WO+3}], s{S_TWO} offen offset:2304
      s_add_u32 s{S_TWO}, s{S_TWO}, {8 * 1152}""")
    for k, x in enumerate([x for x in o if x.kind == "vmem"]): x.wr = []; x.maxlag = 6; x.earliest = info[k]["start"] + 10
    return o
def ones():
    return (caddr(VCT, "Lpre_back") + [ctouch(VCT, "a248")] if "l" in CT else []) + L(f"v_mov_b32 v{VBAD}, 0", f"v_mov_b32 v{VT}, 0x3f803f80") + L(*[f"v_accvgpr_write_b32 a{A_ONE + r}, v{VT}" for r in range(4)])

def head(isL):
    D = (1, 1) if isL else (0, 0)
    pers = [Per(0, pv=[], dma=(0, D[1]), early=True), Per(1, first=True, dma=D, kregs=A_K2), Per(2, dma=D), Per(3, dma=D)]
    def extra(info):
        xs = [ones()]
        info[3]["barwait"].waitfor.append(HL[0])
        if isL:
            sg = sig_group(0) + [Bundle(flag_addr(VL, 11, 4, None))] + [release("h"), sig_store(VL)]
            sg[-2].deps = [(info[3]["bar"], 0)]
            xs.append(sg)
            st = [I(f"ds_write_b128 v{VX+1}, {r4('v', q_reg(a, ds))} offset:{(4 * a + ds) * 1024}") for a in range(4) for ds in range(4)]
            st = L(f"v_add_u32 v{VX+1}, {STASH}, v{VX}") + st
            st[1].deps = [(info[0]["bar"], 0)]
            info[1]["barwait"].waitfor.append(st[-1]); info[1]["barwait"].deps.append((st[-1], 2))
            xs.append(st)
        if not isL:
            pf = L(f"""s_lshl_b32 s{S_PO}, s{S_J}, 1
              s_add_u32 s{S_PO}, s{S_PO}, s{S_W}
              s_sub_u32 s{S_PO}, s{S_PO}, 4
              s_mul_i32 s{S_PT}, s{S_H}, 18
              s_add_u32 s{S_PT}, s{S_PT}, s{S_PO}
              s_lshl_b32 s{S_PT}, s{S_PT}, 13
              v_lshlrev_b32 v{VL}, 7, v0
              buffer_load_dword v{VL+1}, v{VL}, s[{SRD_WO}:{SRD_WO+3}], s{S_PT} offen
              s_add_u32 s{S_PT}, s{S_PT}, {4 * 8192}
              buffer_load_dword v{VL+1}, v{VL}, s[{SRD_WO}:{SRD_WO+3}], s{S_PT} offen
              s_lshl_b32 s{S_PO}, s{S_PO}, 2
              s_lshr_b32 s{S_PT}, s{S_H}, 3
              s_add_u32 s{S_PO}, s{S_PO}, s{S_PT}
              s_and_b32 s{S_PT}, s{S_H}, 7
              s_mul_i32 s{S_PT}, s{S_PT}, 81
              s_add_u32 s{S_PT}, s{S_PT}, s{S_PO}
              s_lshl_b32 s{S_PT}, s{S_PT}, 13
              buffer_load_dword v{VL+1}, v{VL}, s[{SRD_W2}:{SRD_W2+3}], s{S_PT} offen
              s_add_u32 s{S_PT}, s{S_PT}, {25 * 8192}
              buffer_load_dword v{VL+1}, v{VL}, s[{SRD_W2}:{SRD_W2+3}], s{S_PT} offen""")
            ld = [x for x in pf if x.kind == "vmem"]
            for x in ld[:-1]: x.wr = []
            ld[0].deps = [(info[2]["bar"], 0)]
            xs.append(pf if "w" in os.environ.get("X", "") else wtouch_setup())
        cnt = L(f"s_mov_b32 s{S_CNT}, 7") if isL else L(f"s_sub_u32 s{S_CNT}, s{S_J}, 1")
        xs.append(cnt); xs.append(p4_setup())
        return xs
    return seq("head" + "SL"[isL], pers, 0, carry_in=False, extra=extra)

def loop(dma, label):
    D = (1, 1) if dma else (0, 0)
    pers = [Per(i, dma=D) for i in range(4)]
    tail = Bundle(L(f"s_cmp_lg_u32 s{S_CNT}, 0", f"s_cbranch_scc1 {label}"))
    def extra(info):
        pz = [I(f"buffer_store_dwordx4 {r4('a', A_Z)}, v{VPZ}, s[{SRD_PZ}:{SRD_PZ+3}], 0 offen offset:{1024 * k} sc1", earliest=info[k]["mid"] + 10) for k in range(4)]
        if "z" in os.environ.get("X", ""): pz = []
        PZ.extend(pz)
        return [L(f"s_sub_u32 s{S_CNT}, s{S_CNT}, 1") + ([ctouch(VCT, "a248", earliest=info[1]["mid"] + 20)] if "l" in CT else []), [] if dma or "o" in os.environ.get("X", "") else wtouch(info), pz + [I(f"v_add_u32 v{VPZ}, 0x1000, v{VPZ}", deadline=info[3]["end"] - 2)]]
    out = seq("loop" + "ND"[dma], pers, 0, extra=extra, tail=tail)
    pf = []
    if PROF == 4: pf = L(*[f"s_mov_b32 s{S_PROF+2*k}, s{S_PROF+2*k+2}" for k in range(2, 8)]) + stamp(8, 4)
    return L(label + ":") + pf + out

def gl_load():
    return L(f"""v_and_b32 v{VL+2}, 15, v0
        v_lshlrev_b32 v{VL+2}, 3, v{VL+2}
        s_sub_u32 s{S_PO}, 15, s{S_J}
        s_lshl_b32 s{S_PO}, s{S_PO}, 3
        s_and_b32 s{S_PT}, s{S_W}, 1
        s_add_u32 s{S_PO}, s{S_PO}, s{S_PT}
        s_lshl_b32 s{S_PO}, s{S_PO}, 7
        s_add_u32 s{S_PO}, s{S_PO}, {hex(G_BASE)}
        buffer_load_dword v{VGL}, v{VL+2}, s[{SRD_WS}:{SRD_WS+3}], s{S_PO} offen offset:512 sc1
        buffer_load_dword v{VGL+1}, v{VL+2}, s[{SRD_WS}:{SRD_WS+3}], s{S_PO} offen offset:768 sc1""")

def switch(j0):
    p0 = Per(0, mask=0, dma=(0, 1), dph=2) if not j0 else Per(0, mask=0, pv=[], dma=(0, 1), dph=2, early=True)
    pers = [p0,
            Per(1, qk=[1, 2, 3], mask=1, dph=3, pad=8, first=j0, kregs=A_K2 if j0 else A_K),
            Per(2, qk=[2, 3], mask=2, pv=[1, 2, 3], dph=0, pad=16),
            Per(3, qk=[3], mask=3, pv=[2, 3], dph=1, kph=2, pad=32),
            Per(2, pv=[3], vph=0, pad=18),
            Per(3, first=True, amajor=[0, 1, 2, 3], pad=26)]
    def extra(info):
        ep = []
        for a in range(4): ep += epi_own(a, info[a + 1]["odone"][a] + 8)
        q = L(f"v_add_u32 v{VX+1}, {STASH}, v{VX}")
        for a in range(4):
            for ds in range(4):
                q.append(I(f"ds_read_b128 {r4('v', q_reg(a, ds))}, v{VX+1} offset:{(4 * a + ds) * 1024}", earliest=max(info[a]["qkend"], info[2]["mid"])))
        sw = [I(f"v_add_u32 v{VK}, {RING_B - RING_A}, v{VK}", deps=[(info[2]["kreads"][-1], 0)]),
              I(f"v_add_u32 v{VV}, {RING_B - RING_A}, v{VV}", deps=[(info[4]["vreads"][-1], 0)])]
        info[3]["kreads"][0].deps.append((sw[0], 1)); info[5]["vreads"][0].deps.append((sw[1], 1))
        ng = []
        for a in range(4):
            for r in range(4): ng.append(I(f"v_mov_b32 v{NEGM + 4 * a + r}, v{VNL + a}", earliest=info[a]["qkend"] + 2))
        for r in range(8): ng.append(I(f"v_add_f32 v{MK + 8 + r}, v{MK + r}, v{NEGM}"))
        xs = [sw, q, ng, ep, gl_load() + L(f"s_sub_u32 s{S_CNT}, 6, s{S_J}")]
        if j0: xs.insert(0, ones()); info[3]["barwait"].waitfor.append(HL[0]); xs.append(p4_setup())
        return xs
    pre = []
    return seq("switch0" if j0 else "switch", pers, 0, carry_in=not j0, extra=extra, tail_ok=True)

def final(j7):
    pers = [Per(0, mask=0, dma=(1, 1)),
            Per(1, qk=[1, 2, 3], mask=1, dma=(1, 0), pad=0 if j7 else 8),
            Per(2, qk=[2, 3], mask=2, pv=[1, 2, 3], dma=(0, 0), pad=0 if j7 else 16),
            Per(3, qk=[3], mask=3, pv=[2, 3], dma=(0, 0), kread=False, pad=0 if j7 else 32),
            Per(0, qk=[], pv=[3], dma=(0, 0), kread=False, bar=False, vregs=A_K)]
    def extra(info):
        if j7:
            ep = []
            for a in range(4): ep += epi_own(a, info[a + 1]["odone"][a] + 8)
            pp = p4_pro("h7", 0, info[2]["bar"], info[3]["end"], info[4]["end"])
            w = wdma(1); w[0].deps = [(info[3]["bar"], 0)]
            return [pp + w, ep]
        x = L(f"v_add_u32 v{VX+1}, {STASH}, v{VX}")
        for a in range(2):
            e = info[a + 1]["odone"][a] + 8
            for db in range(8): x.append(I(f"ds_write_b128 v{VX+1}, {r4('a', a_o(db, a))} offset:{(8 * a + db) * 1024}", earliest=e))
            x.append(I(f"ds_write_b32 v{VLS}, a{A_L + 4 * a} offset:{4 * a}", earliest=e, deps=[(info[1]["bar"], 0)]))
        info[3]["barwait"].waitfor.append(x[-1]); info[3]["barwait"].deps.append((x[-1], 2))
        m = []
        for a in (2, 3):
            e = max(info[a + 1]["odone"][a] + 8, info[3]["qkend"] + 1)
            for db in range(8):
                for r in range(4): m.append(I(f"v_accvgpr_read_b32 v{mreg(a - 2, db) + r}, a{a_o(db, a) + r}", earliest=e))
            m.append(I(f"v_accvgpr_read_b32 v{VL + 2 * (a - 2)}, a{A_L + 4 * a}", earliest=e))
        return [x, p4_pro("hS", info[1]["start"], info[3]["bar"], info[3]["end"], info[4]["end"]), m]
    return seq("final7" if j7 else "final", pers, 0, carry_out=False, extra=extra, tail_ok=True)

def mreg(a2, db): return U(Q_UNITS[2 * a2 + (db >> 2)]) + 4 * (db & 3)
def nreg(a2, db): return SB[a2][db >> 2] + 4 * (db & 3)
VL2 = VT + 8

def finalize(isL):
    o = []
    for a2 in range(2):
        a = a2 if isL else a2 + 2
        vl = VL + 2 * a2
        sc = VT + 2 * a2
        o += L(f"v_add_f32 v{sc}, v{vl}, v{VL2 + a2}") + scale_ops(sc, VC + 2 * a if isL else VGL + a2) + L(f"v_mov_b32 v{sc+1}, v{sc}")
        for ds in range(4):
            for k in range(2):
                m, n = mreg(a2, 2 * ds + k), nreg(a2, 2 * ds + k)
                if isL:
                    for r in range(4): o += L(f"v_accvgpr_read_b32 v{n+r}, a{a_o(2*ds+k, a)+r}")
                for r in (0, 2): o += L(f"v_pk_add_f32 {r2('v', m+r)}, {r2('v', m+r)}, {r2('v', n+r)}")
                for r in (0, 2): o += L(f"v_pk_mul_f32 {r2('v', m+r)}, {r2('v', m+r)}, {r2('v', sc)}")
            m0, m1 = mreg(a2, 2 * ds), mreg(a2, 2 * ds + 1)
            o += L(f"v_cvt_pk_bf16_f32 v{m0}, v{m0}, v{m0+1}", f"v_cvt_pk_bf16_f32 v{m0+1}, v{m0+2}, v{m0+3}",
                   f"v_cvt_pk_bf16_f32 v{m0+2}, v{m1}, v{m1+1}", f"v_cvt_pk_bf16_f32 v{m0+3}, v{m1+2}, v{m1+3}")
            o += store_ctx(m0, S_ACT if isL else S_ACT2, ds, a)
    return o

def ltail():
    pers = [Per(0, dma=(0, 0)), Per(1, dma=(0, 0), kread=False),
            Per(2, qk=[], amajor=[2, 3, 0, 1], dma=(0, 0), kread=False, bar=False, vregs=A_K)]
    def extra(info):
        rd = L(f"v_add_u32 v{VX+1}, {STASH}, v{VX}")
        for a2 in range(2):
            for db in range(8): rd.append(I(f"ds_read_b128 {r4('v', mreg(a2, db))}, v{VX+1} offset:{(8 * a2 + db) * 1024}", earliest=info[1]["mid"] + 18))
            rd.append(I(f"ds_read_b32 v{VL2 + a2}, v{VLS} offset:{4 * a2}"))
        rd[1].deps = [(info[1]["bar"], 0)]
        x = rd + L(f"v_add_u32 v{VX+1}, {RING_A}, v{VX}")
        for a in (2, 3):
            e = info[2]["odone"][a] + 5
            x.append(I(f"ds_write_b32 v{VLS}, a{A_L + 4 * a} offset:{4 * a}", earliest=e))
            for db in range(8): x.append(I(f"ds_write_b128 v{VX+1}, {r4('a', a_o(db, a))} offset:{(8 * (a - 2) + db) * 1024}", earliest=e - 7 + db))
        x += [WAITLGKM(x[-1]), I("s_barrier")]
        return [x, p4_pro("hL", 0, info[1]["bar"], info[1]["end"], info[2]["end"])]
    o = seq("ltail", pers, 0, carry_out=False, extra=extra, tail_ok=True)
    o += wdma(1) + L(f"v_accvgpr_read_b32 v{VL}, a{A_L}", f"v_accvgpr_read_b32 v{VL+2}, a{A_L+4}") + finalize(True)
    return fix_hazards(o)

def smerge():
    o = L("s_barrier", f"v_add_u32 v{VX+1}, {RING_A}, v{VX}")
    for a2 in range(2):
        o += L(f"ds_read_b32 v{VL2 + a2}, v{VLS} offset:{4 * (a2 + 2)}")
        for db in range(8): o += L(f"ds_read_b128 {r4('v', nreg(a2, db))}, v{VX+1} offset:{(8 * a2 + db) * 1024}")
    return fix_hazards(o + wdma(1) + finalize(False))

def prepass():
    M = FR; T = FR + 4; CI = SB[1]; D = SB[0]
    o = L(f"""Lpre:
      s_waitcnt vmcnt(0) lgkmcnt(0)
      s_nop 7
      s_mul_i32 s{S_T0}, s{S_H}, {hex(KV_HEAD)}
      s_add_u32 s{S_T0}, s{S_T0}, {hex(KV_BASE)}
      s_lshl_b32 s{S_T1}, s{S_BLK}, 2
      s_sub_u32 s{S_T1}, 0, s{S_T1}
      v_mov_b32 v{T+1}, 0xff800000""")
    o += L(*[f"v_mov_b32 v{M+a}, v{T+1}" for a in range(4)])
    o += L(*[f"v_mov_b32 v{CI[k]+r}, 0" for k in range(2) for r in range(16)])
    o += L("Lpre_loop:")
    for f in range(8):
        o += L(f"buffer_load_dwordx4 {r4('a', A_V + 4 * f)}, v{VST2 if f >= 4 else VST}, s[{SRD_WS}:{SRD_WS+3}], s{S_T0} offen offset:{(f & 3) * 1024} sc1")
    for a in range(4):
        o += L(f"s_cmp_eq_i32 s{S_T1}, {a}", f"s_cbranch_scc0 Lpre_{a}")
        for k in range(2):
            for r in range(4):
                o += L(f"v_mov_b32 v{CI[k] + 4 * a + r}, v{MK + 4 * k + r}")
                if a: o += L(f"v_mov_b32 v{CI[k] + 4 * a - 4 + r}, v{T+1}")
        o += L(f"Lpre_{a}:")
    o += L("s_waitcnt vmcnt(0)", "s_nop 1")
    for k in range(2):
        for ds in range(4):
            for a in range(4):
                d = r4("v", D[k] + 4 * a)
                o += L(f"{MF} {d}, {r4('a', A_V + 16 * k + 4 * ds)}, {r4('v', q_reg(a, ds))}, {d if ds else r4('v', CI[k] + 4 * a)}")
    o += L("s_nop 7", "s_nop 7")
    for k in range(2):
        for a in range(4):
            for r in (0, 2): o += L(f"v_max3_f32 v{M+a}, v{D[k] + 4 * a + r}, v{D[k] + 4 * a + r + 1}, v{M+a}")
    o += L(f"""s_add_u32 s{S_T0}, s{S_T0}, 16384
      s_add_i32 s{S_T1}, s{S_T1}, 1
      s_cmp_lt_i32 s{S_T1}, 4
      s_cbranch_scc1 Lpre_loop""")
    for a in range(4):
        for sw in ("16", "32"):
            o += L(f"v_mov_b32 v{T}, v{M+a}", f"v_permlane{sw}_swap_b32 v{T}, v{M+a}", "s_nop 1", f"v_max_f32 v{M+a}, v{M+a}, v{T}")
        o += L(f"v_sub_f32 v{M+a}, 0, v{M+a}")
        o += L(*[f"v_mov_b32 v{NEGM + 4 * a + r}, v{M+a}" for r in range(4)])
    o += L(*[f"v_add_f32 v{MK + 8 + r}, v{MK + r}, v{M}" for r in range(8)])
    o += L(f"""s_lshr_b32 s{S_T0}, s{S_W}, 1
      s_lshl_b32 s{S_T0}, s{S_T0}, 10
      v_add_u32 v{VX+1}, {STASH}, v{VX}
      v_add_u32 v{T}, s{S_T0}, v{VX+1}
      ds_write_b128 v{T}, {r4('v', M)}
      s_waitcnt lgkmcnt(0)
      s_barrier
      ds_read_b128 {r4('v', VNL)}, v{VX+1}
      s_waitcnt lgkmcnt(0)
      s_branch Lpre_back""")
    return fix_hazards(o)

def k12(name, p4):
    K = Kernel(name, 256, 163840)
    pro, main = front(front_tail)
    K.add("pro", stamp(0) + entry("Lexit1") + pro)
    K.add("front", main + stamp(10) + stamp(1, 2) + stamp(1, 4) + L(f"s_cmp_lg_u32 s{S_SLOW}, 0", "s_cbranch_scc1 Lpre", "Lpre_back:", f"s_cmp_ge_u32 s{S_W}, 2", "s_cbranch_scc1 LS"))
    K.add("headL", head(True))
    K.add("loopD", loop(True, "LloopD"))
    K.add("afterD", stamp(9, 4) + L(f"s_cmp_eq_u32 s{S_J}, 7", "s_cbranch_scc1 Lfinal7", f"s_cmp_ge_u32 s{S_W}, 2", "s_cbranch_scc1 Lfinal"))
    K.add("ltail", stamp_bars(ltail(), [2, 3, 4], 2) + L("s_branch Ldone"))
    K.add("S0", L("LS:", f"s_cmp_eq_u32 s{S_J}, 0", "s_cbranch_scc1 Lswitch0"))
    K.add("headS", head(False) + L(f"s_cmp_eq_u32 s{S_CNT}, 0", "s_cbranch_scc1 Lswitch"))
    K.add("loopN", loop(False, "LloopN"))
    K.add("afterN", L(f"s_cmp_eq_u32 s{S_J}, 7", "s_cbranch_scc1 Lfinal7"))
    K.add("switch", L("Lswitch:") + switch(False) + L(f"s_cmp_lg_u32 s{S_CNT}, 0", "s_cbranch_scc1 LloopD"))
    K.add("final", L("Lfinal:") + stamp_bars(final(False) + smerge(), [2, 3, 4], 2) + L("s_branch Ldone"))
    K.add("switch0", L("Lswitch0:") + switch(True) + L("s_branch LloopD"))
    K.add("final7", L("Lfinal7:") + stamp_bars(final(True), [2, 3, 4], 2))
    K.add("bar7", L(f"s_cmp_lt_u32 s{S_W}, 2", "s_cbranch_scc1 Ldone", "s_barrier", "s_barrier", "s_barrier", "s_barrier"))
    a, b, c = p4()
    K.add("done", L("Ldone:") + stamp(11) + stamp(5, 2) + stamp(10, 4) + stamp(11, 4) + stamp(12, 4) + stamp(13, 4) + a + stamp_bars(b, list(range(6, 14)), 2) + c + prof_out(0, 15) + L("Lexit1:", "s_endpgm"))
    pf = ["pro", "front"]
    K.paths = [pf + ["headL", "loopD", "loopD", "loopD", "afterD", "ltail", "done"],
               pf + ["headL", "loopD", "loopD", "afterD", "final7", "bar7", "done"],
               pf + ["S0", "headS", "switch", "loopD", "loopD", "afterD", "final", "done"],
               pf + ["S0", "headS", "loopN", "loopN", "afterN", "switch", "final", "done"],
               pf + ["S0", "headS", "loopN", "afterN", "switch", "loopD", "afterD", "final", "done"],
               pf + ["S0", "headS", "loopN", "loopN", "afterN", "final7", "bar7", "done"],
               pf + ["S0", "switch0", "loopD", "loopD", "afterD", "final", "done"]]
    K.add("slow", [i for b in slow_blocks for i in b] + L("Lend:") + prepass())
    K.finish()
    return K
```

```python
from attn import *

def p4():
    DA = int(os.environ.get("DA", "8")); DC = int(os.environ.get("DC", "6")); CSP = int(os.environ.get("CSP", "24"))
    st_of = [s for s, n in enumerate(STG) for _ in range(n)]; sub_of = [q for n in STG for q in range(n)]
    spine = []; frags = []; done = {}
    NSEG = int(os.environ.get("NSEG", "8")); K0 = 34 - NSEG
    order = [(ks, mt) for ks in range(0, K0, 2) for mt in range(9)] + [(ks, mt) for mt in range(9) for ks in range(K0, 34, 2)]
    use = {}; CP = "p" in CH
    if not CP: order = [(ks, mt) for ks in range(K0) for mt in range(9)] + [(ks, mt) for mt in range(9) for ks in range(K0, 34)]
    for ks0, mt in order:
        f0 = len(frags)
        for a in range(4):
            for k in range(2 if CP else 1):
                ks = ks0 + k
                w = r4("v", WF + 4 * ((f0 + k) % NF)); use.setdefault(ks, len(spine) - k)
                d = r4("v", acc(mt, a))
                spine.append(I(f"{MF} {d}, {w}, {bact(ks, a)}, {d if ks else '0'}")); done[(mt, a)] = len(spine) - 1
        frags += [(ks0, mt, len(spine) - 2), (ks0 + 1, mt, len(spine) + 2)] if CP else [(ks0, mt, len(spine) - 1)]
    N = len(spine)
    ds = []; pro_ds = []; bars = {}; bars_w = {}; barpos = {0: 0}; shift = 0
    for f, (ks, mt, b) in enumerate(frags):
        s = st_of[ks]
        e = frags[f - NF][2] if f >= NF else None
        if mt == 0 and sub_of[ks] == 0:
            w = [WAITG("w", s), I("s_barrier")]
            if f:
                w.insert(0, WAITLGKM(ds[-1])); barpos[s] = e + 4
                for x in w: x.earliest = e + 3; x.deadline = e + 4
                ds += w
            else: pro_ds += w
            bars[s] = w[-1]; bars_w[s] = w[0]
        for jj in range(2):
            x = I(f"ds_read_b64_tr_b16 {r2('v', WF + 4 * (f % NF) + 2 * jj)}, v{VA + s % 4} offset:{sub_of[ks] * 9216 + jj * 4608 + mt * 32}")
            if e is None: pro_ds.append(x)
            else:
                x.earliest = e + 2 * jj; x.deadline = e + (6 if CP else 10) + 2 * jj; ds.append(x)
    al = {ks: aload(ks) for ks in range(6, 34)}
    vm = []
    for s in range(2, 9):
        o = wdma(s)
        t0 = barpos[s - 3] + 1 if s > 3 else 60 * (s - 2)
        for k, x in enumerate(o): x.earliest = t0 + 5 * k
        if s > 3: o[0].deps = [(bars[s - 3], 0)]
        vm += o
    av = []; aw = []
    pa, pb = poll2("ctx", VF + 2, 4, 4, 36 * (18 - DC) - 100, 36 * (18 - DC) - 4)
    for ks in range(6, 34):
        t0 = max(36 * (ks - DA), 24 * (ks - 6)) if ks < 18 else 36 * (18 - DC) + CSP * (ks - 18)
        for k, x in enumerate(al[ks]): x.earliest = t0 + 6 * k
        if ks == 18: al[ks][0].deps = [(pb, 0)]
        av += al[ks]
    for ks in range(3, 34, 2) if CP else range(1, 34):
        w = WAITG("a", ks); w.earliest = use[ks] - 4; w.deadline = use[ks] - 1; aw.append(w)
    for x in vm + av: x.maxlag = 6
    bars_w[1].waitfor += CTX_LAST
    misc = [Bundle(L(f"v_cmp_ne_u32 vcc, 0, v{VF}", "s_nop 4", "s_cbranch_vccnz Lrestart"), earliest=8)]
    slow_blocks.append(L(f"""Lrestart:
      s_waitcnt vmcnt(0) lgkmcnt(0)
      s_barrier
      s_movk_i32 s{S_SLOW}, 256
      s_branch Lstart"""))
    misc += [Bundle(L(f"s_cmp_lg_u32 s{S_W}, 0", f"s_cselect_b32 s{S_SIG}, 256, 0"))]
    misc += sig_group(4) + [Bundle(flag_addr(VF, 11, 4, None))] + [release("ctx"), sig_store(VF)]
    misc[-2].deps = [(bars[1], 0)]
    misc += L(f"""s_lshr_b32 s{S_RB}, s2, 3
      s_lshl_b32 s{S_RB}, s{S_RB}, 2
      s_bfe_u32 s{S_PT}, s{S_H}, 0x20001
      s_add_u32 s{S_RB}, s{S_RB}, s{S_PT}
      s_lshl_b32 s{S_RB}, s{S_RB}, 4
      s_and_b32 s{S_PT}, s{S_H}, 1
      s_add_u32 s{S_RB}, s{S_RB}, s{S_PT}
      s_mul_i32 s{S_RB}, s{S_RB}, 9216
      s_add_u32 s{S_RB}, s{S_RB}, {hex(PART_BASE)}
      s_and_b32 s{S_PT}, s{S_H}, 7
      s_movk_i32 s{S_P0}, 8192
      s_movk_i32 s{S_P0+1}, 16384""")
    def pstore(b, mt, ap):
        n = 9 * ap + mt
        return I(f"buffer_store_dwordx4 {r4('v', b)}, v{VST2 if n & 4 else VST}, s[{SRD_PZ}:{SRD_PZ+3}], {f's{S_P0 + (n >> 3) - 1}' if n >> 3 else '0'} offen offset:{(n & 3) * 1024} sc1")
    misc += L(f"""s_and_b32 s{S_PO}, s2, 0xf8
      s_lshl_b32 s{S_OB}, s{S_W}, 1
      s_add_u32 s{S_PO}, s{S_PO}, s{S_OB}
      s_lshl_b32 s{S_PO}, s{S_PO}, 6
      s_add_u32 s{S_PO}, s{S_PO}, s{S_PT}
      s_lshl_b32 s{S_PO}, s{S_PO}, 2
      s_add_u32 s{S_PO}, s{S_PO}, {hex(INBOX + 32)}""") + [Bundle(flag_addr(VF, 8, 2, None))]
    misc += L(f"s_sub_u32 s{S_OB}, 15, s{S_J}") + [Bundle(L(f"s_cmp_lt_u32 s{S_PT}, 4", f"s_cselect_b32 s{S_OB}, s{S_OB}, s{S_J}"))]
    misc += L(f"""s_lshl_b32 s{S_OB}, s{S_OB}, 3
      s_bfe_u32 s{S_CNT}, s{S_PT}, 0x10001
      s_add_u32 s{S_OB}, s{S_OB}, s{S_CNT}
      s_and_b32 s{S_CNT}, s{S_PT}, 1
      s_lshl_b32 s{S_CNT}, s{S_CNT}, 2
      s_add_u32 s{S_OB}, s{S_OB}, s{S_CNT}
      s_mul_i32 s{S_OB}, s{S_OB}, {16 * 1152}
      s_lshr_b32 s{S_CNT}, s{S_H}, 3
      s_mul_i32 s{S_CNT}, s{S_CNT}, 288
      s_add_u32 s{S_OB}, s{S_OB}, s{S_CNT}""")
    R0, R1, O0, O1, T = 28, 29, 30, 31, 36
    misc += L(f"""s_lshl_b32 s{S_CNT}, s{S_W}, 11
      v_add_u32 v{R0}, s{S_CNT}, v{VST}
      s_lshl_b32 s{S_CNT}, s{S_W}, 8
      s_add_u32 s{S_CNT}, s{S_CNT}, 8192
      v_lshl_add_u32 v{R1}, v0, 2, s{S_CNT}
      v_and_b32 v{T}, 15, v0
      v_mul_u32_u24 v{T}, 1152, v{T}
      v_lshrrev_b32 v{T+1}, 4, v0
      v_lshl_add_u32 v{T}, v{T+1}, 3, v{T}
      s_lshl_b32 s{S_CNT}, s{S_W}, 6
      v_add_u32 v{O0}, s{S_CNT}, v{T}
      v_lshrrev_b32 v{T}, 2, v0
      v_bfe_u32 v{T+1}, v0, 1, 1
      v_lshl_add_u32 v{T}, v{T+1}, 5, v{T}
      v_mul_u32_u24 v{T}, 1152, v{T}
      v_and_b32 v{T+1}, 1, v0
      v_lshl_add_u32 v{T}, v{T+1}, 2, v{T}
      s_lshl_b32 s{S_CNT}, s{S_W}, 3
      s_add_u32 s{S_CNT}, s{S_CNT}, 256
      v_add_u32 v{O1}, s{S_CNT}, v{T}
      s_movk_i32 s{S_MASK}, 255
      s_add_u32 s{S_CNT}, s{S_OB}, {32 * 1152}""")
    A0 = 40
    misc += L(*[f"v_mov_b32 v{A0+d}, 0" for d in range(18)])
    FT = int(os.environ.get("FT", "80"))
    misc += [WAITVM(*PZ), sig_store(VF)]; misc[-2].deadline = 800; misc[-1].earliest = N - FT; misc[-1].deadline = N - FT + 6
    R0T = int(os.environ.get("R0T", "0")); R0S = int(os.environ.get("R0S", "0"))
    pr, prb = poll2("red", VF + 2, 8, 8, N - R0T - 70, N - R0T - 4)
    pol = pa + [pb] + pr + [prb]
    def rreg(p, d): return (ACC + 8 * p + d) if d < 8 else VZ + p
    def rload(p):
        return L(f"""s_add_u32 s{S_AT}, s{S_RB}, {18432 * p}
          buffer_load_dwordx4 {r4('v', rreg(p, 0))}, v{R0}, s[{SRD_WS}:{SRD_WS+3}], s{S_AT} offen sc1
          buffer_load_dwordx4 {r4('v', rreg(p, 4))}, v{R0}, s[{SRD_WS}:{SRD_WS+3}], s{S_AT} offen offset:1024 sc1
          buffer_load_dword v{rreg(p, 8)}, v{R1}, s[{SRD_WS}:{SRD_WS+3}], s{S_AT} offen sc1""")
    epi = []; est = []
    for mt in range(9):
        for ap in range(2):
            b0, b1 = acc(mt, 2 * ap), acc(mt, 2 * ap + 1)
            o = L(f"v_cvt_pk_bf16_f32 v{b0}, v{b0}, v{b0+1}", f"v_cvt_pk_bf16_f32 v{b0+1}, v{b0+2}, v{b0+3}",
                  f"v_cvt_pk_bf16_f32 v{b0+2}, v{b1}, v{b1+1}", f"v_cvt_pk_bf16_f32 v{b0+3}, v{b1+2}, v{b1+3}")
            o += L(*[f"v_min_u32 v{b0+r}, -2, v{b0+r}" for r in range(4)]) + [pstore(b0, mt, ap)]
            for x in o: x.earliest = done[(mt, 2 * ap + 1)] + 5
            o[-1].maxlag = 2
            epi += o; est.append(o[-1])
    r0 = []
    for p in range(8):
        o = rload(p)
        for k, x in enumerate(o): x.earliest = max(N - R0T + R0S * (3 * p + k), est[p].earliest); x.maxlag = 2
        o[1].deps = [(est[p], 2)]
        r0 += o
    r0[0].deps = [(prb, 0), (av[-1], 0)]
    if R0T == 0:
        prb.sub[0:0] = (stamp(14) if PROF != 3 else stamp(1, 3)) + [WAITVM(pr[-1])]; prb.sub += stamp(2, 3); prb.deps = [(est[-1], 0)]; prb.maxlag = 0
    ct = caddr(249, "Ldone") + [ctouch(249, "a248", earliest=t) for t in (20, 300, 600, 850)] if "p" in CT else []
    main = fix_hazards(schedule(spine, [ds, aw, vm, av, pol, misc, epi, r0, ct], verbose="p4", nprio=2))
    if PROF:
        mf = [i for i, x in enumerate(main) if x.kind == "mfma"]
        main[mf[648]:mf[648]] = stamp(13)
    red = (stamp(14) if R0T else []) + stamp(3, 3) + (L(*[f"s_mov_b32 s{S_PROF+2*k}, 1" for k in range(4, 14)]) if PROF == 3 else []) + L(f"s_load_dwordx2 s[{SRD_OUT}:{SRD_OUT+1}], s[0:1], 80") + srd(SRD_OUT, SRD_OUT, 2048 * 1152) + L("Lchk:")
    rt = L("Lretry:")
    if PROF == 3:
        rt += L(f"s_add_u32 s{S_PROF+26}, s{S_PROF+26}, 1")
        for k in range(4, 12): rt += L(f"s_cmp_eq_u32 s{S_PROF+26}, {k-2}", f"s_cbranch_scc0 Lps{k}") + stamp(k, 3) + L(f"Lps{k}:")
    for p in range(8):
        r = [rreg(p, d) for d in range(9)]
        red += L(f"""s_bitcmp1_b32 s{S_MASK}, {p}
          s_cbranch_scc0 Lskip{p}
          v_max3_u32 v{T}, v{r[0]}, v{r[1]}, v{r[2]}
          v_max3_u32 v{T}, v{T}, v{r[3]}, v{r[4]}
          v_max3_u32 v{T}, v{T}, v{r[5]}, v{r[6]}
          v_max3_u32 v{T}, v{T}, v{r[7]}, v{r[8]}
          v_cmp_eq_u32 vcc, -1, v{T}
          s_cbranch_vccnz Lskip{p}""")
        for d in range(9):
            red += L(f"v_lshlrev_b32 v{T}, 16, v{r[d]}", f"v_and_b32 v{T+1}, 0xffff0000, v{r[d]}",
                     f"v_pk_add_f32 {r2('v', A0+2*d)}, {r2('v', A0+2*d)}, {r2('v', T)}")
        red += L(f"s_bitset0_b32 s{S_MASK}, {p}", f"Lskip{p}:")
        rt += L(f"s_bitcmp1_b32 s{S_MASK}, {p}", f"s_cbranch_scc0 Lrskip{p}") + rload(p) + L(f"Lrskip{p}:")
    slow_blocks.insert(0, rt + L("s_waitcnt vmcnt(0)", "s_branch Lchk"))
    red += L(f"s_cmp_lg_u32 s{S_MASK}, 0", "s_cbranch_scc1 Lretry") + (stamp(14) if PROF == 3 else [])
    D0 = 64
    for d in range(9): red += L(f"v_cvt_pk_bf16_f32 v{D0+d}, v{A0+2*d}, v{A0+2*d+1}")
    for t in range(2):
        for a in range(2):
            red += L(f"buffer_store_dwordx2 {r2('v', D0 + 4 * t + 2 * a)}, v{O0}, s[{SRD_OUT}:{SRD_OUT+3}], s{S_CNT if a else S_OB} offen offset:{32 * t}")
    red += L(f"buffer_store_dword v{D0+8}, v{O1}, s[{SRD_OUT}:{SRD_OUT+3}], s{S_OB} offen")
    ck = L(f"""v_cmp_lt_u32 vcc, 0x40000000, v{VBAD}
      s_lshr_b32 s{S_PT}, s{S_SLOW}, 8
      s_lshl_b32 s{S_PO}, s{S_W}, 2
      v_mov_b32 v{VF+1}, s{S_PO}
      s_cmp_lg_u64 vcc, 0
      s_cselect_b32 s{S_PO}, 1, 0
      s_andn2_b32 s{S_PO}, s{S_PO}, s{S_PT}
      v_mov_b32 v{VF}, s{S_PO}
      ds_write_b32 v{VF+1}, v{VF}
      v_and_b32 v{VF+1}, 3, v0
      v_lshlrev_b32 v{VF+1}, 2, v{VF+1}
      s_waitcnt lgkmcnt(0)""")
    pro = fix_hazards(ck + pro_ds[:2] + [WAITG("a", 1 if CP else 0)] + pro_ds[2:] + L(f"ds_read_b32 v{VF}, v{VF+1}") + stamp(12))
    return pro, main, fix_hazards(red)

def full(name):
    K = k12(name, p4)
    return K
```

```python
from common import *

S_W, S_H, S_J, S_SLOW = 3, 4, 5, 6
SRD_C, SRD_X, SRD_UK, SRD_UV, SRD_WS, SRD_W1, SRD_WQ, SRD_DBG = 8, 12, 16, 24, 20, 28, 32, 36
SRD_G = 40
SRD_W2, SRD_WO = SRD_X, SRD_G
S_T0, S_T1, S_T2, S_T3 = 44, 45, 46, 47
S_DT = 48
S_ET = 49
S_WM0, S_AM0 = 50, 51
S_CB, S_XB = 52, 53
S_WB, S_W1B, S_W1X = 54, 55, 56
S_KV = 57
S_ACT = 58
S_HK = 59
S_HX = 60
S_KSC, S_NL2E = 61, 62
S_BLK = 63
VTR, VTRX, VDMA, VDMA1, VDMAX, VCD, VXD, VAR, VST, VST2, VC = 1, 5, 7, 8, 9, 10, 12, 14, 16, 17, 20
VC = 20
VG = 24
VPF = 47
VT = 28
FR = 48
U0 = 64
def U(n): return U0 + 16 * n
KSCALE = LOG2E / (128 ** 0.5)
S_LOC = 52
DBG_XC = 160
SC = os.environ.get("SC", ""); SCX = os.environ.get("SCX", " sc1")
DBG_G, DBG_KV = 0, 32

def setup():
    t0, t1, t2, t3 = VT, VT + 1, VT + 2, VT + 3
    o = L(f"""
      s_load_dwordx2 s[{SRD_X}:{SRD_X+1}], s[0:1], 0
      s_load_dwordx2 s[{SRD_G}:{SRD_G+1}], s[0:1], 72
      s_load_dwordx2 s[{SRD_C}:{SRD_C+1}], s[0:1], 8
      s_load_dwordx2 s[{SRD_UK}:{SRD_UK+1}], s[0:1], 24
      s_load_dwordx2 s[{SRD_UV}:{SRD_UV+1}], s[0:1], 32
      s_load_dwordx2 s[{SRD_WS}:{SRD_WS+1}], s[0:1], 96
      s_load_dwordx2 s[{SRD_W1}:{SRD_W1+1}], s[0:1], 56
      s_load_dwordx2 s[{SRD_WQ}:{SRD_WQ+1}], s[0:1], 16
      s_load_dwordx2 s[{SRD_DBG}:{SRD_DBG+1}], s[0:1], 88
      s_and_b32 s{S_H}, s2, 31
      s_lshr_b32 s{S_J}, s2, 5
    """)
    o += L(f"""
      v_lshrrev_b32 v{t0}, 3, v0
      s_lshl_b32 s{S_T0}, s{S_W}, 3
      v_add_u32 v{t0}, s{S_T0}, v{t0}
      v_and_b32 v{t2}, 3, v{t0}
      v_bfe_u32 v{t1}, v{t0}, 2, 2
      v_lshl_add_u32 v{t2}, v{t1}, 3, v{t2}
      v_lshrrev_b32 v{t1}, 4, v{t0}
      v_lshl_add_u32 v{t2}, v{t1}, 2, v{t2}
      v_bfe_u32 v{t0}, v{t0}, 1, 2
      v_bfe_u32 v{t1}, v0, 1, 2
      v_xor_b32 v{t0}, v{t0}, v{t1}
      v_and_b32 v{t1}, 1, v0
      v_lshlrev_b32 v{t1}, 4, v{t1}
      v_lshl_add_u32 v{t3}, v{t0}, 5, v{t1}
      v_lshl_add_u32 v{VDMA}, v{t2}, 13, v{t3}
      v_mul_u32_u24 v{t2}, 9216, v{t2}
      v_add_u32 v{VDMA1}, v{t2}, v{t3}
    """)
    o += L(f"""
      v_lshrrev_b32 v{t0}, 4, v0
      v_and_b32 v{t1}, 7, v0
      v_xor_b32 v{t0}, v{t0}, v{t1}
      v_lshlrev_b32 v{t0}, 4, v{t0}
      v_lshrrev_b32 v{t1}, 3, v0
      v_lshl_add_u32 v{VCD}, v{t1}, 10, v{t0}
      v_xor_b32 v{VCD+1}, 64, v{VCD}
      s_lshl_b32 s{S_WM0}, s{S_W}, 12
      s_mul_i32 s{S_AM0}, s{S_W}, 24576
      s_add_u32 s{S_AM0}, s{S_AM0}, 0x10000
      s_lshl_b32 s{S_T0}, s{S_J}, 2
      s_add_u32 s{S_T0}, s{S_T0}, s{S_W}
      s_lshl_b32 s{S_CB}, s{S_T0}, 16
      s_lshl_b32 s{S_WB}, s{S_H}, 8
    """)
    o += srd(SRD_C, SRD_C, 2048 * 1024) + srd(SRD_UK, SRD_UK, 512 * 8192) + srd(SRD_X, SRD_X, 2048 * 1152) + srd(SRD_G, SRD_G, 1152)
    return o

def setup2():
    t0, t1, t2, t3 = VT, VT + 1, VT + 2, VT + 3
    o = L(f"s_load_dwordx2 s[{SRD_W2}:{SRD_W2+1}], s[0:1], 64", f"s_load_dwordx2 s[{SRD_WO}:{SRD_WO+1}], s[0:1], 40",
          f"s_mov_b32 s{SRD_W2+2}, {4608 * 1152}", f"s_mov_b32 s{SRD_WO+2}, {4096 * 1152}")
    o += srd(SRD_UV, SRD_UV, 512 * 8192) + srd(SRD_WS, SRD_WS, WS_SIZE) + srd(SRD_W1, SRD_W1, 576 * 9216) + srd(SRD_WQ, SRD_WQ, 576 * 8192) + srd(SRD_DBG, SRD_DBG, 256)
    if "h" in os.environ.get("X", ""): o += L(f"s_add_u32 s{SRD_WS}, s{SRD_WS}, 0x8000000", f"s_addc_u32 s{SRD_WS+1}, s{SRD_WS+1}, 0")
    o += L(f"""
      v_bfe_u32 v{t0}, v0, 2, 3
      v_lshlrev_b32 v{t0}, 7, v{t0}
      v_and_b32 v{t1}, 3, v0
      v_lshl_add_u32 v{t0}, v{t1}, 3, v{t0}
      v_lshrrev_b32 v{t1}, 5, v0
      v_lshl_add_u32 v{t0}, v{t1}, 12, v{t0}
      v_bfe_u32 v{t1}, v0, 3, 2
    """)
    for nb in range(4):
        o += L(f"v_xor_b32 v{t2}, {nb}, v{t1}", f"v_lshl_add_u32 v{VTR+nb}, v{t2}, 5, v{t0}")
    o += L(f"""
      v_lshlrev_b32 v{t0}, 3, v0
      v_add_u32 v{VTRX}, {0x10000 + 16384}, v{t0}
      v_add_u32 v{VTRX+1}, {0x10000 + 16384 + 49152}, v{t0}
      v_lshrrev_b32 v{t0}, 1, v0
      v_and_b32 v{t2}, 3, v{t0}
      v_bfe_u32 v{t1}, v{t0}, 2, 2
      v_lshl_add_u32 v{t2}, v{t1}, 3, v{t2}
      v_lshrrev_b32 v{t1}, 4, v{t0}
      v_lshl_add_u32 v{t2}, v{t1}, 2, v{t2}
      s_lshl_b32 s{S_T0}, s{S_W}, 5
      v_add_u32 v{t2}, s{S_T0}, v{t2}
      v_mul_u32_u24 v{t2}, 9216, v{t2}
      v_and_b32 v{t1}, 1, v0
      v_lshl_add_u32 v{VDMAX}, v{t1}, 4, v{t2}
    """)
    o += L(f"""
      v_and_b32 v{t0}, 15, v0
      v_lshrrev_b32 v{t1}, 1, v{t0}
      v_lshrrev_b32 v{t2}, 4, v0
      v_xor_b32 v{t1}, v{t1}, v{t2}
      v_lshlrev_b32 v{t1}, 4, v{t1}
      v_lshl_add_u32 v{t1}, v{t0}, 7, v{t1}
      v_add_u32 v{VAR}, s{S_AM0}, v{t1}
      v_xor_b32 v{VAR+1}, 64, v{VAR}
      v_lshlrev_b32 v{VST}, 4, v0
      v_add_u32 v{VST2}, 0x1000, v{VST}
    """)
    o += L(f"""
      s_lshl_b32 s{S_T0}, s{S_J}, 2
      s_add_u32 s{S_T0}, s{S_T0}, s{S_W}
      s_lshl_b32 s{S_T0}, s{S_T0}, 15
      s_mul_i32 s{S_T1}, s{S_H}, {hex(KV_HEAD)}
      s_add_u32 s{S_T0}, s{S_T0}, s{S_T1}
      s_add_u32 s{S_KV}, s{S_T0}, {hex(KV_BASE)}
      s_mov_b32 s{S_KSC}, {f2u(KSCALE)}
      s_mov_b32 s{S_NL2E}, {f2u(-LOG2E)}
      s_sub_u32 s{S_T0}, 15, s{S_J}
      s_cmp_lt_u32 s{S_W}, 2
      s_cselect_b32 s{S_BLK}, s{S_T0}, s{S_J}
      s_and_b32 s{S_T1}, s{S_W}, 1
      s_mul_i32 s{S_T0}, s{S_BLK}, 144
      s_add_u32 s{S_T0}, s{S_T0}, s{S_T1}
      s_lshl_b32 s{S_XB}, s{S_T0}, 10
      s_add_u32 s{S_XB}, s{S_XB}, {hex(XI_BASE)}
      s_and_b32 s{S_T0}, s{S_H}, 7
      s_mul_i32 s{S_ACT}, s{S_T0}, {hex(ACT_G)}
      s_mul_i32 s{S_T2}, s{S_BLK}, {hex(ACT_RB)}
      s_add_u32 s{S_ACT}, s{S_ACT}, s{S_T2}
      s_lshl_b32 s{S_T1}, s{S_T1}, 10
      s_add_u32 s{S_ACT}, s{S_ACT}, s{S_T1}
      s_add_u32 s{S_ACT}, s{S_ACT}, {hex(ACT_BASE)}
      s_lshr_b32 s{S_T1}, s{S_H}, 4
      s_bfe_u32 s{S_T2}, s{S_H}, 0x10003
      s_lshl_b32 s{S_T0}, s{S_T0}, 1
      s_add_u32 s{S_T0}, s{S_T0}, s{S_T1}
      s_mul_i32 s{S_T0}, s{S_T0}, 576
      s_lshl_b32 s{S_T3}, s{S_T2}, 8
      s_add_u32 s{S_W1B}, s{S_T0}, s{S_T3}
      s_lshl_b32 s{S_T3}, s{S_T2}, 5
      s_add_u32 s{S_W1X}, s{S_T0}, s{S_T3}
      s_add_u32 s{S_W1X}, s{S_W1X}, 512
      s_mul_i32 s{S_T0}, s{S_T1}, {9 * 8192}
      s_add_u32 s{S_T0}, s{S_T0}, s{S_ACT}
      s_lshl_b32 s{S_T3}, s{S_T2}, 15
      s_add_u32 s{S_HK}, s{S_T0}, s{S_T3}
      s_lshl_b32 s{S_T3}, s{S_T2}, 3
      s_add_u32 s{S_HX}, s{S_T0}, s{S_T3}
      s_add_u32 s{S_HX}, s{S_HX}, {8 * 8192}
      s_lshr_b32 s{S_T1}, s{S_H}, 3
      s_lshl_b32 s{S_T1}, s{S_T1}, 15
      s_add_u32 s{S_ACT}, s{S_ACT}, s{S_T1}
      s_add_u32 s{S_ACT}, s{S_ACT}, {18 * 8192}
    """)
    return o

def gate_loads(vx, vg, voff, t0):
    return L(f"""
      v_lshrrev_b32 v{t0}, 5, v0
      s_sub_u32 s{S_T0}, 15, s{S_J}
      s_cmp_lt_u32 s{S_H}, 16
      s_cselect_b32 s{S_T0}, s{S_T0}, s{S_J}
      s_lshl_b32 s{S_T0}, s{S_T0}, 4
      s_and_b32 s{S_T1}, s{S_H}, 15
      s_add_u32 s{S_T0}, s{S_T0}, s{S_T1}
      s_lshl_b32 s{S_T0}, s{S_T0}, 2
      s_add_u32 s{S_T0}, s{S_T0}, s{S_W}
      s_lshl_b32 s{S_T0}, s{S_T0}, 1
      v_add_u32 v{voff+2}, s{S_T0}, v{t0}
      v_mul_u32_u24 v{voff}, 1152, v{voff+2}
      v_and_b32 v{t0}, 31, v0
      v_lshlrev_b32 v{voff+1}, 4, v{t0}
      v_add_u32 v{voff}, v{voff}, v{voff+1}
      buffer_load_dwordx4 {r4('v',vx)}, v{voff}, s[{SRD_X}:{SRD_X+3}], 0 offen
      buffer_load_dwordx4 {r4('v',vx+4)}, v{voff}, s[{SRD_X}:{SRD_X+3}], 0 offen offset:512
      buffer_load_dwordx4 {r4('v',vx+8)}, v{voff}, s[{SRD_X}:{SRD_X+3}], 0 offen offset:1024
      buffer_load_dwordx4 {r4('v',vg)}, v{voff+1}, s[{SRD_G}:{SRD_G+3}], 0 offen
      buffer_load_dwordx4 {r4('v',vg+4)}, v{voff+1}, s[{SRD_G}:{SRD_G+3}], 0 offen offset:512
      buffer_load_dwordx4 {r4('v',vg+8)}, v{voff+1}, s[{SRD_G}:{SRD_G+3}], 0 offen offset:1024
    """)

S_XS = 7
def ximg_loads(vd, t):
    return L(f"""
      s_sub_u32 s{S_T0}, 15, s{S_J}
      s_cmp_lt_u32 s{S_H}, 16
      s_cselect_b32 s{S_T0}, s{S_T0}, s{S_J}
      s_bfe_u32 s{S_T1}, s{S_H}, 0x30001
      s_and_b32 s{S_T2}, s{S_H}, 1
      s_mul_i32 s{S_T2}, s{S_T2}, 9
      s_mul_i32 s{S_XS}, s{S_T0}, 18
      s_add_u32 s{S_XS}, s{S_XS}, s{S_T2}
      s_lshl_b32 s{S_XS}, s{S_XS}, 3
      s_add_u32 s{S_XS}, s{S_XS}, s{S_T1}
      s_lshl_b32 s{S_XS}, s{S_XS}, 10
      s_add_u32 s{S_XS}, s{S_XS}, {hex(XI_BASE)}
      s_lshl_b32 s{S_T0}, s{S_T0}, 3
      s_add_u32 s{S_T0}, s{S_T0}, s{S_T1}
      s_mul_i32 s{S_T0}, s{S_T0}, {16 * 1152}
      s_lshl_b32 s{S_T2}, s{S_T2}, 6
      s_add_u32 s{S_T0}, s{S_T0}, s{S_T2}
      s_lshl_b32 s{S_T1}, s{S_W}, 6
      s_add_u32 s{S_T1}, s{S_T1}, s{S_T0}
      v_and_b32 v{t}, 15, v0
      v_mul_u32_u24 v{t}, 1152, v{t}
      v_and_b32 v{t+1}, 48, v0
      v_add_u32 v{t}, v{t}, v{t+1}
      buffer_load_dwordx4 {r4('v',vd)}, v{t}, s[{SRD_X}:{SRD_X+3}], s{S_T1} offen
      buffer_load_dwordx4 {r4('v',vd+4)}, v{t}, s[{SRD_X}:{SRD_X+3}], s{S_T1} offen offset:256
      buffer_load_dwordx4 {r4('v',vd+8)}, v{t}, s[{SRD_X}:{SRD_X+3}], s{S_T0} offen offset:512
    """)
def ximg_stores(vd):
    return L(f"""
      s_lshl_b32 s{S_PO}, s{S_W}, 13
      s_add_u32 s{S_PO}, s{S_PO}, s{S_XS}
      buffer_store_dwordx4 {r4('v',vd)}, v{VST}, s[{SRD_WS}:{SRD_WS+3}], s{S_PO} offen sc1
      s_add_u32 s{S_PO}, s{S_PO}, 32768
      buffer_store_dwordx4 {r4('v',vd+4)}, v{VST}, s[{SRD_WS}:{SRD_WS+3}], s{S_PO} offen sc1
      s_add_u32 s{S_PO}, s{S_XS}, 65536
      buffer_store_dwordx4 {r4('v',vd+8)}, v{VST}, s[{SRD_WS}:{SRD_WS+3}], s{S_PO} offen sc1
    """)

def gate_compute(vx, vg, voff, t):
    o = L(f"v_and_b32 v{t}, 31, v0", f"v_cmp_gt_u32 vcc, 8, v{t}", f"v_mov_b32 v{t+4}, 0", f"v_mov_b32 v{t+5}, 0")
    for r in range(8, 12): o += L(f"v_cndmask_b32 v{vx+r}, 0, v{vx+r}, vcc")
    for r in range(12):
        o += L(f"""
          v_lshlrev_b32 v{t}, 16, v{vx+r}
          v_and_b32 v{t+1}, 0xffff0000, v{vx+r}
          v_lshlrev_b32 v{t+2}, 16, v{vg+r}
          v_and_b32 v{t+3}, 0xffff0000, v{vg+r}
          v_fmac_f32 v{t+4}, v{t}, v{t+2}
          v_fmac_f32 v{t+5}, v{t+1}, v{t+3}""")
    z = t + 4
    o += L(f"""
      v_add_f32 v{z}, v{z}, v{t+5}
      v_add_f32_dpp v{z}, v{z}, v{z} quad_perm:[1,0,3,2] row_mask:0xf bank_mask:0xf
      v_add_f32_dpp v{z}, v{z}, v{z} quad_perm:[2,3,0,1] row_mask:0xf bank_mask:0xf
      v_add_f32_dpp v{z}, v{z}, v{z} row_half_mirror row_mask:0xf bank_mask:0xf
      v_add_f32_dpp v{z}, v{z}, v{z} row_mirror row_mask:0xf bank_mask:0xf
      v_mov_b32 v{t}, v{z}
      v_permlane16_swap_b32 v{t}, v{z}
      v_add_f32 v{z}, v{z}, v{t}
      v_mul_f32 v{t}, {f2u(LOG2E)}, v{z}
      v_exp_f32 v{t+3}, v{t}
      v_exp_f32 v{t+2}, -v{t}
      v_add_f32 v{t+3}, 1.0, v{t+3}
      v_add_f32 v{t+2}, 1.0, v{t+2}
      v_min_f32 v{t+3}, {f2u(1e30)}, v{t+3}
      v_rcp_f32 v{t+2}, v{t+2}
      v_lshlrev_b32 v{voff+2}, 3, v{voff+2}
      v_and_b32 v{t}, 31, v0
      v_cmp_eq_u32 vcc, 0, v{t}
      v_add_u32 v{voff+2}, {hex(G_BASE)}, v{voff+2}
      v_cndmask_b32 v{voff+2}, -1, v{voff+2}, vcc
      buffer_store_dwordx2 {r2('v',t+2)}, v{voff+2}, s[{SRD_WS}:{SRD_WS+3}], 0 offen sc1
    """)
    return fix_hazards(o)

def signal(soff_expr_ops, s_off, vt, inc=1):
    return L(f"""
      v_lshl_add_u32 v{vt}, v0, 8, s{S_SLOW}
      v_mov_b32 v{vt+1}, {inc}
    """) + soff_expr_ops + L(f"buffer_atomic_add v{vt+1}, v{vt}, s[{SRD_DBG}:{SRD_DBG+3}], s{s_off} offen sc1")

S_SIG = 64
S_PT = 65
S_PO = 66

class Panel:
    def __init__(self, name, nnb, srd, sbase, coff, kstride, vdma, wA, units, act):
        self.name = name; self.nnb = nnb; self.srd = srd; self.sbase = sbase; self.coff = coff
        self.kstride = kstride; self.vdma = vdma; self.wA = wA; self.units = units; self.act = act
        self.done = {}
    def acc(self, nb, a): return U(self.units[nb]) + 4 * a

def c_act(a, ks): return r4("a", 16 * ks + 4 * a)
def x_act(a, ks): return r4("v", U(10 + ks) + 4 * a) if ks < 2 else r4("a", 16 * (ks - 2) + 4 * a)
Q_UNITS = [5, 6, 4, 3]
def q_reg(a, ds): return U(Q_UNITS[ds]) + 4 * a

slow_blocks = []
def poll(tag, vf, soff_ops, count, t_issue, t_check):
    ld = f"buffer_load_dword v{vf}, off, s[{SRD_DBG}:{SRD_DBG+3}], s{S_PO} sc1"
    a = soff_ops + L(ld)
    for x in a: x.earliest = t_issue
    r = I(f"v_readfirstlane_b32 s{S_PT}, v{vf}", earliest=t_check, deps=[(a[-1], t_check - t_issue)])
    a[-1].deadline = t_issue + 8
    b = Bundle(L(f"s_cmp_ge_u32 s{S_PT}, {count}", f"s_cbranch_scc0 Lpoll_{tag}", f"Lback_{tag}:"), deps=[(r, 1)])
    slow_blocks.append(L(f"""Lpoll_{tag}:
      {ld}
      s_waitcnt vmcnt(0)
      v_readfirstlane_b32 s{S_PT}, v{vf}
      s_nop 1
      s_cmp_ge_u32 s{S_PT}, {count}
      s_cbranch_scc1 Lback_{tag}
      s_branch Lpoll_{tag}"""))
    return a + [r, b]

def signal(soff_ops, vt, inc=1):
    return L(f"v_lshl_add_u32 v{vt}, v0, 8, s{S_SIG}", f"v_mov_b32 v{vt+1}, {inc}") + soff_ops + \
           L(f"buffer_atomic_add v{vt+1}, v{vt}, s[{SRD_DBG}:{SRD_DBG+3}], s{S_PO} offen sc1")

S_PC = 100
def caddr(v, lo=None):
    o = L(f"v_lshlrev_b32 v{v}, 14, v0")
    if lo: o += L(f"v_add_u32 v{v}, {lo}-Lpc0, v{v}")
    return o + L(f"v_min_u32 v{v}, Lend-Lpc0-16388, v{v}")
def ctouch(v, dst, **kw):
    x = I(f"global_load_dword {dst}, v{v}, s[{S_PC}:{S_PC+1}]", **kw); x.wr = []; x.maxlag = 6
    return x
CT = os.environ.get("CT", "flp")
CH = os.environ.get("CH", "fqp")
NTS = os.environ.get("NT", ""); NTM = os.environ.get("NTM", " nt")

def xcc_ops():
    return L(f"""s_getreg_b32 s{S_PT}, hwreg(HW_REG_XCC_ID, 0, 3)
      s_and_b32 s{S_PO}, s{S_H}, 7
      s_lshl_b32 s{S_PO}, s{S_PO}, 3
      s_add_u32 s{S_PO}, s{S_PO}, s{S_PT}
      s_and_b32 s{S_PO}, s{S_PO}, 60
      s_add_u32 s{S_PO}, s{S_PO}, {DBG_XC}
      s_and_b32 s{S_PT}, s{S_PT}, 3
      s_lshl_b32 s{S_PT}, s{S_PT}, 3""")
def release(tag):
    slow_blocks.append(L(f"""Lwb_{tag}:
      buffer_wbl2 sc1
      s_waitcnt vmcnt(0)
      s_branch Lwbb_{tag}"""))
    return Bundle(L(f"s_cmp_eq_u32 s{S_LOC}, 0", f"s_cbranch_scc1 Lwb_{tag}", f"Lwbb_{tag}:"))

def front(tail_streams=None, qstore=False):
    K0 = Panel("K0", 4, SRD_UK, S_WB, 0, 32 * 8192, VDMA, True, [0, 1, 2, 3], c_act)
    K1 = Panel("K1", 4, SRD_UK, S_WB, 128, 32 * 8192, VDMA, True, [4, 5, 6, 7], c_act)
    V0 = Panel("V0", 4, SRD_UV, S_WB, 0, 32 * 8192, VDMA, False, [8, 10, 9, 11], c_act)
    V1 = Panel("V1", 4, SRD_UV, S_WB, 128, 32 * 8192, VDMA, False, [1, 3, 5, 7], c_act)
    Ha = Panel("Ha", 4, SRD_W1, S_W1B, 0, 32 * 9216, VDMA1, True, [0, 2, 4, 6], x_act)
    Hb = Panel("Hb", 5, SRD_W1, S_W1B, 128, 32 * 9216, VDMA1, True, [3, 7, 8, 9, 1], x_act)
    Q0 = Panel("Q0", 4, SRD_WQ, S_WB, 0, 32 * 8192, VDMA, True, [5, 2, 6, 0], x_act)
    Q1 = Panel("Q1", 4, SRD_WQ, S_WB, 128, 32 * 8192, VDMA, True, [4, 1, 3, 7], x_act)
    steps = []
    for ks in range(0, 16, 2): steps += [(K0, ks), (K0, ks + 1), (K1, ks), (K1, ks + 1)]
    SK = int(os.environ.get("SK", "6"))
    steps += [(V0, ks) for ks in range(SK)]
    for ks in range(0, 16 - SK, 2): steps += [(V1, ks), (V1, ks + 1), (V0, ks + SK), (V0, ks + SK + 1)]
    steps += [(V1, ks) for ks in range(16 - SK, 16)]
    steps += [(Ha, ks) for ks in list(range(2, 18)) + [0, 1]]
    for P in (Hb, Q0, Q1): steps += [(P, ks) for ks in range(18)]
    T = len(steps); NF = int(os.environ.get("NFF", "4")); FRS = [FR, FR + 4, FR + 8, FR + 12, 40][:NF]
    BG = int(os.environ.get("BG", "2"))
    spine = []; frags = []; S = []
    for t in range(0, T, 2):
        P = steps[t][0]; assert steps[t + 1][0] is P
        S += [len(spine), len(spine) + 4 * P.nnb]
        for nb in range(P.nnb):
            f0 = len(frags); first = len(spine)
            for a, k in ([(a, k) for a in range(4) for k in range(2)] if "f" in CH else [(a, k) for k in range(2) for a in range(4)]):
                w = r4("v", FRS[(f0 + k) % NF]); ks = steps[t + k][1]
                d = r4("v", P.acc(nb, a)); c = d if (nb, a) in P.done else "0"
                A, B = (w, P.act(a, ks)) if P.wA else (P.act(a, ks), w)
                spine.append(I(f"{MF} {d}, {A}, {B}, {c}")); P.done[(nb, a)] = len(spine) - 1
            frags += [(t, nb, first, first + (6 if "f" in CH else 3)), (t + 1, nb, first, first + 7)]
    S.append(len(spine))
    ds = []; bars = {}; pro_ds = []; barpos = {}; te = -1
    for f, (t, nb, a, b) in enumerate(frags):
        P, ks = steps[t]
        e = None if f < NF else frags[f - NF][3]
        if e is not None and "f" in CH: e += (f & 1) if NF == 4 else 3 * (1 - (f & 1))
        if nb == 0 and t % (2 * BG) == 0:
            wv = WAITG("w", t // 2 + BG - 1); br = I("s_barrier"); bars[t // 2] = br
            if f >= NF:
                barpos[t // 2] = e
                wv.earliest = br.earliest = max(0, e - 2); wv.deadline = br.deadline = e
                ds += [wv, br]
            else: pro_ds += [wv, br]; barpos[0] = 0
        for jj in range(2):
            r = FRS[f % NF] + 2 * jj
            if nb < 4:
                off = ((t % 16) >> 2) * 16384 + (t & 3) * 1024 + jj * 8192
                x = I(f"ds_read_b64_tr_b16 {r2('v', r)}, v{VTR+nb} offset:{off}")
            else:
                wq = ks & 3
                off = (wq & 1) * 24576 + (ks >> 2) * 1024 + jj * 512
                x = I(f"ds_read_b64_tr_b16 {r2('v', r)}, v{VTRX + (wq >> 1)} offset:{off}")
            if f < NF: pro_ds.append(x)
            else:
                sp = 1 if "f" in CH and NF == 4 else 2
                x.earliest = e + sp * jj; x.deadline = e + sp * jj + (1 if sp == 2 else 0)
                ds.append(x)
    def nbar(G): return min(b for b in bars if b >= G)
    epi = []; hepi = []
    def pack(b0, b1, d=None):
        d = b0 if d is None else d
        return L(f"v_cvt_pk_bf16_f32 v{d}, v{b0}, v{b0+1}", f"v_cvt_pk_bf16_f32 v{d+1}, v{b0+2}, v{b0+3}",
                 f"v_cvt_pk_bf16_f32 v{d+2}, v{b1}, v{b1+1}", f"v_cvt_pk_bf16_f32 v{d+3}, v{b1+2}, v{b1+3}")
    def store4(b, sbase, off):
        hi = off & ~0x1fff
        o = []
        if hi: o += L(f"s_add_u32 s{S_ET}, s{sbase}, {hi}")
        o += L(f"buffer_store_dwordx4 {r4('v', b)}, v{VST2 if off & 0x1000 else VST}, s[{SRD_WS}:{SRD_WS+3}], s{S_ET if hi else sbase} offen offset:{off & 0xfff}{SC}")
        return o
    lastop = {}; sts = []
    SP = int(os.environ.get("SP", "26"))
    n_st = 0
    for P in (K0, K1, V0, V1):
        isK = P.name[0] == "K"; half = int(P.name[1])
        for n in range(8):
            x, y = (n >> 2, n & 3) if isK else (n & 1, n >> 1)
            tl = [(2 * x, y), (2 * x + 1, y)] if isK else [(y, 2 * x), (y, 2 * x + 1)]
            e = max(P.done[t] for t in tl) + 8
            ops = []
            if isK:
                for t in tl:
                    for r in range(4): ops += L(f"v_mul_f32 v{P.acc(*t)+r}, s{S_KSC}, v{P.acc(*t)+r}")
            d = P.acc(*tl[0]) if isK else P.acc(y & 2, n & 3)
            ops += pack(P.acc(*tl[0]), P.acc(*tl[1]), d)
            for q in ops: q.earliest = e
            epi += ops
            off = ((y >> 1) * 16384 + (y & 1) * 4096 + (2 * half + x) * 1024) if isK else (x * 16384 + 8192 + (4 * half + y) * 1024)
            st = store4(d, S_KV, off)
            te = S[32] + 24 + SP * n_st
            n_st += 1
            for q in st: q.earliest = max(e, te)
            st[-1].deps = [(ops[-1], 1)]
            sts += st
            lastop[(P.name, n)] = ops[-1]
    kv_te = te
    kv_last = sts[-1]
    hA, hB, hC, hD, hE = [], [], [], [], []
    NT = 8
    n = 0; tmp_free = {}
    gl_done = I("s_nop 0")
    first_fma = []
    for P in (Ha, Hb):
        for x in ([0, 1] if P.nnb == 4 else [2, 0, 1]):
            for a in range(4):
                tl = [(2 * x, a), (2 * x + 1, a)] if 2 * x + 1 < P.nnb else [(2 * x, a)]
                fin = []
                for t in tl:
                    e = P.done[t] + 8
                    for r in range(4):
                        v = P.acc(*t) + r; tm = VT + (n % NT)
                        m = I(f"v_mul_f32 v{tm}, s{S_NL2E}, v{v}", earliest=e)
                        if tm in tmp_free: m.deps = [(tmp_free[tm], 0)]
                        ex = I(f"v_exp_f32 v{tm}, v{tm}", earliest=e, deps=[(m, 0)])
                        fm = I(f"v_fma_f32 v{tm}, v{tm}, v{VC+2*a+1}, v{VC+2*a+1}", earliest=e, deps=[(ex, 1)])
                        rc = I(f"v_rcp_f32 v{tm}, v{tm}", earliest=e, deps=[(fm, 0)])
                        mu = I(f"v_mul_f32 v{v}, v{v}, v{tm}", earliest=e, deps=[(rc, 1)])
                        if not first_fma: first_fma.append(fm)
                        tmp_free[tm] = mu; n += 1; mu.span = 4
                        hA.append(m); hB.append(ex); hC.append(fm); hD.append(rc); hE.append(mu)
                    b = P.acc(*t); b0 = P.acc(*tl[0]); k = 2 * tl.index(t)
                    hE += [I(f"v_cvt_pk_bf16_f32 v{b0+k}, v{b}, v{b+1}", earliest=e), I(f"v_cvt_pk_bf16_f32 v{b0+k+1}, v{b+2}, v{b+3}", earliest=e)]
                b0 = P.acc(*tl[0])
                if len(tl) == 2:
                    st = store4(b0, S_HK, ((0 if P is Ha else 2) + x) * 8192 + a * 2048)
                else:
                    st = L(f"buffer_store_dwordx2 {r2('v', b0)}, v{VST2 if a >= 2 else VST}, s[{SRD_WS}:{SRD_WS+3}], s{S_HX} offen offset:{(a & 1) * 2048}{SCX}")
                for q in st: q.earliest = e
                st[0].deps = [(hE[-1], 0)]; st[-1].deps = [(hE[-1], 1)]
                sts += st
    h_last = sts[-1]
    qepi = []
    for pi, P in enumerate((Q0, Q1)):
        for x in range(2):
            for a in range(4):
                e = max(P.done[(2 * x, a)], P.done[(2 * x + 1, a)]) + 8
                assert P.acc(2 * x, a) == q_reg(a, 2 * pi + x)
                ops = pack(P.acc(2 * x, a), P.acc(2 * x + 1, a))
                for q in ops: q.earliest = e
                qepi += ops
    units = []
    for G in range(T // 2):
        tm = -1 if G < 8 else barpos[nbar(G - 6)] + (int(os.environ.get("WSP", "24")) if nbar(G - 6) == G - 6 and BG > 1 else 0)
        for t in (2 * G, 2 * G + 1):
            P, ks = steps[t]
            if P.nnb == 5 and ks % 4 == 0: units.append((tm, "x", t))
            units.append((tm, "w", t))
    rd_time = [None] + [S[4 * c - 2] for c in range(1, 8)]
    areads = []; pro_ar = []; last_rd = {}
    for c in range(8):
        ops = [WAITG("act", c)]
        for a in range(4):
            for kb in range(2):
                ops.append(I(f"ds_read_b128 {c_act(a, 2 * c + kb)}, v{VAR+kb} offset:{(c % 3) * 8192 + a * 2048}"))
        last_rd[c] = ops[-1]
        if c == 0: pro_ar = ops; continue
        for q in ops: q.earliest = rd_time[c]
        areads += ops
    for c in range(8):
        tm = -1 if c < 3 else (rd_time[c - 3] or 0) + 16
        for nn in range(8): units.append((tm + (3 * nn if tm >= 0 else 0), "a", (c, nn)))
    first = [u for u in units if u[0] < 0]; rest = sorted([u for u in units if u[0] >= 0], key=lambda u: u[0])
    W = [u for u in first if u[1] == "w"]; A = [u for u in first if u[1] == "a"]
    first = W[0:2] + A[0:8] + W[2:4] + A[8:16] + W[4:8] + A[16:24] + W[8:]
    cur = [None]
    def emit_unit(u):
        tm, kind, arg = u
        o = []; deps = []
        if kind == "w":
            t = arg; P, ks = steps[t]
            m0 = (S_WM0, ((t % 16) >> 2) * 16384); imm = (t & 3) * 1024
            so = P.coff + ks * P.kstride; sb = P.sbase; v = P.vdma; sr = P.srd; grp = ("w", t // 2)
            if t // 2 >= 8: deps = [(bars[nbar(t // 2 - 6)], 0)]
        elif kind == "x":
            t = arg; P, ks = steps[t]
            m0 = (S_AM0, 16384 + (ks >> 4) * 4096); imm = ((ks >> 2) & 3) * 1024
            so = ks * P.kstride; sb = S_W1X; v = VDMAX; sr = P.srd; grp = ("w", t // 2)
        else:
            c, nn = arg
            m0 = (S_AM0, (c % 3) * 8192 + (nn >> 2) * 4096); imm = (nn & 3) * 1024
            so = 8 * nn * 1024 + (c % 3 if 'r' in os.environ.get('X', '') else c) * 128
            sb = S_CB; v = VCD + (nn & 1); sr = SRD_C; grp = ("act", c)
            if nn == 0 and c >= 3:
                o.append(WAITLGKM(last_rd[c - 3]))
                if c > 3: deps = [(last_rd[c - 3], 8)]
        if so < imm: m0 = (m0[0], m0[1] + imm); imm = 0
        if cur[0] != m0:
            o += L(f"s_add_u32 m0, s{m0[0]}, {m0[1]}"); cur[0] = m0
        o += L(f"s_add_u32 s{S_DT}, s{sb}, {so - imm}",
               f"buffer_load_dwordx4 v{v}, s[{sr}:{sr+3}], s{S_DT} offen" + (f" offset:{imm}" if imm else "") + (NTM if sr == SRD_UK and tm < 0 and "k" in NTS else "") + " lds")
        o[-1].grp = grp
        for x in o: x.earliest = max(tm, 0)
        o[0].deps = deps
        return o
    pro_vm = [x for u in first for x in emit_unit(u)]
    vm = [x for u in rest for x in emit_unit(u)]
    lastd = {}
    for x in vm:
        if x.tag == "dma": lastd[x.grp] = x
    for x in ds + areads:
        if x.mn == "WAIT" and x.grp in lastd: x.deps = x.deps + [(lastd[x.grp], 64)]
    GX, GG, GO, GI = U(8), U(9), U(10), U(11)
    gl = gate_loads(GX, GG, GO, GO + 4) + ximg_loads(GI, GI + 12)
    gc = gate_compute(GX, GG, GO, GO + 8)
    misc = L(f"""s_lshl_b32 s{S_PO}, s{S_SIG}, 20
      v_lshl_add_u32 v{VT+8}, v0, 2, s{S_PO}
      v_mov_b32 v{VT+9}, 0
      s_lshl_b32 s{S_PO}, s2, 8
      s_add_u32 s{S_PO}, s{S_PO}, {hex(INBOX)}
      buffer_store_dword v{VT+9}, v{VT+8}, s[{SRD_WS}:{SRD_WS+3}], s{S_PO} offen sc1""")
    misc += xcc_ops() + L(f"s_lshl_b32 s{S_PT}, 1, s{S_PT}") + signal([], VT + 8, f"s{S_PT}")
    xs = ximg_stores(GI)
    for q in xs + gc: q.earliest = S[1]
    misc += xs + gc
    wv = WAITVM(gc[-1]); wv.earliest = S[14]; wv.deadline = barpos[nbar(9)] - 3; wv.deps = [(gc[-1], 140)]
    misc += [wv]
    sg = signal(L(f"s_lshl_b32 s{S_PO}, s{S_J}, 2"), VT + 8); sg[-1].deps = [(bars[nbar(9)], 0)]
    misc += sg
    misc += poll("g", VT + 10, L(f"s_lshl_b32 s{S_PO}, s{S_J}, 2"), 32, S[23 + SK], S[32 + SK])
    gpoll = misc[-1]
    xl = []; XSP = int(os.environ.get("XSP", "30")); te = 0
    for ks in list(range(2, 18)) + [0, 1]:
        o = L(f"s_add_u32 s{S_XS}, s{S_XB}, {(ks % 4 if 'y' in os.environ.get('X', '') else ks) * 8192}")
        for a in range(4):
            o += L(f"buffer_load_dwordx4 {x_act(a, ks)}, v{VST2 if a >= 2 else VST}, s[{SRD_WS}:{SRD_WS+3}], s{S_XS} offen offset:{(a & 1) * 2048} sc1")
        te = max(te + XSP, S[(steps.index((V1, ks - 2)) | 1) + 1] if ks >= 2 else 0)
        for k, q in enumerate(o): q.earliest = te + (XSP * k) // 5
        if ks < 2: o[1].deps = [(lastop[("V0", 3 + 4 * ks)], 1)]
        u = S[steps.index((Ha, ks)) & ~1]
        w = WAITVM(o[-1]); w.earliest = u - 4; w.deadline = u - 1
        areads.append(w); xl += o
    xl[0].deps = [(gpoll, 0)]
    misc += L(f"""v_and_b32 v{VT+8}, 15, v0
        v_lshlrev_b32 v{VT+8}, 3, v{VT+8}
        s_lshl_b32 s{S_PO}, s{S_BLK}, 3
        s_and_b32 s{S_PT}, s{S_W}, 1
        s_add_u32 s{S_PO}, s{S_PO}, s{S_PT}
        s_lshl_b32 s{S_PO}, s{S_PO}, 7
        s_add_u32 s{S_PO}, s{S_PO}, {hex(G_BASE)}""")
    for a in range(4): misc += L(f"buffer_load_dwordx2 {r2('v', VC + 2 * a)}, v{VT+8}, s[{SRD_WS}:{SRD_WS+3}], s{S_PO} offen offset:{256 * a} sc1")
    first_fma[0].deps.append((misc[-1], 160)); misc[-1].deadline = S[70]
    kb = min(b for b in barpos if barpos[b] - 3 >= kv_te + 190)
    wv = WAITVM(kv_last); wv.earliest = barpos[kb] - 8; wv.deadline = barpos[kb] - 3; wv.deps = [(kv_last, 170)]
    sg = signal(L(f"s_lshl_b32 s{S_PO}, s{S_H}, 2", f"s_add_u32 s{S_PO}, s{S_PO}, {DBG_KV}"), VT + 8)
    xc = xcc_ops() + L(f"buffer_load_dword v{VT+10}, off, s[{SRD_DBG}:{SRD_DBG+3}], s{S_PO} sc1")
    xr = L(f"v_lshrrev_b32 v{VT+10}, s{S_PT}, v{VT+10}", f"v_and_b32 v{VT+10}, 255, v{VT+10}", f"v_readfirstlane_b32 s{S_LOC}, v{VT+10}")
    xr[0].deps = [(xc[-1], 150)]; xr[2].deps = [(xr[1], 1)]
    xr += [Bundle(L(f"s_cmp_eq_u32 s{S_LOC}, {33 if 'n' in os.environ.get('X', '') else 32}", f"s_cselect_b32 s{S_LOC}, 1, s{S_W}"), deps=[(xr[2], 1)])]
    rl = release("kv"); rl.deps = [(bars[kb], 0)]
    misc += xc + xr + [wv] + sg[:-1] + [rl, sg[-1]]
    PT = [int(v) for v in os.environ.get("PT", "0,15,17").split(",")]
    H64 = "6" in os.environ.get("X", "")
    a, b2 = 44, 45
    def touch(sr, so, off=0, dup=True):
        o = L(f"buffer_load_dword v{VPF}, v{a}, s[{sr}:{sr+3}], s{so} offen" + (f" offset:{off}" if off else ""))
        if H64 and dup: o += L(f"buffer_load_dword v{VPF}, v{a}, s[{sr}:{sr+3}], s{so} offen offset:{off + 64}")
        for x in o: x.wr = []
        return o
    t1 = L(f"""s_lshl_b32 s{S_T0}, s{S_J}, 2
      s_add_u32 s{S_T0}, s{S_T0}, s{S_W}
      s_lshl_b32 s{S_T1}, s{S_T0}, 17
      s_add_u32 s{S_T1}, s{S_T1}, s{S_WB}
      v_lshrrev_b32 v{a}, 2, v0
      v_and_b32 v{b2}, 3, v0
      v_lshlrev_b32 v{b2}, 6, v{b2}
      v_lshl_add_u32 v{a}, v{a}, 13, v{b2}""") + touch(SRD_UV, S_T1, dup=False)
    EC = os.environ.get("EC", "m1")
    t0 = L(*[x.text for x in t1[:-1]]) + touch(SRD_UK, S_T1, dup=False)
    if "k" in NTS: t0[-1].text += NTM
    if EC[0] == "m":
        t0 += L(f"""s_lshl_b32 s{S_T1}, s2, 2
          s_add_u32 s{S_T1}, s{S_T1}, s{S_W}
          s_lshl_b32 s{S_T1}, s{S_T1}, 11
          v_lshlrev_b32 v{a}, 5, v0""") + touch(SRD_C, S_T1, dup=False)
    elif EC[0] == "l":
        t0 += L(f"""s_lshr_b32 s{S_T1}, s{S_H}, 3
          s_lshl_b32 s{S_T1}, s{S_T1}, 14
          s_add_u32 s{S_T1}, s{S_T1}, s{S_CB}
          v_lshlrev_b32 v{a}, 7, v0""") + touch(SRD_C, S_T1, dup=False) + L(f"s_add_u32 s{S_T1}, s{S_T1}, 8192") + touch(SRD_C, S_T1, dup=False)
    else: t0 = []
    t3 = L(f"""s_lshr_b32 s{S_T2}, s{S_H}, 3
      s_lshl_b32 s{S_T2}, s{S_T2}, 5
      s_add_u32 s{S_T2}, s{S_T2}, s{S_T0}
      s_mul_i32 s{S_T2}, s{S_T2}, 9
      s_lshr_b32 s{S_T2}, s{S_T2}, 1
      s_mul_i32 s{S_T2}, s{S_T2}, 9216
      s_and_b32 s{S_T1}, s{S_H}, 7
      s_mul_i32 s{S_T1}, s{S_T1}, 1152
      s_add_u32 s{S_T1}, s{S_T1}, s{S_T2}
      v_min_u32 v{a}, 44, v0
      v_mul_u32_u24 v{b2}, 57, v{a}
      v_lshrrev_b32 v{b2}, 9, v{b2}
      v_mul_u32_u24 v{b2}, 8064, v{b2}
      v_lshl_add_u32 v{a}, v{a}, 7, v{b2}""") + touch(SRD_W1, S_T1)
    t4 = L(f"""s_mul_i32 s{S_T1}, s{S_T0}, {18 * 8192}
      s_add_u32 s{S_T1}, s{S_T1}, s{S_WB}
      v_min_u32 v{a}, 35, v0
      v_and_b32 v{b2}, 1, v{a}
      v_lshrrev_b32 v{a}, 1, v{a}
      v_lshlrev_b32 v{b2}, 7, v{b2}
      v_lshl_add_u32 v{a}, v{a}, 13, v{b2}""") + touch(SRD_WQ, S_T1)
    pf = []
    for t, e in ((t1, S[PT[0]]), (t3, S[PT[1]]), (t4, S[PT[2]])):
        for x in t: x.earliest = e
        pf += t
    PS = os.environ.get("PS", "uuuuwwwwwqqqqq,240,540")
    if PS:
        pf = L(f"""s_lshl_b32 s{S_T0}, s{S_J}, 2
          s_add_u32 s{S_T0}, s{S_T0}, s{S_W}
          s_lshl_b32 s{S_T1}, s{S_T0}, 15
          s_add_u32 s{S_T1}, s{S_T1}, s{S_WB}
          v_min_u32 v{a}, 7, v0
          v_and_b32 v{b2}, 1, v{a}
          v_lshrrev_b32 v{a}, 1, v{a}
          v_lshlrev_b32 v{b2}, 7, v{b2}
          v_lshl_add_u32 v{a}, v{a}, 13, v{b2}
          s_lshr_b32 s{S_T2}, s{S_H}, 3
          s_lshl_b32 s{S_T2}, s{S_T2}, 5
          s_add_u32 s{S_T2}, s{S_T2}, s{S_T0}
          s_mul_i32 s{S_T2}, s{S_T2}, 9216
          s_and_b32 s{S_T3}, s{S_H}, 7
          s_mul_i32 s{S_T3}, s{S_T3}, 1152
          s_add_u32 s{S_T2}, s{S_T2}, s{S_T3}
          s_mov_b32 s{S_T0}, s{S_T1}
          v_min_u32 v{b2}, 8, v0
          v_lshlrev_b32 v{b2}, 7, v{b2}""")
        order, p0, p1 = PS.split(","); p0 = int(p0); p1 = int(p1)
        for k, m in enumerate(order):
            if m == "-": continue
            sr, so, v, st = {"u": (SRD_UV, S_T1, a, 128 * 8192), "q": (SRD_WQ, S_T0, a, 128 * 8192), "w": (SRD_W1, S_T2, b2, 128 * 9216)}[m]
            o = L(f"buffer_load_dword v{VPF}, v{v}, s[{sr}:{sr+3}], s{so} offen" + (NTM if m in NTS else ""), f"s_add_u32 s{so}, s{so}, {st}")
            o[0].wr = []; o[0].earliest = p0 + (p1 - p0) * k // len(order); o[0].maxlag = 4
            pf += o
    if "p" in os.environ.get("X", ""): pf = []
    pc = []
    if "f" in CT:
        ca = caddr(46)
        for x in ca: x.earliest = S[18]
        pc = ca + [ctouch(46, f"v{VPF}", earliest=S[t], deadline=S[t + 2]) for t in [int(v) for v in os.environ.get("CTF", "24,40,56,72,88,104").split(",")]]
    ctx = dict(S=S, bars=bars, barpos=barpos, steps=steps, misc=misc, vm=vm, cur=cur, qepi=qepi, h_last=h_last, spine=spine)
    extra = tail_streams(ctx) if tail_streams else []
    for x in vm + sts + xl: x.maxlag = 6
    streams = [ds, areads, vm, xl, pf, pc, misc, sts, epi, hD, hB, hE, hC, hA, qepi] + extra
    main = schedule(spine, streams, verbose="front", nprio=2)
    last = max(i for i, x in enumerate(main) if x.kind == "mfma")
    body, tl = main[:last + 1], main[last + 1:]
    fixed = fix_hazards(body[-14:] + tl)
    assert fixed[:14] == body[-14:]
    main = body + fixed[14:]
    X = os.environ.get("X", "")
    if "s" in X: main = [x for x in main if not x.mn.startswith("buffer_store_dwordx4")]
    if "f" in X: main = [x for x in main if not (x.mn.startswith("buffer_atomic") or x.mn == "buffer_load_dword" or "Lpoll" in x.text)]
    if "x" in X: main = [x for x in main if not (x.tag == "dma" and f"s[{SRD_X}:" in x.text)]
    if PROF:
        mf = [i for i, x in enumerate(main) if x.kind == "mfma"]
        cut = [0] + [mf[S[t]] for t in (16, 32, 48, 64, 82, 100, 118)] + [len(main)]
        print("front est:", [est_cycles(main[a:b]) for a, b in zip(cut, cut[1:])])
        for q, t in reversed(list(enumerate((16, 32, 48, 64, 82, 100, 118)))): main[mf[S[t]]:mf[S[t]]] = stamp(3 + q)
    sig = L(f"s_cmp_lg_u32 s{S_W}, 0", f"s_cselect_b32 s{S_SIG}, 256, 0", f"s_add_u32 s{S_SIG}, s{S_SIG}, s{S_SLOW}")
    dm = [i for i, x in enumerate(pro_vm) if x.tag == "dma"]
    e0 = 0 if EC[1] == "0" else dm[9] + 1
    pro = fix_hazards(setup()) + pro_vm[:e0] + fix_hazards(t0) + pro_vm[e0:45] + stamp(1) + fix_hazards(gl) + pro_vm[45:] + fix_hazards(setup2() + sig + (t1 if os.environ.get("PU") else [])) + pro_ar + pro_ds + stamp(2)
    return pro, main

def entry(exit_label):
    return fix_hazards(L(f"""
      s_cmp_ge_u32 s2, 256
      s_cbranch_scc1 {exit_label}
      v_lshrrev_b32 v1, 6, v0
      v_and_b32 v0, 63, v0
      v_readfirstlane_b32 s{S_W}, v1
      s_mov_b32 s{S_SLOW}, 0
    """) + (L(f"""
      s_getpc_b64 s[{S_T2}:{S_T3}]
      Lpc0:
      s_lshr_b32 s{S_T0}, s2, 1
      s_and_b32 s{S_T0}, s{S_T0}, 12
      s_add_u32 s{S_T0}, s{S_T0}, s{S_W}
      s_lshl_b32 s{S_T0}, s{S_T0}, 13
      v_lshl_add_u32 v1, v0, 7, s{S_T0}
      v_min_u32 v1, Lend-Lpc0-4, v1
      global_load_dword v{VPF}, v1, s[{S_T2}:{S_T3}]
      s_lshr_b32 s{S_T0}, s2, 1
      s_and_b32 s{S_T0}, s{S_T0}, 0x7c
      s_add_u32 s{S_T0}, s{S_T0}, s{S_W}
      s_lshl_b32 s{S_T0}, s{S_T0}, 7
      s_add_u32 s{S_PC}, s{S_T2}, s{S_T0}
      s_addc_u32 s{S_PC+1}, s{S_T3}, 0
    """) if "c" not in os.environ.get("X", "") else []) + L("Lstart:"))

def k1():
    K = Kernel("k1_kernel", 256, 163840)
    pro, main = front()
    K.add("pro", stamp(0) + entry("Lexit1") + pro)
    K.add("main", main + stamp(10) + prof_out(0, 11) + L("Lexit1:", "s_endpgm"))
    K.paths = [["pro", "main"]]
    K.add("slow", [i for b in slow_blocks for i in b])
    K.finish()
    return K
```

```python
from p4base import *

VK, VV = 18, 19
VBAD, VGL = 43, 44
VNL, VLS = 10, 14
VX = 46
SB = [[U(2), U(0)], [U(8), U(9)]]
PB = [U(1), U(7)]
NEGM, MK = U(10), U(11)
A_L, A_K, A_V, A_ONE = 128, 144, 176, 208
def a_o(db, a): return 16 * db + 4 * a
S_DM0, S_DSO, S_CNT, S_ACT2, S_EO = 67, 68, 69, 7, 49
RING_A, RING_B, STASH = 0x10000, 0, 0x20000
LSUM = 0x10000 + 3 * 16384 + 4096
ALL = [0, 1, 2, 3]

class Per:
    def __init__(self, ph, qk=ALL, mask=None, pv=ALL, first=False, dma=(1, 1), dph=None, kph=None, vph=None, kread=True, vread=True,
                 amajor=None, vregs=A_V, bar=True, kregs=A_K, pad=0, early=False):
        self.ph = ph
        self.qk = qk; self.mask = mask; self.pv = pv; self.first = first
        self.dma = dma
        self.dph = ph if dph is None else dph
        self.kph = (ph + 1) % 4 if kph is None else kph
        self.vph = ph if vph is None else vph
        self.kread = kread; self.vread = vread; self.amajor = amajor; self.vregs = vregs; self.bar = bar
        self.kregs = kregs; self.pad = pad; self.early = early

NSPLIT = 5
def seq(name, pers, par0, carry_in=True, carry_out=True, extra=None, tail=None, tail_ok=False):
    spine = []; info = []
    for n, P in enumerate(pers):
        par = (par0 + n) & 1
        d = dict(start=len(spine), sdone={}, odone={}, vlast={}, klast={})
        order = [(kvb, ds) for kvb in range(2) for ds in range(4)] if len(P.qk) > 1 else [(kvb, ds) for ds in range(4) for kvb in range(2)]
        order = [(kvb, ds, a) for kvb, ds in order for a in P.qk]
        if "q" in CH: order = [(kvb, ds ^ (3 * (i & 1)), a) for kvb in range(2) for i, a in enumerate(P.qk) for ds in range(4)]
        for kvb, ds, a in order:
                D = r4("v", SB[par][kvb] + 4 * a)
                C = D if (kvb, a) in d["sdone"] else (r4("v", MK + 8 + 4 * kvb) if a == P.mask else r4("v", NEGM + 4 * a))
                spine.append(I(f"{MF} {D}, {r4('a', P.kregs + 16 * kvb + 4 * ds)}, {r4('v', q_reg(a, ds))}, {C}"))
                d["sdone"][(kvb, a)] = len(spine) - 1
        d["qkend"] = len(spine)
        spine += [None] * P.pad
        d["mid"] = len(spine)
        pp = PB[par ^ 1]
        def summ(a):
            D = r4("a", A_L + 4 * a)
            spine.append(I(f"{MF} {D}, {r4('a', A_ONE)}, {r4('v', pp + 4 * a)}, {'0' if P.first else D}"))
        def pv(db, a):
            D = r4("a", a_o(db, a))
            spine.append(I(f"{MF} {D}, {r4('a', P.vregs + 4 * db)}, {r4('v', pp + 4 * a)}, {'0' if P.first else D}"))
            d["odone"][a] = len(spine) - 1; d["vlast"][db] = len(spine) - 1
        if P.amajor:
            for a in P.amajor:
                summ(a)
                for db in range(8): pv(db, a)
        else:
            for a in P.pv: summ(a)
            for db in range(8):
                for a in (P.pv[::-1] if "q" in CH and db % 2 == 0 else P.pv): pv(db, a)
        d["end"] = len(spine)
        info.append(d)
    ds = []; vm = []; ex = []; cv = []; mk = []
    def softmax(par, tiles, done, dl=None):
        for (kvb, a) in tiles:
            e = done(kvb, a); b = SB[par][kvb] + 4 * a
            es = [I(f"v_exp_f32 v{b+r}, v{b+r}", earliest=e) for r in range(4)]
            ex.extend(es)
            for k in range(2):
                c = I(f"v_cvt_pk_bf16_f32 v{PB[par] + 4 * a + 2 * kvb + k}, v{b+2*k}, v{b+2*k+1}", earliest=e, deps=[(es[2 * k + 1], 1)])
                if dl is not None: c.deadline = dl
                cv.append(c)
    full = [(kvb, a) for kvb in range(2) for a in ALL]
    if carry_in: softmax(par0 ^ 1, full[NSPLIT:], lambda k, a: 0)
    bars = []
    for n, P in enumerate(pers):
        d = info[n]; par = (par0 + n) & 1
        if P.mask is not None and n > 0:
            e = max(d["start"] - 12, info[n - 1]["qkend"] - 4)
            for kvb in range(2):
                for r in range(4):
                    mk.append(I(f"v_add_f32 v{MK + 8 + 4 * kvb + r}, v{MK + 4 * kvb + r}, v{NEGM + 4 * P.mask}", earliest=e))
            d["mk"] = mk[-8:]
        lastv = None
        if P.vread and (P.pv or P.amajor):
            nq = d["mid"] - d["start"]
            for db in range(8):
                x = I(f"ds_read_b128 {r4('a', P.vregs + 4 * db)}, v{VV} offset:{P.vph * 16384 + db * 1024}")
                if P.vregs == A_V:
                    x.earliest = d["start"] + (db * max(nq - 10, 0)) // 10
                    if n and db in info[n - 1]["vlast"] and nq < 24: x.earliest = max(info[n - 1]["vlast"][db], info[n - 1]["klastpos"] + 1)
                else: x.earliest = info[n - 1]["mid"] + 2 * db
                ds.append(x); lastv = x; d.setdefault("vreads", []).append(x)
        if P.bar:
            e = d["mid"] - 1 if not P.early else d["start"] + 6
            w = [WAITG("kv", n + 1), I("s_barrier")]
            if lastv is not None: w.insert(0, WAITLGKM(lastv))
            if P.early: w.insert(0, I("s_waitcnt lgkmcnt(0)"))
            for x in w: x.earliest = max(e - 1, d["start"]); x.deadline = max(e, d["start"])
            ds += w; d["bar"] = w[-1]; d["barwait"] = w[0]
        d["klastpos"] = d["mid"]
        if P.kread:
            npv = d["end"] - d["mid"]
            for f in range(8):
                kvb, dsi = (f >> 2, f & 3) if (n + 1 >= len(pers) or len(pers[n + 1].qk) > 1 or "q" in CH) else (f & 1, f >> 1)
                kr = pers[n + 1].kregs if n + 1 < len(pers) else A_K
                x = I(f"ds_read_b128 {r4('a', kr + 16 * kvb + 4 * dsi)}, v{VK} offset:{P.kph * 16384 + 8192 + (4 * kvb + dsi) * 1024}")
                x.earliest = d["mid"] - 1 + (f * max(npv - 12, 0)) // 10 if not P.early else d["start"] + 7 + 2 * f
                d.setdefault("kreads", []).append(x)
                ds.append(x); d["klastpos"] = x.earliest
        def dmas(slot, h, goff, e0, span, dep):
            o = L(f"s_add_u32 m0, s{S_DM0}, {slot * 16384 + 4096 * h}")
            for k in range(4):
                x = I(f"buffer_load_dwordx4 v{VST}, s[{SRD_WS}:{SRD_WS+3}], s{S_DSO} offen offset:{1024 * k} sc1 lds"); x.grp = ("kv", goff)
                x.earliest = e0 + (k * span) // 4; x.maxlag = 4
                o.append(x)
            o += L(f"s_add_u32 s{S_DSO}, s{S_DSO}, {12288 if h else 4096}")
            o[0].earliest = e0; o[0].deps = [dep] if dep else []; o[1].deps = [(o[0], 1)]
            return o
        if P.dma[0]:
            o = dmas((P.dph + 3) % 4, 1, n + 3, d["start"], d["mid"] - d["start"] - 4, None)
            o[-2].deadline = d["end"] - 1
            vm += o
        if P.dma[1]:
            e0 = d["mid"] if not P.early else d["start"] + 8
            o = dmas(P.dph, 0, n + 4, e0, d["end"] - e0 - 4, (d["bar"], 0))
            o[-2].deadline = o[-1].deadline = d["end"] - 1
            vm += o
        tiles = [(kvb, a) for kvb in range(2) for a in P.qk]
        last = n == len(pers) - 1
        if last and carry_out:
            assert P.qk == ALL
            softmax(par, tiles[:NSPLIT], lambda k, a: d["sdone"][(k, a)] + 8, dl=d["end"] - 1)
        else:
            nx = pers[n + 1] if not last else None
            if nx is not None and nx.amajor: tiles = [(kvb, a) for kvb in range(2) for a in nx.amajor]
            softmax(par, tiles, lambda k, a: d["sdone"][(k, a)] + SLAG(P))
    xs = extra(info) if extra else []
    st = [ds, vm, mk, ex, cv] + xs
    if tail:
        tail.earliest = tail.deadline = len(spine) - 1
        st.append([tail])
    out = schedule(spine, st, verbose=name, tail_ok=tail_ok)
    out = fix_hazards(out)
    tk = [TICK("kv", len(pers))]
    if tail: return out[:-1] + tk + out[-1:]
    return out + tk

def SLAG(P): return 8 if len(P.qk) >= 3 else 4

A_K2 = 212
EG = [FR, FR + 8]
VL = 40
def store_ctx(b, sbase, ds, a):
    o = []
    if ds: o += L(f"s_add_u32 s{S_EO}, s{sbase}, {ds * 8192}")
    o += L(f"buffer_store_dwordx4 {r4('v', b)}, v{VST2 if a >= 2 else VST}, s[{SRD_WS}:{SRD_WS+3}], s{S_EO if ds else sbase} offen offset:{(a & 1) * 2048}{os.environ.get('SCC', ' sc1')}")
    CTX_LAST.append(o[-1])
    return o
CTX_LAST = []
def p4_pro(tag, t_poll, bar0, t_v, t_k):
    o = plan_poll(tag, t_poll, t_poll + 60) + aload(0) + aload(1)
    w = wdma(0); w[0].deps = [(bar0, 0)]
    o += w
    for k in (2, 3, 4, 5):
        x = aload(k); x[1].earliest = t_v if k < 4 else t_k
        o += x
    return o
def scale_ops(vl, vg):
    return L(f"""v_subrev_u32 v{vl+1}, 0x1f800000, v{vl}
      v_rcp_f32 v{vl}, v{vl}
      v_max_u32 v{VBAD}, v{VBAD}, v{vl+1}
      v_mul_f32 v{vl}, v{vl}, v{vg}""")
egc = [0]
def epi_own(a, e):
    o = L(f"v_accvgpr_read_b32 v{VL}, a{A_L + 4 * a}") + scale_ops(VL, VC + 2 * a)
    for ds in range(4):
        t = EG[egc[0] & 1]; egc[0] += 1
        for k in range(2):
            for r in range(4): o += L(f"v_accvgpr_read_b32 v{t+4*k+r}, a{a_o(2*ds+k, a)+r}")
            for r in range(4): o += L(f"v_mul_f32 v{t+4*k+r}, v{VL}, v{t+4*k+r}")
            o += L(f"v_cvt_pk_bf16_f32 v{t+2*k}, v{t+4*k}, v{t+4*k+1}", f"v_cvt_pk_bf16_f32 v{t+2*k+1}, v{t+4*k+2}, v{t+4*k+3}")
        st = store_ctx(t, S_ACT, ds, a); st[-1].maxlag = 2
        o += st
    for x in o: x.earliest = e
    return o

HL = []
def front_tail(ctx):
    S, misc, vm, bars, barpos = ctx["S"], ctx["misc"], ctx["vm"], ctx["bars"], ctx["barpos"]
    HL.append(ctx["h_last"])
    pl = poll("kv", VT + 10, L(f"s_lshl_b32 s{S_PO}, s{S_H}, 2", f"s_add_u32 s{S_PO}, s{S_PO}, {DBG_KV}"), 8, S[106], S[116])
    misc += pl
    su = L(f"""s_mul_i32 s{S_DSO}, s{S_H}, {hex(KV_HEAD)}
      s_add_u32 s{S_DSO}, s{S_DSO}, {hex(KV_BASE - 8192)}
      s_add_u32 s{S_CNT}, s{S_DSO}, s{S_WM0}""")
    misc += su
    o = []
    for sl in range(4):
        u = L(f"s_add_u32 m0, s{S_WM0}, {RING_A + sl * 16384}", f"s_add_u32 s{S_DT}, s{S_CNT}, {sl * 16384}")
        for k in range(4):
            x = I(f"buffer_load_dwordx4 v{VST}, s[{SRD_WS}:{SRD_WS+3}], s{S_DT} offen offset:{1024 * k} sc1 lds"); x.grp = ("kv", sl); u.append(x)
        o += u
    o[0].deps = [(su[-1], 0), (bars[ctx['nbar'](61)], 0)]
    for x in o: x.earliest = S[123]
    assert vm[-1].earliest < S[123] + 16
    vm += o; ctx["cur"][0] = None
    su2 = L(f"""s_and_b32 s{S_PT}, s{S_W}, 1
      s_lshl_b32 s{S_PT}, s{S_PT}, 13
      s_add_u32 s{S_DSO}, s{S_DSO}, s{S_PT}""")
    su2 += [Bundle(L(f"s_cmp_lt_u32 s{S_W}, 2", f"s_cselect_b32 s{S_DM0}, {RING_A}, {RING_B}", f"s_cselect_b32 s{S_PO}, 4, 34"))]
    su2 += L(f"""s_lshl_b32 s{S_PO}, s{S_PO}, 14
      s_add_u32 s{S_DM0}, s{S_DM0}, s{S_PT}
      s_add_u32 s{S_DSO}, s{S_DSO}, s{S_PO}
      s_lshl_b32 s{S_PO}, s{S_J}, 1
      s_sub_u32 s{S_PO}, 15, s{S_PO}
      s_mul_i32 s{S_PO}, s{S_PO}, {hex(ACT_RB)}
      s_add_u32 s{S_ACT2}, s{S_ACT}, s{S_PO}
      v_add_u32 v{VK}, {RING_A}, v{VST}
      v_add_u32 v{VV}, {RING_A}, v{VST}
      s_lshl_b32 s{S_PT}, s{S_PT}, 1
      v_add_u32 v{VX}, s{S_PT}, v{VST}
      s_lshr_b32 s{S_PT}, s{S_PT}, 4
      s_add_u32 s{S_PT}, s{S_PT}, {LSUM}
      v_add_u32 v{VLS}, s{S_PT}, v{VST}""")
    misc += su2
    t = VT + 8
    mk = L(f"""v_and_b32 v{t}, 15, v0
      v_lshrrev_b32 v{t+1}, 4, v0
      v_lshlrev_b32 v{t+1}, 2, v{t+1}
      v_sub_u32 v{t}, v{t}, v{t+1}
      s_and_b32 s{S_PT}, s{S_W}, 1
      s_lshl_b32 s{S_PT}, s{S_PT}, 4
      v_add_u32 v{t}, s{S_PT}, v{t}
      v_mov_b32 v{t+1}, 0xff800000""")
    for kvb in range(2):
        for r in range(4):
            mk += [Bundle(L(f"v_cmp_le_i32 vcc, {16 * kvb + r}, v{t}", "s_nop 1", f"v_cndmask_b32_e64 v{MK + 4 * kvb + r}, v{t+1}, 0, vcc"))]
    for x in mk: x.earliest = S[121]
    misc += mk
    ng = L(*[f"v_mov_b32 v{NEGM + r}, 0" for r in range(16)]) + L(*[f"v_mov_b32 v{VNL + r}, 0" for r in range(4)])
    ng += L(*[f"v_mov_b32 v{MK + 8 + r}, v{MK + r}" for r in range(8)])
    for x in ng: x.earliest = S[121]
    misc += ng
    w = [WAITG("kv", 0), I("s_barrier")]
    w[0].deps = [(o[5], 100)]
    for f in range(8): w.append(I(f"ds_read_b128 {r4('a', A_K + 4 * f)}, v{VK} offset:{8192 + f * 1024}"))
    for x in w: x.earliest = S[134] + 4
    w[2].deps = [(su2[-1], 1)]
    pz = pz_setup()
    for x in pz: x.earliest = S[40]
    return [w, pz]

VCT, VWT = 29, 30
S_TW2, S_TWO, S_TWL, S_TWO2 = 59, 60, 61, 62
def wtouch_setup():
    return L(f"""s_sub_u32 s{S_TW2}, s{S_J}, 1
      s_sub_u32 s{S_TWO}, s{S_J}, 2
      s_mul_i32 s{S_TW2}, s{S_TW2}, s{S_TWO}
      s_and_b32 s{S_TWO}, s{S_W}, 1
      s_add_u32 s{S_TW2}, s{S_TW2}, s{S_TWO}
      s_mul_i32 s{S_TWL}, s{S_TW2}, {4 * 1152}
      s_mul_i32 s{S_TWO}, s{S_H}, {128 * 1152}
      s_add_u32 s{S_TWO2}, s{S_TWO}, {124 * 1152}
      s_add_u32 s{S_TWO}, s{S_TWO}, s{S_TWL}
      s_lshl_b32 s{S_TW2}, s{S_TW2}, 2
      s_lshr_b32 s{S_TWL}, s{S_H}, 3
      s_add_u32 s{S_TW2}, s{S_TW2}, s{S_TWL}
      s_mul_i32 s{S_TW2}, s{S_TW2}, {4 * 1152}
      s_and_b32 s{S_TWL}, s{S_H}, 7
      s_mul_i32 s{S_TWL}, s{S_TWL}, {576 * 1152}
      s_add_u32 s{S_TW2}, s{S_TW2}, s{S_TWL}
      s_add_u32 s{S_TWL}, s{S_TWL}, {572 * 1152}
      v_min_u32 v{VWT}, 17, v0
      v_lshlrev_b32 v{VWT}, 7, v{VWT}""")
def wtouch(info):
    o = L(f"""s_min_u32 s{S_TW2}, s{S_TW2}, s{S_TWL}
      buffer_load_dword a248, v{VWT}, s[{SRD_W2}:{SRD_W2+3}], s{S_TW2} offen
      s_min_u32 s{S_TWO}, s{S_TWO}, s{S_TWO2}
      buffer_load_dword a248, v{VWT}, s[{SRD_WO}:{SRD_WO+3}], s{S_TWO} offen
      buffer_load_dword a248, v{VWT}, s[{SRD_W2}:{SRD_W2+3}], s{S_TW2} offen offset:2304
      s_add_u32 s{S_TW2}, s{S_TW2}, {32 * 1152}
      buffer_load_dword a248, v{VWT}, s[{SRD_WO}:{SRD_WO+3}], s{S_TWO} offen offset:2304
      s_add_u32 s{S_TWO}, s{S_TWO}, {8 * 1152}""")
    for k, x in enumerate([x for x in o if x.kind == "vmem"]): x.wr = []; x.maxlag = 6; x.earliest = info[k]["start"] + 10
    return o
VPG, VPA, VPD = FR, FR + 2, FR + 4
PTRIP = int(os.environ.get("PTRIP", "2")); PMUL = int(os.environ.get("PMUL", "8"))
def plan_setup():
    return L(f"""s_lshr_b32 s{S_PLO}, s{S_J}, 1
      s_sub_u32 s{S_PLO}, s{S_PLO}, 2
      s_lshl_b32 s{S_CAND}, s{S_J}, 2
      s_add_u32 s{S_CAND}, s{S_CAND}, s{S_W}""") + [Bundle(L(f"s_cmp_eq_u32 s{S_CAND}, 30", f"s_cselect_b32 s{S_CAND}, {PTRIP - 1}, -1")),
      Bundle(L(f"v_cmp_gt_i32 vcc, s{S_PLO}, v0", f"v_mov_b32 v{VPG+1}, 1", f"v_lshlrev_b32 v{VPA}, 8, v0", f"v_cndmask_b32_e64 v{VPG}, 2.0, 0, vcc")),
      Bundle(L(f"v_cmp_gt_u32 vcc, 8, v0", f"v_lshlrev_b32 v{VPA+1}, 2, v0", f"v_mov_b32 v{VPD}, {DBG_PL}", f"v_cndmask_b32 v{VPA+1}, v{VPD}, v{VPA+1}, vcc"))]
def plan_loads(so1, so2):
    return L(f"buffer_load_dword v{VPD}, v{VPA}, s[{SRD_WS}:{SRD_WS+3}], {so1} offen offset:64 sc1",
             f"buffer_load_dword v{VPD+1}, v{VPA+1}, s[{SRD_DBG}:{SRD_DBG+3}], {so2} offen sc1")
def plan_stream(info):
    o = [Bundle(L(f"s_cmp_eq_u32 s{S_CNT}, s{S_CAND}", f"s_cselect_b32 s{S_PL2}, 0, 256"))]
    o += L(f"s_lshl_b32 s{S_PLO}, s{S_PL2}, 20", f"s_add_u32 s{S_PLO}, s{S_PLO}, {hex(INBOX + 192 * 256)}")
    ld = plan_loads(f"s{S_PLO}", f"s{S_PL2}")
    for x in ld: x.wr = []
    o += ld + [Bundle(L(f"s_cmp_eq_u32 s{S_CNT}, s{S_CAND}", "s_cbranch_scc1 Lplan", "Lplanb:"), earliest=info[2]["start"] + 20)]
    pg = [I(f"buffer_atomic_add v{VPG+1}, v{VPG}, s[{SRD_WS}:{SRD_WS+3}], s{S_IB} offen offset:64 sc1", earliest=info[k]["mid"] + 24, maxlag=4) for k in range(4)]
    return o, pg
def plan_block(nv):
    c, t, T, R = VPD, VPD + 2, VPD + 3, VPD + 4
    o = L(f"""Lplan:
      s_waitcnt vmcnt({nv})
      Lplan1:
      v_readlane_b32 s{S_T64}, v{c+1}, 8
      v_cmp_gt_u32 vcc, 64, v{c+1}
      s_cmp_lg_u32 s{S_T64}, 0
      s_cbranch_scc1 Lplanb
      s_and_b32 s{S_T64}, vcc_lo, 255
      s_cbranch_scc0 Lplan2""") + plan_loads(f"s{S_PLO}", "0") + L(f"""s_waitcnt vmcnt(0)
      s_branch Lplan1
      Lplan2:
      v_and_b32 v{c}, 255, v{c}
      v_mov_b32 v{t}, v{c}
      v_permlane32_swap_b32 v{t}, v{c}
      s_nop 1
      v_add_u32 v{c}, v{c}, v{t}
      v_mov_b32 v{t}, v{c}
      v_permlane16_swap_b32 v{t}, v{c}
      s_nop 1
      v_add_u32 v{c}, v{c}, v{t}
      v_add_u32_dpp v{c}, v{c}, v{c} row_ror:8 row_mask:0xf bank_mask:0xf
      v_mul_u32_u24 v{c}, {PMUL}, v{c}
      v_or_b32 v{c}, 7, v{c}
      v_and_b32 v{t}, 7, v0
      v_sub_u32 v{c}, v{t}, v{c}
      v_lshrrev_b32 v{T}, 3, v0
      v_lshlrev_b32 v{T}, 2, v{T}
      ds_bpermute_b32 v{T}, v{T}, v{c}
      v_lshlrev_b32 v{t}, 7, v{t}
      v_mov_b32 v{R}, 0
      s_waitcnt lgkmcnt(0)
      v_add_u32 v{T}, v{T}, v{t}
      v_add_u32 v{T}, 128, v{T}""")
    for g in range(8):
        o += L(f"""v_readlane_b32 s{S_T64}, v{c}, {g}
          v_subrev_u32 v{t}, s{S_T64}, v{T}
          v_ashrrev_i32 v{t}, 7, v{t}
          v_med3_i32 v{t}, v{t}, 0, {NHI - NLO}
          v_add_u32 v{R}, v{R}, v{t}""")
    m = sum(((1 << (NHI - NLO)) - 1) << (8 * g) for g in range(4))
    o += L(f"""v_cmp_ge_u32 vcc, {72 - 8 * NLO}, v{R}
      v_mov_b32 v{c+2}, 0
      v_mov_b32 v{c+3}, 0
      s_and_b32 s{S_T64}, vcc_lo, {hex(m)}
      s_and_b32 s{S_T64+1}, vcc_hi, {hex(m)}
      v_mov_b32 v{c}, s{S_T64}
      v_mov_b32 v{c+1}, s{S_T64+1}
      buffer_atomic_cmpswap_x2 {r4('v', c)}, v{VPG}, s[{SRD_DBG}:{SRD_DBG+3}], 0 offen offset:{DBG_PL} sc1
      s_branch Lplanb""")
    return fix_hazards(o)
def ones():
    return (caddr(VCT, "Lpre_back") + [ctouch(VCT, "a248")] if "l" in CT else []) + L(f"v_mov_b32 v{VBAD}, 0", f"v_mov_b32 v{VT}, 0x3f803f80") + L(*[f"v_accvgpr_write_b32 a{A_ONE + r}, v{VT}" for r in range(4)])

def head(isL):
    D = (1, 1) if isL else (0, 0)
    pers = [Per(0, pv=[], dma=(0, D[1]), early=True), Per(1, first=True, dma=D, kregs=A_K2), Per(2, dma=D), Per(3, dma=D)]
    def extra(info):
        xs = [ones()]
        info[3]["barwait"].waitfor.append(HL[0])
        if isL:
            sg = signal(L(f"s_lshl_b32 s{S_PO}, s{S_J}, 2"), VL)
            sg[-1].deps = [(info[3]["bar"], 0)]
            xs.append(sg)
            st = [I(f"ds_write_b128 v{VX+1}, {r4('v', q_reg(a, ds))} offset:{(4 * a + ds) * 1024}") for a in range(4) for ds in range(4)]
            st = L(f"v_add_u32 v{VX+1}, {STASH}, v{VX}") + st
            st[1].deps = [(info[0]["bar"], 0)]
            info[1]["barwait"].waitfor.append(st[-1]); info[1]["barwait"].deps.append((st[-1], 2))
            xs.append(st)
        if not isL:
            pf = L(f"""s_lshl_b32 s{S_PO}, s{S_J}, 1
              s_add_u32 s{S_PO}, s{S_PO}, s{S_W}
              s_sub_u32 s{S_PO}, s{S_PO}, 4
              s_mul_i32 s{S_PT}, s{S_H}, 18
              s_add_u32 s{S_PT}, s{S_PT}, s{S_PO}
              s_lshl_b32 s{S_PT}, s{S_PT}, 13
              v_lshlrev_b32 v{VL}, 7, v0
              buffer_load_dword v{VL+1}, v{VL}, s[{SRD_WO}:{SRD_WO+3}], s{S_PT} offen
              s_add_u32 s{S_PT}, s{S_PT}, {4 * 8192}
              buffer_load_dword v{VL+1}, v{VL}, s[{SRD_WO}:{SRD_WO+3}], s{S_PT} offen
              s_lshl_b32 s{S_PO}, s{S_PO}, 2
              s_lshr_b32 s{S_PT}, s{S_H}, 3
              s_add_u32 s{S_PO}, s{S_PO}, s{S_PT}
              s_and_b32 s{S_PT}, s{S_H}, 7
              s_mul_i32 s{S_PT}, s{S_PT}, 81
              s_add_u32 s{S_PT}, s{S_PT}, s{S_PO}
              s_lshl_b32 s{S_PT}, s{S_PT}, 13
              buffer_load_dword v{VL+1}, v{VL}, s[{SRD_W2}:{SRD_W2+3}], s{S_PT} offen
              s_add_u32 s{S_PT}, s{S_PT}, {25 * 8192}
              buffer_load_dword v{VL+1}, v{VL}, s[{SRD_W2}:{SRD_W2+3}], s{S_PT} offen""")
            ld = [x for x in pf if x.kind == "vmem"]
            for x in ld[:-1]: x.wr = []
            ld[0].deps = [(info[2]["bar"], 0)]
            xs.append(pf if "w" in os.environ.get("X", "") else wtouch_setup() + plan_setup())
        cnt = L(f"s_mov_b32 s{S_CNT}, 7") if isL else L(f"s_sub_u32 s{S_CNT}, s{S_J}, 1")
        xs.append(cnt); xs.append(p4_setup())
        return xs
    return seq("head" + "SL"[isL], pers, 0, carry_in=False, extra=extra)

def loop(dma, label):
    D = (1, 1) if dma else (0, 0)
    pers = [Per(i, dma=D) for i in range(4)]
    tail = Bundle(L(f"s_cmp_lg_u32 s{S_CNT}, 0", f"s_cbranch_scc1 {label}"))
    def extra(info):
        pz = [I(f"buffer_store_dwordx4 {r4('a', A_Z)}, v{VPZ}, s[{SRD_PZ}:{SRD_PZ+3}], 0 offen offset:{1024 * k} sc1", earliest=info[k]["mid"] + 10) for k in range(4)]
        if "z" in os.environ.get("X", ""): pz = []
        PZ.extend(pz)
        pl = [[], []] if dma else plan_stream(info)
        return [L(f"s_sub_u32 s{S_CNT}, s{S_CNT}, 1") + pl[0], pl[1], ([ctouch(VCT, "a248", earliest=info[1]["mid"] + 20)] if "l" in CT else []), [] if dma or "o" in os.environ.get("X", "") else wtouch(info), pz + [I(f"v_add_u32 v{VPZ}, 0x1000, v{VPZ}", deadline=info[3]["end"] - 2)]]
    out = seq("loop" + "ND"[dma], pers, 0, extra=extra, tail=tail)
    if not dma:
        i0 = max(i for i, x in enumerate(out) if f"v{VPD+1}, v{VPA+1}" in x.text); i1 = [i for i, x in enumerate(out) if "Lplanb:" in x.text][0]
        slow_blocks.append(plan_block(sum(1 for x in out[i0 + 1:i1] if x.ctr == "vm")))
    pf = []
    if PROF == 4: pf = L(*[f"s_mov_b32 s{S_PROF+2*k}, s{S_PROF+2*k+2}" for k in range(2, 8)]) + stamp(8, 4)
    return L(label + ":") + pf + out

def gl_load():
    return L(f"""v_and_b32 v{VL+2}, 15, v0
        v_lshlrev_b32 v{VL+2}, 3, v{VL+2}
        s_sub_u32 s{S_PO}, 15, s{S_J}
        s_lshl_b32 s{S_PO}, s{S_PO}, 3
        s_and_b32 s{S_PT}, s{S_W}, 1
        s_add_u32 s{S_PO}, s{S_PO}, s{S_PT}
        s_lshl_b32 s{S_PO}, s{S_PO}, 7
        s_add_u32 s{S_PO}, s{S_PO}, {hex(G_BASE)}
        buffer_load_dword v{VGL}, v{VL+2}, s[{SRD_WS}:{SRD_WS+3}], s{S_PO} offen offset:512 sc1
        buffer_load_dword v{VGL+1}, v{VL+2}, s[{SRD_WS}:{SRD_WS+3}], s{S_PO} offen offset:768 sc1""")

def switch(j0):
    p0 = Per(0, mask=0, dma=(0, 1), dph=2) if not j0 else Per(0, mask=0, pv=[], dma=(0, 1), dph=2, early=True)
    pers = [p0,
            Per(1, qk=[1, 2, 3], mask=1, dph=3, pad=8, first=j0, kregs=A_K2 if j0 else A_K),
            Per(2, qk=[2, 3], mask=2, pv=[1, 2, 3], dph=0, pad=16),
            Per(3, qk=[3], mask=3, pv=[2, 3], dph=1, kph=2, pad=32),
            Per(2, pv=[3], vph=0, pad=18),
            Per(3, first=True, amajor=[0, 1, 2, 3], pad=26)]
    def extra(info):
        ep = []
        for a in range(4): ep += epi_own(a, info[a + 1]["odone"][a] + 8)
        q = L(f"v_add_u32 v{VX+1}, {STASH}, v{VX}")
        for a in range(4):
            for ds in range(4):
                q.append(I(f"ds_read_b128 {r4('v', q_reg(a, ds))}, v{VX+1} offset:{(4 * a + ds) * 1024}", earliest=max(info[a]["qkend"], info[2]["mid"])))
        sw = [I(f"v_add_u32 v{VK}, {RING_B - RING_A}, v{VK}", deps=[(info[2]["kreads"][-1], 0)]),
              I(f"v_add_u32 v{VV}, {RING_B - RING_A}, v{VV}", deps=[(info[4]["vreads"][-1], 0)])]
        info[3]["kreads"][0].deps.append((sw[0], 1)); info[5]["vreads"][0].deps.append((sw[1], 1))
        ng = []
        for a in range(4):
            for r in range(4): ng.append(I(f"v_mov_b32 v{NEGM + 4 * a + r}, v{VNL + a}", earliest=info[a]["qkend"] + 2))
        for r in range(8): ng.append(I(f"v_add_f32 v{MK + 8 + r}, v{MK + r}, v{NEGM}"))
        xs = [sw, q, ng, ep, gl_load() + L(f"s_sub_u32 s{S_CNT}, 6, s{S_J}")]
        if j0: xs.insert(0, ones()); info[3]["barwait"].waitfor.append(HL[0]); xs.append(p4_setup())
        return xs
    pre = []
    return seq("switch0" if j0 else "switch", pers, 0, carry_in=not j0, extra=extra, tail_ok=True)

def final(j7):
    pers = [Per(0, mask=0, dma=(1, 1)),
            Per(1, qk=[1, 2, 3], mask=1, dma=(1, 0), pad=0 if j7 else 8),
            Per(2, qk=[2, 3], mask=2, pv=[1, 2, 3], dma=(0, 0), pad=0 if j7 else 16),
            Per(3, qk=[3], mask=3, pv=[2, 3], dma=(0, 0), kread=False, pad=0 if j7 else 32),
            Per(0, qk=[], pv=[3], dma=(0, 0), kread=False, bar=False, vregs=A_K)]
    def extra(info):
        if j7:
            ep = []
            for a in range(4): ep += epi_own(a, info[a + 1]["odone"][a] + 8)
            pp = p4_pro("h7", 0, info[2]["bar"], info[3]["end"], info[4]["end"])
            w = wdma(1); w[0].deps = [(info[3]["bar"], 0)]
            return [pp + w, ep]
        x = L(f"v_add_u32 v{VX+1}, {STASH}, v{VX}")
        for a in range(2):
            e = info[a + 1]["odone"][a] + 8
            for db in range(8): x.append(I(f"ds_write_b128 v{VX+1}, {r4('a', a_o(db, a))} offset:{(8 * a + db) * 1024}", earliest=e))
            x.append(I(f"ds_write_b32 v{VLS}, a{A_L + 4 * a} offset:{4 * a}", earliest=e, deps=[(info[1]["bar"], 0)]))
        info[3]["barwait"].waitfor.append(x[-1]); info[3]["barwait"].deps.append((x[-1], 2))
        m = []
        for a in (2, 3):
            e = max(info[a + 1]["odone"][a] + 8, info[3]["qkend"] + 1)
            for db in range(8):
                for r in range(4): m.append(I(f"v_accvgpr_read_b32 v{mreg(a - 2, db) + r}, a{a_o(db, a) + r}", earliest=e))
            m.append(I(f"v_accvgpr_read_b32 v{VL + 2 * (a - 2)}, a{A_L + 4 * a}", earliest=e))
        return [x, p4_pro("hS", info[1]["start"], info[3]["bar"], info[3]["end"], info[4]["end"]), m]
    return seq("final7" if j7 else "final", pers, 0, carry_out=False, extra=extra, tail_ok=True)

def mreg(a2, db): return U(Q_UNITS[2 * a2 + (db >> 2)]) + 4 * (db & 3)
def nreg(a2, db): return SB[a2][db >> 2] + 4 * (db & 3)
VL2 = VT + 8

def finalize(isL):
    o = []
    for a2 in range(2):
        a = a2 if isL else a2 + 2
        vl = VL + 2 * a2
        sc = VT + 2 * a2
        o += L(f"v_add_f32 v{sc}, v{vl}, v{VL2 + a2}") + scale_ops(sc, VC + 2 * a if isL else VGL + a2) + L(f"v_mov_b32 v{sc+1}, v{sc}")
        for ds in range(4):
            for k in range(2):
                m, n = mreg(a2, 2 * ds + k), nreg(a2, 2 * ds + k)
                if isL:
                    for r in range(4): o += L(f"v_accvgpr_read_b32 v{n+r}, a{a_o(2*ds+k, a)+r}")
                for r in (0, 2): o += L(f"v_pk_add_f32 {r2('v', m+r)}, {r2('v', m+r)}, {r2('v', n+r)}")
                for r in (0, 2): o += L(f"v_pk_mul_f32 {r2('v', m+r)}, {r2('v', m+r)}, {r2('v', sc)}")
            m0, m1 = mreg(a2, 2 * ds), mreg(a2, 2 * ds + 1)
            o += L(f"v_cvt_pk_bf16_f32 v{m0}, v{m0}, v{m0+1}", f"v_cvt_pk_bf16_f32 v{m0+1}, v{m0+2}, v{m0+3}",
                   f"v_cvt_pk_bf16_f32 v{m0+2}, v{m1}, v{m1+1}", f"v_cvt_pk_bf16_f32 v{m0+3}, v{m1+2}, v{m1+3}")
            o += store_ctx(m0, S_ACT if isL else S_ACT2, ds, a)
    return o

def ltail():
    pers = [Per(0, dma=(0, 0)), Per(1, dma=(0, 0), kread=False),
            Per(2, qk=[], amajor=[2, 3, 0, 1], dma=(0, 0), kread=False, bar=False, vregs=A_K)]
    def extra(info):
        rd = L(f"v_add_u32 v{VX+1}, {STASH}, v{VX}")
        for a2 in range(2):
            for db in range(8): rd.append(I(f"ds_read_b128 {r4('v', mreg(a2, db))}, v{VX+1} offset:{(8 * a2 + db) * 1024}", earliest=info[1]["mid"] + 18))
            rd.append(I(f"ds_read_b32 v{VL2 + a2}, v{VLS} offset:{4 * a2}"))
        rd[1].deps = [(info[1]["bar"], 0)]
        x = rd + L(f"v_add_u32 v{VX+1}, {RING_A}, v{VX}")
        for a in (2, 3):
            e = info[2]["odone"][a] + 5
            x.append(I(f"ds_write_b32 v{VLS}, a{A_L + 4 * a} offset:{4 * a}", earliest=e))
            for db in range(8): x.append(I(f"ds_write_b128 v{VX+1}, {r4('a', a_o(db, a))} offset:{(8 * (a - 2) + db) * 1024}", earliest=e - 7 + db))
        x += [WAITLGKM(x[-1]), I("s_barrier")]
        return [x, p4_pro("hL", 0, info[1]["bar"], info[1]["end"], info[2]["end"])]
    o = seq("ltail", pers, 0, carry_out=False, extra=extra, tail_ok=True)
    o += wdma(1) + L(f"v_accvgpr_read_b32 v{VL}, a{A_L}", f"v_accvgpr_read_b32 v{VL+2}, a{A_L+4}") + finalize(True)
    return fix_hazards(o)

def smerge():
    o = L("s_barrier", f"v_add_u32 v{VX+1}, {RING_A}, v{VX}")
    for a2 in range(2):
        o += L(f"ds_read_b32 v{VL2 + a2}, v{VLS} offset:{4 * (a2 + 2)}")
        for db in range(8): o += L(f"ds_read_b128 {r4('v', nreg(a2, db))}, v{VX+1} offset:{(8 * a2 + db) * 1024}")
    return fix_hazards(o + wdma(1) + finalize(False))

def prepass():
    M = FR; T = FR + 4; CI = SB[1]; D = SB[0]
    o = L(f"""Lpre:
      s_waitcnt vmcnt(0) lgkmcnt(0)
      s_nop 7
      s_mul_i32 s{S_T0}, s{S_H}, {hex(KV_HEAD)}
      s_add_u32 s{S_T0}, s{S_T0}, {hex(KV_BASE)}
      s_lshl_b32 s{S_T1}, s{S_BLK}, 2
      s_sub_u32 s{S_T1}, 0, s{S_T1}
      v_mov_b32 v{T+1}, 0xff800000""")
    o += L(*[f"v_mov_b32 v{M+a}, v{T+1}" for a in range(4)])
    o += L(*[f"v_mov_b32 v{CI[k]+r}, 0" for k in range(2) for r in range(16)])
    o += L("Lpre_loop:")
    for f in range(8):
        o += L(f"buffer_load_dwordx4 {r4('a', A_V + 4 * f)}, v{VST2 if f >= 4 else VST}, s[{SRD_WS}:{SRD_WS+3}], s{S_T0} offen offset:{(f & 3) * 1024} sc1")
    for a in range(4):
        o += L(f"s_cmp_eq_i32 s{S_T1}, {a}", f"s_cbranch_scc0 Lpre_{a}")
        for k in range(2):
            for r in range(4):
                o += L(f"v_mov_b32 v{CI[k] + 4 * a + r}, v{MK + 4 * k + r}")
                if a: o += L(f"v_mov_b32 v{CI[k] + 4 * a - 4 + r}, v{T+1}")
        o += L(f"Lpre_{a}:")
    o += L("s_waitcnt vmcnt(0)", "s_nop 1")
    for k in range(2):
        for ds in range(4):
            for a in range(4):
                d = r4("v", D[k] + 4 * a)
                o += L(f"{MF} {d}, {r4('a', A_V + 16 * k + 4 * ds)}, {r4('v', q_reg(a, ds))}, {d if ds else r4('v', CI[k] + 4 * a)}")
    o += L("s_nop 7", "s_nop 7")
    for k in range(2):
        for a in range(4):
            for r in (0, 2): o += L(f"v_max3_f32 v{M+a}, v{D[k] + 4 * a + r}, v{D[k] + 4 * a + r + 1}, v{M+a}")
    o += L(f"""s_add_u32 s{S_T0}, s{S_T0}, 16384
      s_add_i32 s{S_T1}, s{S_T1}, 1
      s_cmp_lt_i32 s{S_T1}, 4
      s_cbranch_scc1 Lpre_loop""")
    for a in range(4):
        for sw in ("16", "32"):
            o += L(f"v_mov_b32 v{T}, v{M+a}", f"v_permlane{sw}_swap_b32 v{T}, v{M+a}", "s_nop 1", f"v_max_f32 v{M+a}, v{M+a}, v{T}")
        o += L(f"v_sub_f32 v{M+a}, 0, v{M+a}")
        o += L(*[f"v_mov_b32 v{NEGM + 4 * a + r}, v{M+a}" for r in range(4)])
    o += L(*[f"v_add_f32 v{MK + 8 + r}, v{MK + r}, v{M}" for r in range(8)])
    o += L(f"""s_lshr_b32 s{S_T0}, s{S_W}, 1
      s_lshl_b32 s{S_T0}, s{S_T0}, 10
      v_add_u32 v{VX+1}, {STASH}, v{VX}
      v_add_u32 v{T}, s{S_T0}, v{VX+1}
      ds_write_b128 v{T}, {r4('v', M)}
      s_waitcnt lgkmcnt(0)
      s_barrier
      ds_read_b128 {r4('v', VNL)}, v{VX+1}
      s_waitcnt lgkmcnt(0)
      s_branch Lpre_back""")
    return fix_hazards(o)

def k12(name, p4):
    K = Kernel(name, 256, 163840)
    pro, main = front(front_tail)
    K.add("pro", stamp(0) + entry("Lexit1") + pro)
    K.add("front", main + stamp(10) + stamp(1, 2) + stamp(1, 4) + L(f"s_cmp_lg_u32 s{S_SLOW}, 0", "s_cbranch_scc1 Lpre", "Lpre_back:", f"s_cmp_ge_u32 s{S_W}, 2", "s_cbranch_scc1 LS"))
    K.add("headL", head(True))
    K.add("loopD", loop(True, "LloopD"))
    K.add("afterD", stamp(9, 4) + L(f"s_cmp_eq_u32 s{S_J}, 7", "s_cbranch_scc1 Lfinal7", f"s_cmp_ge_u32 s{S_W}, 2", "s_cbranch_scc1 Lfinal"))
    K.add("ltail", stamp_bars(ltail(), [2, 3, 4], 2) + L("s_branch Ldone"))
    K.add("S0", L("LS:", f"s_cmp_eq_u32 s{S_J}, 0", "s_cbranch_scc1 Lswitch0"))
    K.add("headS", head(False) + L(f"s_cmp_eq_u32 s{S_CNT}, 0", "s_cbranch_scc1 Lswitch"))
    K.add("loopN", loop(False, "LloopN"))
    K.add("afterN", L(f"s_cmp_eq_u32 s{S_J}, 7", "s_cbranch_scc1 Lfinal7"))
    K.add("switch", L("Lswitch:") + switch(False) + L(f"s_cmp_lg_u32 s{S_CNT}, 0", "s_cbranch_scc1 LloopD"))
    K.add("final", L("Lfinal:") + stamp_bars(final(False) + smerge(), [2, 3, 4], 2) + L("s_branch Ldone"))
    K.add("switch0", L("Lswitch0:") + switch(True) + L("s_branch LloopD"))
    K.add("final7", L("Lfinal7:") + stamp_bars(final(True), [2, 3, 4], 2))
    K.add("bar7", L(f"s_cmp_lt_u32 s{S_W}, 2", "s_cbranch_scc1 Ldone", "s_barrier", "s_barrier", "s_barrier", "s_barrier", "s_branch Ldone"))
    K.add("slow", [i for b in slow_blocks for i in b] + L("Lend1:", "Lexit1:", "s_endpgm", "Lrestart1:", "s_branch Lstart") + prepass())
    vs = [n for n in (5, 6, 7, 9, 8, 10, 11, 12) if NLO <= n <= NHI]
    for n in vs:
        del slow_blocks[:]
        a, b, c = p4(n)
        if n == 9:
            K.add("restart", L("Lrestart:", "s_waitcnt vmcnt(0) lgkmcnt(0)", "s_barrier", f"s_movk_i32 s{S_SLOW}, 256", "s_branch Lrestart1"))
            o = L("Ldone:") + stamp(11) + stamp(5, 2) + stamp(10, 4) + stamp(11, 4) + stamp(12, 4) + stamp(13, 4)
            for m in (8, 10, 7, 11, 6, 5, 12):
                if m in vs: o += L(f"s_cmp_eq_u32 s{S_N}, {m - NLO}", f"s_cbranch_scc1 Lp4_{m}")
            K.add("done", o)
        K.add(f"p4_{n}", L(f"Lp4_{n}:") + a + stamp_bars(b, list(range(6, 14)), 2) + c + prof_out(0, 15, z=n) + L(f"Lexit_{n}:", "s_endpgm"))
        K.add(f"slow_{n}", [i for b in slow_blocks for i in b] + L(f"Lp4e_{n}:"))
    K.add("end", L("Lend:", "s_endpgm"))
    pf = ["pro", "front"]
    paths = [pf + ["headL", "loopD", "loopD", "loopD", "afterD", "ltail", "done"],
               pf + ["headL", "loopD", "loopD", "afterD", "final7", "bar7", "done"],
               pf + ["S0", "headS", "switch", "loopD", "loopD", "afterD", "final", "done"],
               pf + ["S0", "headS", "loopN", "loopN", "afterN", "switch", "final", "done"],
               pf + ["S0", "headS", "loopN", "afterN", "switch", "loopD", "afterD", "final", "done"],
               pf + ["S0", "headS", "loopN", "loopN", "afterN", "final7", "bar7", "done"],
               pf + ["S0", "switch0", "loopD", "loopD", "afterD", "final", "done"]]
    K.paths = [(p if n == 9 else p[2:]) + [f"p4_{n}"] for n in vs for p in paths]
    K.finish()
    return K
```

```python
from attn import *

def p4(nu):
    KH = 2 * nu; KT = KH + 16; STG = [4] * (KH // 4) + [2] * (nu & 1); SH = len(STG); STG += [4] * 4; Z = f"_{nu}"
    DA = int(os.environ.get("DA", "8")); DC = int(os.environ.get("DC", "6")); CSP = int(os.environ.get("CSP", "24"))
    st_of = [s for s, n in enumerate(STG) for _ in range(n)]; sub_of = [q for n in STG for q in range(n)]
    spine = []; frags = []; done = {}
    NSEG = int(os.environ.get("NSEG", "8")); K0 = KT - NSEG
    order = [(ks, mt) for ks in range(0, K0, 2) for mt in range(9)] + [(ks, mt) for mt in range(9) for ks in range(K0, KT, 2)]
    use = {}; CP = "p" in CH
    if not CP: order = [(ks, mt) for ks in range(K0) for mt in range(9)] + [(ks, mt) for mt in range(9) for ks in range(K0, KT)]
    for ks0, mt in order:
        f0 = len(frags)
        for a in range(4):
            for k in range(2 if CP else 1):
                ks = ks0 + k
                w = r4("v", WF + 4 * ((f0 + k) % NF)); use.setdefault(ks, len(spine) - k)
                d = r4("v", acc(mt, a))
                spine.append(I(f"{MF} {d}, {w}, {bact(ks, a)}, {d if ks else '0'}")); done[(mt, a)] = len(spine) - 1
        frags += [(ks0, mt, len(spine) - 2), (ks0 + 1, mt, len(spine) + 2)] if CP else [(ks0, mt, len(spine) - 1)]
    N = len(spine)
    ds = []; pro_ds = []; bars = {}; bars_w = {}; barpos = {0: 0}; shift = 0
    for f, (ks, mt, b) in enumerate(frags):
        s = st_of[ks]
        e = frags[f - NF][2] if f >= NF else None
        if mt == 0 and sub_of[ks] == 0:
            w = [WAITG("w", s), I("s_barrier")]
            if f:
                w.insert(0, WAITLGKM(ds[-1])); barpos[s] = e + 4
                for x in w: x.earliest = e + 3; x.deadline = e + 4
                ds += w
            else: pro_ds += w
            bars[s] = w[-1]; bars_w[s] = w[0]
        for jj in range(2):
            x = I(f"ds_read_b64_tr_b16 {r2('v', WF + 4 * (f % NF) + 2 * jj)}, v{VA + s % 4} offset:{sub_of[ks] * 9216 + jj * 4608 + mt * 32}")
            if e is None: pro_ds.append(x)
            else:
                x.earliest = e + 2 * jj; x.deadline = e + (6 if CP else 10) + 2 * jj; ds.append(x)
    al = {ks: aload(ks, KH) for ks in range(6, KT)}
    vm = []
    for s in range(2, len(STG)):
        o = wdma(s, SH)
        t0 = barpos[s - 3] + 1 if s > 3 else 60 * (s - 2)
        for k, x in enumerate(o): x.earliest = t0 + 5 * k
        if s > 3: o[0].deps = [(bars[s - 3], 0)]
        vm += o
    av = []; aw = []
    pa, pb = poll2("ctx" + Z, VF + 2, 4, 4, 36 * (KH - DC) - 100, 36 * (KH - DC) - 4)
    for ks in range(6, KT):
        t0 = max(36 * (ks - DA), 24 * (ks - 6)) if ks < KH else 36 * (KH - DC) + CSP * (ks - KH)
        for k, x in enumerate(al[ks]): x.earliest = t0 + 6 * k
        if ks == KH: al[ks][0].deps = [(pb, 0)]
        av += al[ks]
    for ks in range(3, KT, 2) if CP else range(1, KT):
        w = WAITG("a", ks); w.earliest = use[ks] - 4; w.deadline = use[ks] - 1; aw.append(w)
    for x in vm + av: x.maxlag = 6
    bars_w[1].waitfor += CTX_LAST
    misc = [Bundle(L(f"v_cmp_ne_u32 vcc, 0, v{VF}", "s_nop 4", "s_cbranch_vccnz Lrestart"), earliest=8)]
    misc += [Bundle(L(f"s_cmp_lg_u32 s{S_W}, 0", f"s_cselect_b32 s{S_SIG}, 256, 0"))]
    misc += sig_group(4) + [Bundle(flag_addr(VF, 11, 4, None))] + [sig_store(VF)]
    misc[-1].deps = [(bars[1], 0)]
    misc += L(f"""s_lshr_b32 s{S_RB}, s2, 3
      s_lshl_b32 s{S_RB}, s{S_RB}, 2
      s_bfe_u32 s{S_PT}, s{S_H}, 0x20001
      s_add_u32 s{S_RB}, s{S_RB}, s{S_PT}
      s_lshl_b32 s{S_RB}, s{S_RB}, 4
      s_and_b32 s{S_PT}, s{S_H}, 1
      s_add_u32 s{S_RB}, s{S_RB}, s{S_PT}
      s_mul_i32 s{S_RB}, s{S_RB}, 9216
      s_add_u32 s{S_RB}, s{S_RB}, {hex(PART_BASE)}
      s_and_b32 s{S_PT}, s{S_H}, 7
      s_movk_i32 s{S_P0}, 8192
      s_movk_i32 s{S_P0+1}, 16384""")
    def pstore(b, mt, ap):
        n = 9 * ap + mt
        return I(f"buffer_store_dwordx4 {r4('v', b)}, v{VST2 if n & 4 else VST}, s[{SRD_PZ}:{SRD_PZ+3}], {f's{S_P0 + (n >> 3) - 1}' if n >> 3 else '0'} offen offset:{(n & 3) * 1024} sc1")
    misc += L(f"""s_and_b32 s{S_PO}, s2, 0xf8
      s_lshl_b32 s{S_OB}, s{S_W}, 1
      s_add_u32 s{S_PO}, s{S_PO}, s{S_OB}
      s_lshl_b32 s{S_PO}, s{S_PO}, 6
      s_add_u32 s{S_PO}, s{S_PO}, s{S_PT}
      s_lshl_b32 s{S_PO}, s{S_PO}, 2
      s_add_u32 s{S_PO}, s{S_PO}, {hex(INBOX + 32)}""") + [Bundle(flag_addr(VF, 8, 2, None))]
    misc += L(f"s_sub_u32 s{S_OB}, 15, s{S_J}") + [Bundle(L(f"s_cmp_lt_u32 s{S_PT}, 4", f"s_cselect_b32 s{S_OB}, s{S_OB}, s{S_J}"))]
    misc += L(f"""s_lshl_b32 s{S_OB}, s{S_OB}, 3
      s_bfe_u32 s{S_CNT}, s{S_PT}, 0x10001
      s_add_u32 s{S_OB}, s{S_OB}, s{S_CNT}
      s_and_b32 s{S_CNT}, s{S_PT}, 1
      s_lshl_b32 s{S_CNT}, s{S_CNT}, 2
      s_add_u32 s{S_OB}, s{S_OB}, s{S_CNT}
      s_mul_i32 s{S_OB}, s{S_OB}, {16 * 1152}
      s_lshr_b32 s{S_CNT}, s{S_H}, 3
      s_mul_i32 s{S_CNT}, s{S_CNT}, 288
      s_add_u32 s{S_OB}, s{S_OB}, s{S_CNT}""")
    R0, R1, O0, O1, T = 28, 29, 30, 31, 36
    misc += L(f"""s_lshl_b32 s{S_CNT}, s{S_W}, 11
      v_add_u32 v{R0}, s{S_CNT}, v{VST}
      s_lshl_b32 s{S_CNT}, s{S_W}, 8
      s_add_u32 s{S_CNT}, s{S_CNT}, 8192
      v_lshl_add_u32 v{R1}, v0, 2, s{S_CNT}
      v_and_b32 v{T}, 15, v0
      v_mul_u32_u24 v{T}, 1152, v{T}
      v_lshrrev_b32 v{T+1}, 4, v0
      v_lshl_add_u32 v{T}, v{T+1}, 3, v{T}
      s_lshl_b32 s{S_CNT}, s{S_W}, 6
      v_add_u32 v{O0}, s{S_CNT}, v{T}
      v_lshrrev_b32 v{T}, 2, v0
      v_bfe_u32 v{T+1}, v0, 1, 1
      v_lshl_add_u32 v{T}, v{T+1}, 5, v{T}
      v_mul_u32_u24 v{T}, 1152, v{T}
      v_and_b32 v{T+1}, 1, v0
      v_lshl_add_u32 v{T}, v{T+1}, 2, v{T}
      s_lshl_b32 s{S_CNT}, s{S_W}, 3
      s_add_u32 s{S_CNT}, s{S_CNT}, 256
      v_add_u32 v{O1}, s{S_CNT}, v{T}
      s_movk_i32 s{S_MASK}, 255
      s_add_u32 s{S_CNT}, s{S_OB}, {32 * 1152}""")
    A0 = 40
    misc += L(*[f"v_mov_b32 v{A0+d}, 0" for d in range(18)])
    FT = int(os.environ.get("FT", "80"))
    misc += [WAITVM(*PZ), sig_store(VF)]; misc[-2].deadline = N - 424; misc[-1].earliest = N - FT; misc[-1].deadline = N - FT + 6
    R0T = int(os.environ.get("R0T", "0")); R0S = int(os.environ.get("R0S", "0"))
    pr, prb = poll2("red" + Z, VF + 2, 8, 8, N - R0T - 70, N - R0T - 4)
    pol = pa + [pb] + pr + [prb]
    def rreg(p, d): return (ACC + 8 * p + d) if d < 8 else VZ + p
    def rload(p):
        return L(f"""s_add_u32 s{S_AT}, s{S_RB}, {18432 * p}
          buffer_load_dwordx4 {r4('v', rreg(p, 0))}, v{R0}, s[{SRD_WS}:{SRD_WS+3}], s{S_AT} offen sc1
          buffer_load_dwordx4 {r4('v', rreg(p, 4))}, v{R0}, s[{SRD_WS}:{SRD_WS+3}], s{S_AT} offen offset:1024 sc1
          buffer_load_dword v{rreg(p, 8)}, v{R1}, s[{SRD_WS}:{SRD_WS+3}], s{S_AT} offen sc1""")
    epi = []; est = []
    for mt in range(9):
        for ap in range(2):
            b0, b1 = acc(mt, 2 * ap), acc(mt, 2 * ap + 1)
            o = L(f"v_cvt_pk_bf16_f32 v{b0}, v{b0}, v{b0+1}", f"v_cvt_pk_bf16_f32 v{b0+1}, v{b0+2}, v{b0+3}",
                  f"v_cvt_pk_bf16_f32 v{b0+2}, v{b1}, v{b1+1}", f"v_cvt_pk_bf16_f32 v{b0+3}, v{b1+2}, v{b1+3}")
            o += L(*[f"v_min_u32 v{b0+r}, -2, v{b0+r}" for r in range(4)]) + [pstore(b0, mt, ap)]
            for x in o: x.earliest = done[(mt, 2 * ap + 1)] + 5
            o[-1].maxlag = 2
            epi += o; est.append(o[-1])
    r0 = []
    for p in range(8):
        o = rload(p)
        for k, x in enumerate(o): x.earliest = max(N - R0T + R0S * (3 * p + k), est[p].earliest); x.maxlag = 2
        o[1].deps = [(est[p], 2)]
        r0 += o
    r0[0].deps = [(prb, 0), (av[-1], 0)]
    if R0T == 0:
        prb.sub[0:0] = (stamp(14) if PROF != 3 else stamp(1, 3)) + [WAITVM(pr[-1])]; prb.sub += stamp(2, 3); prb.deps = [(est[-1], 0)]; prb.maxlag = 0
    ct = caddr(249, "Lp4" + Z, "Lp4e" + Z) + [ctouch(249, "a248", earliest=t) for t in (20, N // 4, N // 2, N * 7 // 10)] if "p" in CT else []
    main = fix_hazards(schedule(spine, [ds, aw, vm, av, pol, misc, epi, r0, ct], verbose="p4" + Z, nprio=2))
    if PROF:
        mf = [i for i, x in enumerate(main) if x.kind == "mfma"]
        main[mf[36 * KH]:mf[36 * KH]] = stamp(13)
    red = (stamp(14) if R0T else []) + stamp(3, 3) + (L(*[f"s_mov_b32 s{S_PROF+2*k}, 1" for k in range(4, 14)]) if PROF == 3 else []) + L(f"s_load_dwordx2 s[{SRD_OUT}:{SRD_OUT+1}], s[0:1], 80") + srd(SRD_OUT, SRD_OUT, 2048 * 1152) + L(f"Lchk{Z}:")
    rt = L(f"Lretry{Z}:")
    if PROF == 3:
        rt += L(f"s_add_u32 s{S_PROF+26}, s{S_PROF+26}, 1")
        for k in range(4, 12): rt += L(f"s_cmp_eq_u32 s{S_PROF+26}, {k-2}", f"s_cbranch_scc0 Lps{k}{Z}") + stamp(k, 3) + L(f"Lps{k}{Z}:")
    for p in range(8):
        r = [rreg(p, d) for d in range(9)]
        red += L(f"""s_bitcmp1_b32 s{S_MASK}, {p}
          s_cbranch_scc0 Lskip{p}{Z}
          v_max3_u32 v{T}, v{r[0]}, v{r[1]}, v{r[2]}
          v_max3_u32 v{T}, v{T}, v{r[3]}, v{r[4]}
          v_max3_u32 v{T}, v{T}, v{r[5]}, v{r[6]}
          v_max3_u32 v{T}, v{T}, v{r[7]}, v{r[8]}
          v_cmp_eq_u32 vcc, -1, v{T}
          s_cbranch_vccnz Lskip{p}{Z}""")
        for d in range(9):
            red += L(f"v_lshlrev_b32 v{T}, 16, v{r[d]}", f"v_and_b32 v{T+1}, 0xffff0000, v{r[d]}",
                     f"v_pk_add_f32 {r2('v', A0+2*d)}, {r2('v', A0+2*d)}, {r2('v', T)}")
        red += L(f"s_bitset0_b32 s{S_MASK}, {p}", f"Lskip{p}{Z}:")
        rt += L(f"s_bitcmp1_b32 s{S_MASK}, {p}", f"s_cbranch_scc0 Lrskip{p}{Z}") + rload(p) + L(f"Lrskip{p}{Z}:")
    slow_blocks.append(rt + L("s_waitcnt vmcnt(0)", f"s_branch Lchk{Z}"))
    red += L(f"s_cmp_lg_u32 s{S_MASK}, 0", f"s_cbranch_scc1 Lretry{Z}") + (stamp(14) if PROF == 3 else [])
    D0 = 64
    for d in range(9): red += L(f"v_cvt_pk_bf16_f32 v{D0+d}, v{A0+2*d}, v{A0+2*d+1}")
    for t in range(2):
        for a in range(2):
            red += L(f"buffer_store_dwordx2 {r2('v', D0 + 4 * t + 2 * a)}, v{O0}, s[{SRD_OUT}:{SRD_OUT+3}], s{S_CNT if a else S_OB} offen offset:{32 * t}")
    red += L(f"buffer_store_dword v{D0+8}, v{O1}, s[{SRD_OUT}:{SRD_OUT+3}], s{S_OB} offen")
    ck = L(f"""v_cmp_lt_u32 vcc, 0x40000000, v{VBAD}
      s_lshr_b32 s{S_PT}, s{S_SLOW}, 8
      s_lshl_b32 s{S_PO}, s{S_W}, 2
      v_mov_b32 v{VF+1}, s{S_PO}
      s_cmp_lg_u64 vcc, 0
      s_cselect_b32 s{S_PO}, 1, 0
      s_andn2_b32 s{S_PO}, s{S_PO}, s{S_PT}
      v_mov_b32 v{VF}, s{S_PO}
      ds_write_b32 v{VF+1}, v{VF}
      v_and_b32 v{VF+1}, 3, v0
      v_lshlrev_b32 v{VF+1}, 2, v{VF+1}
      s_waitcnt lgkmcnt(0)""")
    pro = fix_hazards(ck + pro_ds[:2] + [WAITG("a", 1 if CP else 0)] + pro_ds[2:] + L(f"ds_read_b32 v{VF}, v{VF+1}") + stamp(12))
    return pro, main, fix_hazards(red)

def full(name):
    K = k12(name, p4)
    return K
```

```python
from asm import *
import os

NAME = "gated_mix__compressed_kv_cla__dense_activation_silu__prompt"
MF = "v_mfma_f32_16x16x32_bf16"

KV_BASE = 0x10000
KV_HEAD = 0x104000
ACT_BASE = 0x2100000
ACT_RB = 272 * 8 * 1024
G_BASE = 0x4400000
INBOX = 0x4480000
PART_BASE = 0x4500000
XI_BASE = 0x5800000
WS_SIZE = 0x8000000

LOG2E = 1.4426950408889634
import struct
def f2u(x): return "0x%08x" % struct.unpack("<I", struct.pack("<f", x))[0]

def r4(f, b): return f"{f}[{b}:{b+3}]"
def r2(f, b): return f"{f}[{b}:{b+1}]"

def L(*lines):
    out = []
    for t in lines:
        for x in t.split("\n"):
            x = x.strip()
            if x and not x.startswith(";"): out.append(I(x))
    return out

def srd(d, slot_lo, nbytes):
    o = []
    if d != slot_lo:
        o += L(f"s_mov_b32 s{d}, s{slot_lo}", f"s_mov_b32 s{d+1}, s{slot_lo+1}")
    o += L(f"s_mov_b32 s{d+2}, {hex(nbytes)}", f"s_mov_b32 s{d+3}, 0x00020000")
    return o

class Kernel:
    def __init__(self, name, grid, lds, vgpr=512):
        self.name = name; self.grid = grid; self.lds = lds; self.vgpr = vgpr
        self.blocks = {}; self.order = []; self.paths = []
    def add(self, name, ins):
        assert name not in self.blocks
        self.blocks[name] = Block(name, ins); self.order.append(name)
    def finish(self, verbose=True):
        if not self.paths: self.paths = [list(self.order)]
        insert_waits(self.blocks, self.paths)
        errs = []
        for p in self.paths:
            errs += check_hazards([i for b in p for i in self.blocks[b].ins])
        errs = sorted(set(errs))
        if errs: raise Exception("hazards:\n" + "\n".join(errs[:30]))
        if verbose:
            if os.environ.get("AGES"):
                for p in self.paths: print("  young vm waits:", wait_ages([i for b in p for i in self.blocks[b].ins]))
            for b in self.order:
                ins = self.blocks[b].ins
                print(f"  {b}: {len(ins)} ins, mfma={sum(1 for i in ins if i.kind=='mfma')}, est={est_cycles(ins)} cyc", end="")
                if len(ins) < 3000:
                    parts = [[]]
                    for i in ins:
                        parts[-1].append(i)
                        if i.mn == "s_barrier": parts.append([])
                    print("  intervals:", [est_cycles(x) for x in parts], end="")
                print()
    def text(self):
        o = [f".globl {self.name}", ".p2align 8", f".type {self.name},@function", f"{self.name}:"]
        for b in self.order:
            o.append(f"; ---- {b}")
            for i in self.blocks[b].ins:
                o.append(i.text if i.kind == "label" else "  " + i.text)
        return "\n".join(o)
    def desc(self):
        acc = 256 if self.vgpr > 256 else (self.vgpr + 3) // 4 * 4
        return f""".p2align 6
.amdhsa_kernel {self.name}
  .amdhsa_next_free_vgpr {self.vgpr}
  .amdhsa_next_free_sgpr 102
  .amdhsa_accum_offset {acc}
  .amdhsa_group_segment_fixed_size 0
  .amdhsa_kernarg_size 104
  .amdhsa_user_sgpr_count 2
  .amdhsa_user_sgpr_kernarg_segment_ptr 1
  .amdhsa_system_sgpr_workgroup_id_x 1
.end_amdhsa_kernel"""

def emit(kernels, path):
    hdr = [l.rstrip("\n") for l in open(f"cdna_kernels/{NAME}.s.ref") if l.startswith(";") and "@launch" not in l]
    o = list(hdr)
    if len(kernels) == 1 and kernels[0].name == NAME + "_kernel":
        k = kernels[0]
        o.append(f"; @launch grid=({k.grid},1,1) block=(256,1,1) lds={k.lds}")
    else:
        for k in kernels: o.append(f"; @launch kernel={k.name} grid=({k.grid},1,1) block=(256,1,1) lds={k.lds}")
    o += ['.amdgcn_target "amdgcn-amd-amdhsa--gfx950"', ".text"]
    body = "\n".join(k.text() for k in kernels)
    if not os.environ.get("NOMAC"):
        used = set()
        def mf(m):
            nm = "M" + m.group(1) + m.group(3) + m.group(5); used.add(nm)
            return f" {nm} {m.group(2)},{m.group(4)},{m.group(6)}"
        body = re.sub(r"  v_mfma_f32_16x16x32_bf16 ([va])\[(\d+):\d+\], ([va])\[(\d+):\d+\], ([va])\[(\d+):\d+\], \1\[\2:\d+\]", mf, body)
        body = re.sub(r"  ds_read_b64_tr_b16 v\[(\d+):\d+\], v(\d+) offset:(\d+)", r" TR \1,\2,\3", body)
        body = re.sub(r"  s_waitcnt lgkmcnt\((\d+)\)$", r" WL \1", body, flags=re.M)
        for nm in sorted(used):
            d, a, b = nm[1:]
            o += [f".macro {nm} d, a, b", f"  v_mfma_f32_16x16x32_bf16 {d}[\\d:\\d+3], {a}[\\a:\\a+3], {b}[\\b:\\b+3], {d}[\\d:\\d+3]", ".endm"]
        o += [".macro TR d, a, o", "  ds_read_b64_tr_b16 v[\\d:\\d+1], v[\\a] offset:\\o", ".endm", ".macro WL n", "  s_waitcnt lgkmcnt(\\n)", ".endm"]
    o.append(body)
    o += ['.section .rodata,"a"']
    for k in kernels: o.append(k.desc())
    open(path, "w").write("\n".join(o) + "\n")

import os
PROF = int(os.environ.get("PROF", "0"))
TIMER = "s_memtime" if os.environ.get("CYC") else "s_memrealtime"
PROF_BASE = 0x7000000
S_PROF = 70
def stamp_bars(ins, ks, mode):
    if PROF != mode: return ins
    idx = [i for i, x in enumerate(ins) if x.mn == "s_barrier"][-len(ks):]
    for i, k in reversed(list(zip(idx, ks))): ins[i+1:i+1] = stamp(k, mode)
    return ins
def stamp(k, mode=1):
    if not PROF or (PROF != mode and k not in (0, 14)): return []
    return L(f"{TIMER} s[{S_PROF+2*k}:{S_PROF+2*k+1}]")
def prof_out(kidx, nst, srd_ws=20, s_w=3, z=1):
    if not PROF: return []
    if os.environ.get("PROBE"):
        k, wg, mul = [int(x) for x in os.environ["PROBE"].split(",")]
        return L(f"""s_waitcnt vmcnt(0) lgkmcnt(0)
      {TIMER} s[{S_PROF+2*nst}:{S_PROF+2*nst+1}]
      s_waitcnt lgkmcnt(0)""" + ("""
      buffer_wbl2 sc1
      s_waitcnt vmcnt(0)""" if os.environ.get("WBE") else "") + (f"""
      s_cmp_lg_u32 s2, {wg}
      s_cbranch_scc1 Lexit_{z}""" if wg >= 0 else "") + f"""
      s_cmp_lg_u32 s{s_w}, 0
      s_cbranch_scc1 Lexit_{z}
      s_sub_u32 s24, s{S_PROF+2*k}, s{S_PROF}
      s_mul_i32 s24, s24, {mul}
      s_add_u32 s24, s24, 12000
      Lspin{z}:
      s_memrealtime s[26:27]
      s_waitcnt lgkmcnt(0)
      s_sub_u32 s26, s26, s{S_PROF}
      s_cmp_lt_u32 s26, s24
      s_cbranch_scc1 Lspin{z}""")
    o = L(f"""s_waitcnt vmcnt(0) lgkmcnt(0)
      {TIMER} s[{S_PROF+2*nst}:{S_PROF+2*nst+1}]
      s_lshl_b32 s24, s2, 2
      s_add_u32 s24, s24, s{s_w}
      s_lshl_b32 s24, s24, 6
      s_add_u32 s24, s24, {hex(PROF_BASE + kidx * 65536)}
      s_mov_b64 exec, 1
      v_mov_b32 v1, 0
      s_waitcnt lgkmcnt(0)""")
    for k in range(nst + 1):
        o += L(f"v_mov_b32 v2, s{S_PROF+2*k}", f"buffer_store_dword v2, v1, s[{srd_ws}:{srd_ws+3}], s24 offen offset:{4*k}")
    return o
```

```python
from common import *

S_W, S_H, S_J, S_SLOW = 3, 4, 5, 6
SRD_C, SRD_X, SRD_UK, SRD_UV, SRD_WS, SRD_W1, SRD_WQ, SRD_DBG = 8, 12, 16, 24, 20, 28, 32, 36
SRD_G = 40
SRD_W2, SRD_WO = SRD_X, SRD_G
S_T0, S_T1, S_T2, S_T3 = 44, 45, 46, 47
S_DT = 48
S_ET = 49
S_WM0, S_AM0 = 50, 51
S_CB, S_XB = 52, 53
S_WB, S_W1B, S_W1X = 54, 55, 56
S_KV = 57
S_ACT = 58
S_HK = 59
S_HX = 60
S_KSC, S_NL2E = 61, 62
S_BLK = 63
VTR, VTRX, VDMA, VDMA1, VDMAX, VCD, VXD, VAR, VST, VST2, VC = 1, 5, 7, 8, 9, 10, 12, 14, 16, 17, 20
VC = 20
VG = 24
VPF = 47
VT = 28
FR = 48
U0 = 64
def U(n): return U0 + 16 * n
KSCALE = LOG2E / (128 ** 0.5)
S_LOC = 52
DBG_XC = 160
SC = os.environ.get("SC", ""); SCX = os.environ.get("SCX", " sc1")
DBG_G, DBG_KV = 0, 32

def setup():
    t0, t1, t2, t3 = VT, VT + 1, VT + 2, VT + 3
    o = L(f"""
      s_load_dwordx2 s[{SRD_X}:{SRD_X+1}], s[0:1], 0
      s_load_dwordx2 s[{SRD_G}:{SRD_G+1}], s[0:1], 72
      s_load_dwordx2 s[{SRD_C}:{SRD_C+1}], s[0:1], 8
      s_load_dwordx2 s[{SRD_UK}:{SRD_UK+1}], s[0:1], 24
      s_load_dwordx2 s[{SRD_UV}:{SRD_UV+1}], s[0:1], 32
      s_load_dwordx2 s[{SRD_WS}:{SRD_WS+1}], s[0:1], 96
      s_load_dwordx2 s[{SRD_W1}:{SRD_W1+1}], s[0:1], 56
      s_load_dwordx2 s[{SRD_WQ}:{SRD_WQ+1}], s[0:1], 16
      s_load_dwordx2 s[{SRD_DBG}:{SRD_DBG+1}], s[0:1], 88
      s_and_b32 s{S_H}, s2, 31
      s_lshr_b32 s{S_J}, s2, 5
    """)
    o += L(f"""
      v_lshrrev_b32 v{t0}, 3, v0
      s_lshl_b32 s{S_T0}, s{S_W}, 3
      v_add_u32 v{t0}, s{S_T0}, v{t0}
      v_and_b32 v{t2}, 3, v{t0}
      v_bfe_u32 v{t1}, v{t0}, 2, 2
      v_lshl_add_u32 v{t2}, v{t1}, 3, v{t2}
      v_lshrrev_b32 v{t1}, 4, v{t0}
      v_lshl_add_u32 v{t2}, v{t1}, 2, v{t2}
      v_bfe_u32 v{t0}, v{t0}, 1, 2
      v_bfe_u32 v{t1}, v0, 1, 2
      v_xor_b32 v{t0}, v{t0}, v{t1}
      v_and_b32 v{t1}, 1, v0
      v_lshlrev_b32 v{t1}, 4, v{t1}
      v_lshl_add_u32 v{t3}, v{t0}, 5, v{t1}
      v_lshl_add_u32 v{VDMA}, v{t2}, 13, v{t3}
      v_mul_u32_u24 v{t2}, 9216, v{t2}
      v_add_u32 v{VDMA1}, v{t2}, v{t3}
    """)
    o += L(f"""
      v_lshrrev_b32 v{t0}, 4, v0
      v_and_b32 v{t1}, 7, v0
      v_xor_b32 v{t0}, v{t0}, v{t1}
      v_lshlrev_b32 v{t0}, 4, v{t0}
      v_lshrrev_b32 v{t1}, 3, v0
      v_lshl_add_u32 v{VCD}, v{t1}, 10, v{t0}
      v_xor_b32 v{VCD+1}, 64, v{VCD}
      s_lshl_b32 s{S_WM0}, s{S_W}, 12
      s_mul_i32 s{S_AM0}, s{S_W}, 24576
      s_add_u32 s{S_AM0}, s{S_AM0}, 0x10000
      s_lshl_b32 s{S_T0}, s{S_J}, 2
      s_add_u32 s{S_T0}, s{S_T0}, s{S_W}
      s_lshl_b32 s{S_CB}, s{S_T0}, 16
      s_lshl_b32 s{S_WB}, s{S_H}, 8
    """)
    o += srd(SRD_C, SRD_C, 2048 * 1024) + srd(SRD_UK, SRD_UK, 512 * 8192) + srd(SRD_X, SRD_X, 2048 * 1152) + srd(SRD_G, SRD_G, 1152)
    return o

def setup2():
    t0, t1, t2, t3 = VT, VT + 1, VT + 2, VT + 3
    o = L(f"s_load_dwordx2 s[{SRD_W2}:{SRD_W2+1}], s[0:1], 64", f"s_load_dwordx2 s[{SRD_WO}:{SRD_WO+1}], s[0:1], 40",
          f"s_mov_b32 s{SRD_W2+2}, {4608 * 1152}", f"s_mov_b32 s{SRD_WO+2}, {4096 * 1152}")
    o += srd(SRD_UV, SRD_UV, 512 * 8192) + srd(SRD_WS, SRD_WS, WS_SIZE) + srd(SRD_W1, SRD_W1, 576 * 9216) + srd(SRD_WQ, SRD_WQ, 576 * 8192) + srd(SRD_DBG, SRD_DBG, 256)
    if "h" in os.environ.get("X", ""): o += L(f"s_add_u32 s{SRD_WS}, s{SRD_WS}, 0x8000000", f"s_addc_u32 s{SRD_WS+1}, s{SRD_WS+1}, 0")
    o += L(f"""
      v_bfe_u32 v{t0}, v0, 2, 3
      v_lshlrev_b32 v{t0}, 7, v{t0}
      v_and_b32 v{t1}, 3, v0
      v_lshl_add_u32 v{t0}, v{t1}, 3, v{t0}
      v_lshrrev_b32 v{t1}, 5, v0
      v_lshl_add_u32 v{t0}, v{t1}, 12, v{t0}
      v_bfe_u32 v{t1}, v0, 3, 2
    """)
    for nb in range(4):
        o += L(f"v_xor_b32 v{t2}, {nb}, v{t1}", f"v_lshl_add_u32 v{VTR+nb}, v{t2}, 5, v{t0}")
    o += L(f"""
      v_lshlrev_b32 v{t0}, 3, v0
      v_add_u32 v{VTRX}, 0x20000, v{t0}
      v_lshrrev_b32 v{t0}, 1, v0
      v_and_b32 v{t2}, 3, v{t0}
      v_bfe_u32 v{t1}, v{t0}, 2, 2
      v_lshl_add_u32 v{t2}, v{t1}, 3, v{t2}
      v_lshrrev_b32 v{t1}, 4, v{t0}
      v_lshl_add_u32 v{t2}, v{t1}, 2, v{t2}
      s_lshl_b32 s{S_T0}, s{S_W}, 5
      v_add_u32 v{t2}, s{S_T0}, v{t2}
      v_mul_u32_u24 v{t2}, 9216, v{t2}
      v_and_b32 v{t1}, 1, v0
      v_lshl_add_u32 v{VDMAX}, v{t1}, 4, v{t2}
    """)
    o += L(f"""
      v_and_b32 v{t0}, 15, v0
      v_lshrrev_b32 v{t1}, 1, v{t0}
      v_lshrrev_b32 v{t2}, 4, v0
      v_xor_b32 v{t1}, v{t1}, v{t2}
      v_lshlrev_b32 v{t1}, 4, v{t1}
      v_lshl_add_u32 v{t1}, v{t0}, 7, v{t1}
      v_add_u32 v{VAR}, s{S_AM0}, v{t1}
      v_xor_b32 v{VAR+1}, 64, v{VAR}
      v_lshlrev_b32 v{VST}, 4, v0
      v_add_u32 v{VST2}, 0x1000, v{VST}
    """)
    o += L(f"""
      s_lshl_b32 s{S_T0}, s{S_J}, 2
      s_add_u32 s{S_T0}, s{S_T0}, s{S_W}
      s_lshl_b32 s{S_T0}, s{S_T0}, 15
      s_mul_i32 s{S_T1}, s{S_H}, {hex(KV_HEAD)}
      s_add_u32 s{S_T0}, s{S_T0}, s{S_T1}
      s_add_u32 s{S_KV}, s{S_T0}, {hex(KV_BASE)}
      s_mov_b32 s{S_KSC}, {f2u(KSCALE)}
      s_mov_b32 s{S_NL2E}, {f2u(-LOG2E)}
      s_sub_u32 s{S_T0}, 15, s{S_J}
      s_cmp_lt_u32 s{S_W}, 2
      s_cselect_b32 s{S_BLK}, s{S_T0}, s{S_J}
      s_and_b32 s{S_T1}, s{S_W}, 1
      s_mul_i32 s{S_T0}, s{S_BLK}, 144
      s_add_u32 s{S_T0}, s{S_T0}, s{S_T1}
      s_lshl_b32 s{S_XB}, s{S_T0}, 10
      s_add_u32 s{S_XB}, s{S_XB}, {hex(XI_BASE)}
      s_and_b32 s{S_T0}, s{S_H}, 7
      s_mul_i32 s{S_ACT}, s{S_T0}, {18 * 8192}
      s_mul_i32 s{S_T2}, s{S_BLK}, {hex(ACT_RB)}
      s_add_u32 s{S_ACT}, s{S_ACT}, s{S_T2}
      s_lshl_b32 s{S_T1}, s{S_T1}, 10
      s_add_u32 s{S_ACT}, s{S_ACT}, s{S_T1}
      s_add_u32 s{S_ACT}, s{S_ACT}, {hex(ACT_BASE)}
      s_lshr_b32 s{S_T1}, s{S_H}, 4
      s_bfe_u32 s{S_T2}, s{S_H}, 0x10003
      s_lshl_b32 s{S_T0}, s{S_T0}, 1
      s_add_u32 s{S_T0}, s{S_T0}, s{S_T1}
      s_mul_i32 s{S_T0}, s{S_T0}, 576
      s_lshl_b32 s{S_T3}, s{S_T2}, 8
      s_add_u32 s{S_W1B}, s{S_T0}, s{S_T3}
      s_lshl_b32 s{S_T3}, s{S_T2}, 5
      s_add_u32 s{S_W1X}, s{S_T0}, s{S_T3}
      s_add_u32 s{S_W1X}, s{S_W1X}, 512
      s_mul_i32 s{S_T0}, s{S_T1}, {9 * 8192}
      s_add_u32 s{S_T0}, s{S_T0}, s{S_ACT}
      s_lshl_b32 s{S_T3}, s{S_T2}, 15
      s_add_u32 s{S_HK}, s{S_T0}, s{S_T3}
      s_lshl_b32 s{S_T3}, s{S_T2}, 3
      s_add_u32 s{S_HX}, s{S_T0}, s{S_T3}
      s_add_u32 s{S_HX}, s{S_HX}, {8 * 8192}
      s_lshr_b32 s{S_T1}, s{S_H}, 3
      s_lshl_b32 s{S_T1}, s{S_T1}, 15
      s_add_u32 s{S_ACT}, s{S_ACT}, s{S_T1}
      s_and_b32 s{S_T1}, s{S_H}, 7
      s_lshl_b32 s{S_T1}, s{S_T1}, 14
      s_sub_u32 s{S_ACT}, s{S_ACT}, s{S_T1}
      s_add_u32 s{S_ACT}, s{S_ACT}, {144 * 8192}
    """)
    return o

def gate_loads(vx, vg, voff, t0):
    return L(f"""
      v_lshrrev_b32 v{t0}, 5, v0
      s_sub_u32 s{S_T0}, 15, s{S_J}
      s_cmp_lt_u32 s{S_H}, 16
      s_cselect_b32 s{S_T0}, s{S_T0}, s{S_J}
      s_lshl_b32 s{S_T0}, s{S_T0}, 4
      s_and_b32 s{S_T1}, s{S_H}, 15
      s_add_u32 s{S_T0}, s{S_T0}, s{S_T1}
      s_lshl_b32 s{S_T0}, s{S_T0}, 2
      s_add_u32 s{S_T0}, s{S_T0}, s{S_W}
      s_lshl_b32 s{S_T0}, s{S_T0}, 1
      v_add_u32 v{voff+2}, s{S_T0}, v{t0}
      v_mul_u32_u24 v{voff}, 1152, v{voff+2}
      v_and_b32 v{t0}, 31, v0
      v_lshlrev_b32 v{voff+1}, 4, v{t0}
      v_add_u32 v{voff}, v{voff}, v{voff+1}
      buffer_load_dwordx4 {r4('v',vx)}, v{voff}, s[{SRD_X}:{SRD_X+3}], 0 offen
      buffer_load_dwordx4 {r4('v',vx+4)}, v{voff}, s[{SRD_X}:{SRD_X+3}], 0 offen offset:512
      buffer_load_dwordx4 {r4('v',vx+8)}, v{voff}, s[{SRD_X}:{SRD_X+3}], 0 offen offset:1024
      buffer_load_dwordx4 {r4('v',vg)}, v{voff+1}, s[{SRD_G}:{SRD_G+3}], 0 offen
      buffer_load_dwordx4 {r4('v',vg+4)}, v{voff+1}, s[{SRD_G}:{SRD_G+3}], 0 offen offset:512
      buffer_load_dwordx4 {r4('v',vg+8)}, v{voff+1}, s[{SRD_G}:{SRD_G+3}], 0 offen offset:1024
    """)

S_XS = 7
def ximg_loads(vd, t):
    return L(f"""
      s_sub_u32 s{S_T0}, 15, s{S_J}
      s_cmp_lt_u32 s{S_H}, 16
      s_cselect_b32 s{S_T0}, s{S_T0}, s{S_J}
      s_bfe_u32 s{S_T1}, s{S_H}, 0x30001
      s_and_b32 s{S_T2}, s{S_H}, 1
      s_mul_i32 s{S_T2}, s{S_T2}, 9
      s_mul_i32 s{S_XS}, s{S_T0}, 18
      s_add_u32 s{S_XS}, s{S_XS}, s{S_T2}
      s_lshl_b32 s{S_XS}, s{S_XS}, 3
      s_add_u32 s{S_XS}, s{S_XS}, s{S_T1}
      s_lshl_b32 s{S_XS}, s{S_XS}, 10
      s_add_u32 s{S_XS}, s{S_XS}, {hex(XI_BASE)}
      s_lshl_b32 s{S_T0}, s{S_T0}, 3
      s_add_u32 s{S_T0}, s{S_T0}, s{S_T1}
      s_mul_i32 s{S_T0}, s{S_T0}, {16 * 1152}
      s_lshl_b32 s{S_T2}, s{S_T2}, 6
      s_add_u32 s{S_T0}, s{S_T0}, s{S_T2}
      s_lshl_b32 s{S_T1}, s{S_W}, 6
      s_add_u32 s{S_T1}, s{S_T1}, s{S_T0}
      v_and_b32 v{t}, 15, v0
      v_mul_u32_u24 v{t}, 1152, v{t}
      v_and_b32 v{t+1}, 48, v0
      v_add_u32 v{t}, v{t}, v{t+1}
      buffer_load_dwordx4 {r4('v',vd)}, v{t}, s[{SRD_X}:{SRD_X+3}], s{S_T1} offen
      buffer_load_dwordx4 {r4('v',vd+4)}, v{t}, s[{SRD_X}:{SRD_X+3}], s{S_T1} offen offset:256
      buffer_load_dwordx4 {r4('v',vd+8)}, v{t}, s[{SRD_X}:{SRD_X+3}], s{S_T0} offen offset:512
    """)
def ximg_stores(vd):
    return L(f"""
      s_lshl_b32 s{S_PO}, s{S_W}, 13
      s_add_u32 s{S_PO}, s{S_PO}, s{S_XS}
      buffer_store_dwordx4 {r4('v',vd)}, v{VST}, s[{SRD_WS}:{SRD_WS+3}], s{S_PO} offen sc1
      s_add_u32 s{S_PO}, s{S_PO}, 32768
      buffer_store_dwordx4 {r4('v',vd+4)}, v{VST}, s[{SRD_WS}:{SRD_WS+3}], s{S_PO} offen sc1
      s_add_u32 s{S_PO}, s{S_XS}, 65536
      buffer_store_dwordx4 {r4('v',vd+8)}, v{VST}, s[{SRD_WS}:{SRD_WS+3}], s{S_PO} offen sc1
    """)

def gate_compute(vx, vg, voff, t):
    o = L(f"v_and_b32 v{t}, 31, v0", f"v_cmp_gt_u32 vcc, 8, v{t}", f"v_mov_b32 v{t+4}, 0", f"v_mov_b32 v{t+5}, 0")
    for r in range(8, 12): o += L(f"v_cndmask_b32 v{vx+r}, 0, v{vx+r}, vcc")
    for r in range(12):
        o += L(f"""
          v_lshlrev_b32 v{t}, 16, v{vx+r}
          v_and_b32 v{t+1}, 0xffff0000, v{vx+r}
          v_lshlrev_b32 v{t+2}, 16, v{vg+r}
          v_and_b32 v{t+3}, 0xffff0000, v{vg+r}
          v_fmac_f32 v{t+4}, v{t}, v{t+2}
          v_fmac_f32 v{t+5}, v{t+1}, v{t+3}""")
    z = t + 4
    o += L(f"""
      v_add_f32 v{z}, v{z}, v{t+5}
      v_add_f32_dpp v{z}, v{z}, v{z} quad_perm:[1,0,3,2] row_mask:0xf bank_mask:0xf
      v_add_f32_dpp v{z}, v{z}, v{z} quad_perm:[2,3,0,1] row_mask:0xf bank_mask:0xf
      v_add_f32_dpp v{z}, v{z}, v{z} row_half_mirror row_mask:0xf bank_mask:0xf
      v_add_f32_dpp v{z}, v{z}, v{z} row_mirror row_mask:0xf bank_mask:0xf
      v_mov_b32 v{t}, v{z}
      v_permlane16_swap_b32 v{t}, v{z}
      v_add_f32 v{z}, v{z}, v{t}
      v_mul_f32 v{t}, {f2u(LOG2E)}, v{z}
      v_exp_f32 v{t+3}, v{t}
      v_exp_f32 v{t+2}, -v{t}
      v_add_f32 v{t+3}, 1.0, v{t+3}
      v_add_f32 v{t+2}, 1.0, v{t+2}
      v_min_f32 v{t+3}, {f2u(1e30)}, v{t+3}
      v_rcp_f32 v{t+2}, v{t+2}
      v_lshlrev_b32 v{voff+2}, 3, v{voff+2}
      v_and_b32 v{t}, 31, v0
      v_cmp_eq_u32 vcc, 0, v{t}
      v_add_u32 v{voff+2}, {hex(G_BASE)}, v{voff+2}
      v_cndmask_b32 v{voff+2}, -1, v{voff+2}, vcc
      buffer_store_dwordx2 {r2('v',t+2)}, v{voff+2}, s[{SRD_WS}:{SRD_WS+3}], 0 offen sc1
    """)
    return fix_hazards(o)

def signal(soff_expr_ops, s_off, vt, inc=1):
    return L(f"""
      v_lshl_add_u32 v{vt}, v0, 8, s{S_SLOW}
      v_mov_b32 v{vt+1}, {inc}
    """) + soff_expr_ops + L(f"buffer_atomic_add v{vt+1}, v{vt}, s[{SRD_DBG}:{SRD_DBG+3}], s{s_off} offen sc1")

S_SIG = 64
S_PT = 65
S_PO = 66

class Panel:
    def __init__(self, name, nnb, srd, sbase, coff, kstride, vdma, wA, units, act):
        self.name = name; self.nnb = nnb; self.srd = srd; self.sbase = sbase; self.coff = coff
        self.kstride = kstride; self.vdma = vdma; self.wA = wA; self.units = units; self.act = act
        self.done = {}
    def acc(self, nb, a): return U(self.units[nb]) + 4 * a

def c_act(a, ks): return r4("a", 16 * ks + 4 * a)
def x_act(a, ks): return r4("v", U(10 + ks) + 4 * a) if ks < 2 else r4("a", 16 * (ks - 2) + 4 * a)
Q_UNITS = [5, 6, 4, 3]
def q_reg(a, ds): return U(Q_UNITS[ds]) + 4 * a

slow_blocks = []
def poll(tag, vf, soff_ops, count, t_issue, t_check):
    ld = f"buffer_load_dword v{vf}, off, s[{SRD_DBG}:{SRD_DBG+3}], s{S_PO} sc1"
    a = soff_ops + L(ld)
    for x in a: x.earliest = t_issue
    r = I(f"v_readfirstlane_b32 s{S_PT}, v{vf}", earliest=t_check, deps=[(a[-1], t_check - t_issue)])
    a[-1].deadline = t_issue + 8
    b = Bundle(L(f"s_cmp_ge_u32 s{S_PT}, {count}", f"s_cbranch_scc0 Lpoll_{tag}", f"Lback_{tag}:"), deps=[(r, 1)])
    slow_blocks.append(L(f"""Lpoll_{tag}:
      {ld}
      s_waitcnt vmcnt(0)
      v_readfirstlane_b32 s{S_PT}, v{vf}
      s_nop 1
      s_cmp_ge_u32 s{S_PT}, {count}
      s_cbranch_scc1 Lback_{tag}
      s_branch Lpoll_{tag}"""))
    return a + [r, b]

def signal(soff_ops, vt, inc=1):
    return L(f"v_lshl_add_u32 v{vt}, v0, 8, s{S_SIG}", f"v_mov_b32 v{vt+1}, {inc}") + soff_ops + \
           L(f"buffer_atomic_add v{vt+1}, v{vt}, s[{SRD_DBG}:{SRD_DBG+3}], s{S_PO} offen sc1")

S_PC = 100
def caddr(v, lo=None, hi="Lend"):
    o = L(f"v_lshlrev_b32 v{v}, 14, v0")
    if lo: o += L(f"v_add_u32 v{v}, {lo}-Lpc0, v{v}")
    return o + L(f"v_min_u32 v{v}, {hi}-Lpc0-16388, v{v}")
def ctouch(v, dst, **kw):
    x = I(f"global_load_dword {dst}, v{v}, s[{S_PC}:{S_PC+1}]", **kw); x.wr = []; x.maxlag = 6
    return x
CT = os.environ.get("CT", "flp")
CH = os.environ.get("CH", "fqp")
NTS = os.environ.get("NT", ""); NTM = os.environ.get("NTM", " nt")

def xcc_ops():
    return L(f"""s_getreg_b32 s{S_PT}, hwreg(HW_REG_XCC_ID, 0, 3)
      s_and_b32 s{S_PO}, s{S_H}, 7
      s_lshl_b32 s{S_PO}, s{S_PO}, 3
      s_add_u32 s{S_PO}, s{S_PO}, s{S_PT}
      s_and_b32 s{S_PO}, s{S_PO}, 60
      s_add_u32 s{S_PO}, s{S_PO}, {DBG_XC}
      s_and_b32 s{S_PT}, s{S_PT}, 3
      s_lshl_b32 s{S_PT}, s{S_PT}, 3""")
def release(tag):
    slow_blocks.append(L(f"""Lwb_{tag}:
      buffer_wbl2 sc1
      s_waitcnt vmcnt(0)
      s_branch Lwbb_{tag}"""))
    return Bundle(L(f"s_cmp_eq_u32 s{S_LOC}, 0", f"s_cbranch_scc1 Lwb_{tag}", f"Lwbb_{tag}:"))

def front(tail_streams=None, qstore=False):
    K0 = Panel("K0", 4, SRD_UK, S_WB, 0, 32 * 8192, VDMA, True, [0, 1, 2, 3], c_act)
    K1 = Panel("K1", 4, SRD_UK, S_WB, 128, 32 * 8192, VDMA, True, [4, 5, 6, 7], c_act)
    V0 = Panel("V0", 4, SRD_UV, S_WB, 0, 32 * 8192, VDMA, False, [8, 10, 9, 11], c_act)
    V1 = Panel("V1", 4, SRD_UV, S_WB, 128, 32 * 8192, VDMA, False, [1, 3, 5, 7], c_act)
    Ha = Panel("Ha", 4, SRD_W1, S_W1B, 0, 32 * 9216, VDMA1, True, [0, 2, 4, 6], x_act)
    Hb = Panel("Hb", 5, SRD_W1, S_W1B, 128, 32 * 9216, VDMA1, True, [3, 7, 8, 9, 1], x_act)
    Q0 = Panel("Q0", 4, SRD_WQ, S_WB, 0, 32 * 8192, VDMA, True, [5, 2, 6, 0], x_act)
    Q1 = Panel("Q1", 4, SRD_WQ, S_WB, 128, 32 * 8192, VDMA, True, [4, 1, 3, 7], x_act)
    steps = []
    for ks in range(0, 16, 2): steps += [(K0, ks), (K0, ks + 1), (K1, ks), (K1, ks + 1)]
    SK = int(os.environ.get("SK", "6"))
    steps += [(V0, ks) for ks in range(SK)]
    for ks in range(0, 16 - SK, 2): steps += [(V1, ks), (V1, ks + 1), (V0, ks + SK), (V0, ks + SK + 1)]
    steps += [(V1, ks) for ks in range(16 - SK, 16)]
    steps += [(Ha, ks) for ks in list(range(2, 18)) + [0, 1]]
    for P in (Hb, Q0, Q1): steps += [(P, ks) for ks in range(18)]
    T = len(steps); NF = int(os.environ.get("NFF", "5")); FRS = [FR, FR + 4, FR + 8, FR + 12, 40][:NF]
    BG0 = int(os.environ.get("BG0", "999"))
    LEAD = int(os.environ.get("LEAD", "6")); PACE = int(os.environ.get("PACE", "16"))
    QUAD = [0, 1, 2, 3, 0, 1, 2, 3, 0, 1, 2, 4, 5, 6, 7, 3, 0, 1, 2, 4, 5, 6, 7, 3, 0, 1, 2, 4, 5, 6, 3, 0, 1, 2]
    spine = []; frags = []; S = []
    for t in range(0, T, 2):
        P = steps[t][0]; assert steps[t + 1][0] is P
        S += [len(spine), len(spine) + 4 * P.nnb]
        for nb in range(P.nnb):
            f0 = len(frags); first = len(spine)
            for a, k in ([(a, k) for a in range(4) for k in range(2)] if "f" in CH else [(a, k) for k in range(2) for a in range(4)]):
                w = r4("v", FRS[(f0 + k) % NF]); ks = steps[t + k][1]
                d = r4("v", P.acc(nb, a)); c = d if (nb, a) in P.done else "0"
                A, B = (w, P.act(a, ks)) if P.wA else (P.act(a, ks), w)
                spine.append(I(f"{MF} {d}, {A}, {B}, {c}")); P.done[(nb, a)] = len(spine) - 1
            frags += [(t, nb, first, first + (6 if "f" in CH else 3)), (t + 1, nb, first, first + 7)]
    S.append(len(spine))
    ds = []; bars = {}; pro_ds = []; barpos = {}; te = -1
    for f, (t, nb, a, b) in enumerate(frags):
        P, ks = steps[t]
        e = None if f < NF else frags[f - NF][3]
        if e is not None and "f" in CH: e += (f & 1) if NF == 4 else 3 * (1 - (f & 1))
        BG = 2 if t // 2 >= BG0 else 1
        if nb == 0 and t % (2 * BG) == 0:
            wv = WAITG("w", t // 2 + BG - 1); br = I("s_barrier"); bars[t // 2] = br
            if f >= NF:
                barpos[t // 2] = e
                wv.earliest = br.earliest = max(0, e - 2); wv.deadline = br.deadline = e
                ds += [wv, br]
            else: pro_ds += [wv, br]; barpos[0] = 0
        if nb < 4 and t % 4 == 0 and t and (QUAD[t // 4] ^ QUAD[t // 4 - 1]) & 4:
            ds.append(I(f"v_xor_b32 v{VTR+nb}, 0x10000, v{VTR+nb}", earliest=e - 1, deadline=e))
        for jj in range(2):
            r = FRS[f % NF] + 2 * jj
            if nb < 4:
                off = (QUAD[t // 4] & 3) * 16384 + (t & 3) * 1024 + jj * 8192
                x = I(f"ds_read_b64_tr_b16 {r2('v', r)}, v{VTR+nb} offset:{off}")
            else:
                wq = ks & 3
                off = wq * 4096 + (ks >> 4) * 16384 + ((ks >> 2) & 3) * 1024 + jj * 512
                x = I(f"ds_read_b64_tr_b16 {r2('v', r)}, v{VTRX} offset:{off}")
            if f < NF: pro_ds.append(x)
            else:
                sp = 1 if "f" in CH and NF == 4 else 2
                x.earliest = e + sp * jj; x.deadline = e + sp * jj + (1 if sp == 2 else 0)
                ds.append(x)
    def nbar(G): return min(b for b in bars if b >= G)
    epi = []; hepi = []
    def pack(b0, b1, d=None):
        d = b0 if d is None else d
        return L(f"v_cvt_pk_bf16_f32 v{d}, v{b0}, v{b0+1}", f"v_cvt_pk_bf16_f32 v{d+1}, v{b0+2}, v{b0+3}",
                 f"v_cvt_pk_bf16_f32 v{d+2}, v{b1}, v{b1+1}", f"v_cvt_pk_bf16_f32 v{d+3}, v{b1+2}, v{b1+3}")
    def store4(b, sbase, off, SC=SC):
        hi = off & ~0x1fff
        o = []
        if hi: o += L(f"s_add_u32 s{S_ET}, s{sbase}, {hi}")
        o += L(f"buffer_store_dwordx4 {r4('v', b)}, v{VST2 if off & 0x1000 else VST}, s[{SRD_WS}:{SRD_WS+3}], s{S_ET if hi else sbase} offen offset:{off & 0xfff}{SC}")
        return o
    lastop = {}; sts = []
    SP = int(os.environ.get("SP", "26"))
    n_st = 0
    for P in (K0, K1, V0, V1):
        isK = P.name[0] == "K"; half = int(P.name[1])
        for n in range(8):
            x, y = (n >> 2, n & 3) if isK else (n & 1, n >> 1)
            tl = [(2 * x, y), (2 * x + 1, y)] if isK else [(y, 2 * x), (y, 2 * x + 1)]
            e = max(P.done[t] for t in tl) + 8
            ops = []
            if isK:
                for t in tl:
                    for r in range(4): ops += L(f"v_mul_f32 v{P.acc(*t)+r}, s{S_KSC}, v{P.acc(*t)+r}")
            d = P.acc(*tl[0]) if isK else P.acc(y & 2, n & 3)
            ops += pack(P.acc(*tl[0]), P.acc(*tl[1]), d)
            for q in ops: q.earliest = e
            epi += ops
            off = ((y >> 1) * 16384 + (y & 1) * 4096 + (2 * half + x) * 1024) if isK else (x * 16384 + 8192 + (4 * half + y) * 1024)
            st = store4(d, S_KV, off)
            te = S[32] + 24 + SP * n_st
            n_st += 1
            for q in st: q.earliest = max(e, te)
            st[-1].deps = [(ops[-1], 1)]
            sts += st
            lastop[(P.name, n)] = ops[-1]
    kv_te = te
    kv_last = sts[-1]
    hA, hB, hC, hD, hE = [], [], [], [], []
    NT = 8
    n = 0; tmp_free = {}
    gl_done = I("s_nop 0")
    first_fma = []
    for P in (Ha, Hb):
        for x in ([0, 1] if P.nnb == 4 else [2, 0, 1]):
            for a in range(4):
                tl = [(2 * x, a), (2 * x + 1, a)] if 2 * x + 1 < P.nnb else [(2 * x, a)]
                fin = []
                for t in tl:
                    e = P.done[t] + 8
                    for r in range(4):
                        v = P.acc(*t) + r; tm = VT + (n % NT)
                        m = I(f"v_mul_f32 v{tm}, s{S_NL2E}, v{v}", earliest=e)
                        if tm in tmp_free: m.deps = [(tmp_free[tm], 0)]
                        ex = I(f"v_exp_f32 v{tm}, v{tm}", earliest=e, deps=[(m, 0)])
                        fm = I(f"v_fma_f32 v{tm}, v{tm}, v{VC+2*a+1}, v{VC+2*a+1}", earliest=e, deps=[(ex, 1)])
                        rc = I(f"v_rcp_f32 v{tm}, v{tm}", earliest=e, deps=[(fm, 0)])
                        mu = I(f"v_mul_f32 v{v}, v{v}, v{tm}", earliest=e, deps=[(rc, 1)])
                        if not first_fma: first_fma.append(fm)
                        tmp_free[tm] = mu; n += 1; mu.span = 4
                        hA.append(m); hB.append(ex); hC.append(fm); hD.append(rc); hE.append(mu)
                    b = P.acc(*t); b0 = P.acc(*tl[0]); k = 2 * tl.index(t)
                    hE += [I(f"v_cvt_pk_bf16_f32 v{b0+k}, v{b}, v{b+1}", earliest=e), I(f"v_cvt_pk_bf16_f32 v{b0+k+1}, v{b+2}, v{b+3}", earliest=e)]
                b0 = P.acc(*tl[0])
                if len(tl) == 2:
                    st = store4(b0, S_HK, ((0 if P is Ha else 2) + x) * 8192 + a * 2048, os.environ.get('SCH', ' sc1'))
                else:
                    st = L(f"buffer_store_dwordx2 {r2('v', b0)}, v{VST2 if a >= 2 else VST}, s[{SRD_WS}:{SRD_WS+3}], s{S_HX} offen offset:{(a & 1) * 2048}{SCX}")
                for q in st: q.earliest = e
                st[0].deps = [(hE[-1], 0)]; st[-1].deps = [(hE[-1], 1)]
                sts += st
    h_last = sts[-1]
    qepi = []
    for pi, P in enumerate((Q0, Q1)):
        for x in range(2):
            for a in range(4):
                e = max(P.done[(2 * x, a)], P.done[(2 * x + 1, a)]) + 8
                assert P.acc(2 * x, a) == q_reg(a, 2 * pi + x)
                ops = pack(P.acc(2 * x, a), P.acc(2 * x + 1, a))
                for q in ops: q.earliest = e
                qepi += ops
    units = []; rel = {}; tw = -99
    for G in range(T // 2):
        tm = -1
        if G >= 8:
            gp = [g for g in range(G & 1, G, 2) if QUAD[g // 2] == QUAD[G // 2]]
            rel[G] = nbar(max(gp[-1] + 2 if gp else 15, G - LEAD))
            tm = tw = max(barpos[rel[G]], tw + PACE)
        for t in (2 * G, 2 * G + 1):
            P, ks = steps[t]
            if P.nnb == 5 and ks % 4 == 0: units.append((tm, "x", t))
            units.append((tm, "w", t))
    rd_time = [None] + [S[4 * c - 2] for c in range(1, 8)]
    areads = []; pro_ar = []; last_rd = {}
    for c in range(8):
        ops = [WAITG("act", c)]
        for a in range(4):
            for kb in range(2):
                ops.append(I(f"ds_read_b128 {c_act(a, 2 * c + kb)}, v{VAR+kb} offset:{(c % 3) * 8192 + a * 2048}"))
        last_rd[c] = ops[-1]
        if c == 0: pro_ar = ops; continue
        for q in ops: q.earliest = rd_time[c]
        areads += ops
    for c in range(8):
        tm = -1 if c < 3 else (rd_time[c - 3] or 0) + 16
        for nn in range(8): units.append((tm + (3 * nn if tm >= 0 else 0), "a", (c, nn)))
    first = [u for u in units if u[0] < 0]; rest = sorted([u for u in units if u[0] >= 0], key=lambda u: u[0])
    W = [u for u in first if u[1] == "w"]; A = [u for u in first if u[1] == "a"]
    first = W[0:2] + A[0:8] + W[2:4] + A[8:16] + W[4:8] + A[16:24] + W[8:]
    cur = [None]
    def emit_unit(u):
        tm, kind, arg = u
        o = []; deps = []
        if kind == "w":
            t = arg; P, ks = steps[t]
            m0 = (S_WM0, QUAD[t // 4] * 16384); imm = (t & 3) * 1024
            so = P.coff + ks * P.kstride; sb = P.sbase; v = P.vdma; sr = P.srd; grp = ("w", t // 2)
            if t // 2 >= 8: deps = [(bars[rel[t // 2]], 0)]
        elif kind == "x":
            t = arg; P, ks = steps[t]
            m0 = (S_WM0, 0x20000 + (ks >> 4) * 16384); imm = ((ks >> 2) & 3) * 1024
            so = ks * P.kstride; sb = S_W1X; v = VDMAX; sr = P.srd; grp = ("w", t // 2)
        else:
            c, nn = arg
            m0 = (S_AM0, (c % 3) * 8192 + (nn >> 2) * 4096); imm = (nn & 3) * 1024
            so = 8 * nn * 1024 + (c % 3 if 'r' in os.environ.get('X', '') else c) * 128
            sb = S_CB; v = VCD + (nn & 1); sr = SRD_C; grp = ("act", c)
            if nn == 0 and c >= 3:
                o.append(WAITLGKM(last_rd[c - 3]))
                if c > 3: deps = [(last_rd[c - 3], 8)]
        if so < imm: m0 = (m0[0], m0[1] + imm); imm = 0
        if cur[0] != m0:
            o += L(f"s_add_u32 m0, s{m0[0]}, {m0[1]}"); cur[0] = m0
        o += L(f"s_add_u32 s{S_DT}, s{sb}, {so - imm}",
               f"buffer_load_dwordx4 v{v}, s[{sr}:{sr+3}], s{S_DT} offen" + (f" offset:{imm}" if imm else "") + (NTM if sr == SRD_UK and tm < 0 and "k" in NTS else "") + " lds")
        o[-1].grp = grp
        for x in o: x.earliest = max(tm, 0)
        o[0].deps = deps
        return o
    pro_vm = [x for u in first for x in emit_unit(u)]
    vm = [x for u in rest for x in emit_unit(u)]
    lastd = {}
    for x in vm:
        if x.tag == "dma": lastd[x.grp] = x
    for x in ds + areads:
        if x.mn == "WAIT" and x.grp in lastd: x.deps = x.deps + [(lastd[x.grp], 64)]
    GX, GG, GO, GI = U(8), U(9), U(10), U(11)
    gl = gate_loads(GX, GG, GO, GO + 4) + ximg_loads(GI, GI + 12)
    gc = gate_compute(GX, GG, GO, GO + 8)
    misc = L(f"""s_lshl_b32 s{S_PO}, s{S_SIG}, 20
      v_lshl_add_u32 v{VT+8}, v0, 2, s{S_PO}
      v_mov_b32 v{VT+9}, 0
      s_lshl_b32 s{S_PO}, s2, 8
      s_add_u32 s{S_PO}, s{S_PO}, {hex(INBOX)}
      buffer_store_dword v{VT+9}, v{VT+8}, s[{SRD_WS}:{SRD_WS+3}], s{S_PO} offen sc1""")
    misc += xcc_ops() + L(f"s_lshl_b32 s{S_PT}, 1, s{S_PT}") + signal([], VT + 8, f"s{S_PT}")
    xs = ximg_stores(GI)
    for q in xs + gc: q.earliest = S[1]
    misc += xs + gc
    wv = WAITVM(gc[-1]); wv.earliest = S[14]; wv.deadline = barpos[nbar(9)] - 3; wv.deps = [(gc[-1], 140)]
    misc += [wv]
    sg = signal(L(f"s_lshl_b32 s{S_PO}, s{S_J}, 2"), VT + 8); sg[-1].deps = [(bars[nbar(9)], 0)]
    misc += sg
    misc += poll("g", VT + 10, L(f"s_lshl_b32 s{S_PO}, s{S_J}, 2"), 32, S[23 + SK], S[32 + SK])
    gpoll = misc[-1]
    xl = []; XSP = int(os.environ.get("XSP", "30")); te = 0
    for ks in list(range(2, 18)) + [0, 1]:
        o = L(f"s_add_u32 s{S_XS}, s{S_XB}, {(ks % 4 if 'y' in os.environ.get('X', '') else ks) * 8192}")
        for a in range(4):
            o += L(f"buffer_load_dwordx4 {x_act(a, ks)}, v{VST2 if a >= 2 else VST}, s[{SRD_WS}:{SRD_WS+3}], s{S_XS} offen offset:{(a & 1) * 2048} sc1")
        te = max(te + XSP, S[(steps.index((V1, ks - 2)) | 1) + 1] if ks >= 2 else 0)
        for k, q in enumerate(o): q.earliest = te + (XSP * k) // 5
        if ks < 2: o[1].deps = [(lastop[("V0", 3 + 4 * ks)], 1)]
        u = S[steps.index((Ha, ks)) & ~1]
        w = WAITVM(o[-1]); w.earliest = u - 4; w.deadline = u - 1
        areads.append(w); xl += o
    xl[0].deps = [(gpoll, 0)]
    misc += L(f"""v_and_b32 v{VT+8}, 15, v0
        v_lshlrev_b32 v{VT+8}, 3, v{VT+8}
        s_lshl_b32 s{S_PO}, s{S_BLK}, 3
        s_and_b32 s{S_PT}, s{S_W}, 1
        s_add_u32 s{S_PO}, s{S_PO}, s{S_PT}
        s_lshl_b32 s{S_PO}, s{S_PO}, 7
        s_add_u32 s{S_PO}, s{S_PO}, {hex(G_BASE)}""")
    for a in range(4): misc += L(f"buffer_load_dwordx2 {r2('v', VC + 2 * a)}, v{VT+8}, s[{SRD_WS}:{SRD_WS+3}], s{S_PO} offen offset:{256 * a} sc1")
    first_fma[0].deps.append((misc[-1], 160)); misc[-1].deadline = S[70]
    kb = min(b for b in barpos if barpos[b] - 3 >= kv_te + 190)
    wv = WAITVM(kv_last); wv.earliest = barpos[kb] - 8; wv.deadline = barpos[kb] - 3; wv.deps = [(kv_last, 170)]
    sg = signal(L(f"s_lshl_b32 s{S_PO}, s{S_H}, 2", f"s_add_u32 s{S_PO}, s{S_PO}, {DBG_KV}"), VT + 8)
    xc = xcc_ops() + L(f"buffer_load_dword v{VT+10}, off, s[{SRD_DBG}:{SRD_DBG+3}], s{S_PO} sc1")
    xr = L(f"v_lshrrev_b32 v{VT+10}, s{S_PT}, v{VT+10}", f"v_and_b32 v{VT+10}, 255, v{VT+10}", f"v_readfirstlane_b32 s{S_LOC}, v{VT+10}")
    xr[0].deps = [(xc[-1], 150)]; xr[2].deps = [(xr[1], 1)]
    xr += [Bundle(L(f"s_cmp_eq_u32 s{S_LOC}, {33 if 'n' in os.environ.get('X', '') else 32}", f"s_cselect_b32 s{S_LOC}, 1, s{S_W}"), deps=[(xr[2], 1)])]
    rl = release("kv"); rl.deps = [(bars[kb], 0)]
    misc += xc + xr + [wv] + sg[:-1] + [rl, sg[-1]]
    PT = [int(v) for v in os.environ.get("PT", "0,15,17").split(",")]
    H64 = "6" in os.environ.get("X", "")
    a, b2 = 44, 45
    def touch(sr, so, off=0, dup=True):
        o = L(f"buffer_load_dword v{VPF}, v{a}, s[{sr}:{sr+3}], s{so} offen" + (f" offset:{off}" if off else ""))
        if H64 and dup: o += L(f"buffer_load_dword v{VPF}, v{a}, s[{sr}:{sr+3}], s{so} offen offset:{off + 64}")
        for x in o: x.wr = []
        return o
    t1 = L(f"""s_lshl_b32 s{S_T0}, s{S_J}, 2
      s_add_u32 s{S_T0}, s{S_T0}, s{S_W}
      s_lshl_b32 s{S_T1}, s{S_T0}, 17
      s_add_u32 s{S_T1}, s{S_T1}, s{S_WB}
      v_lshrrev_b32 v{a}, 2, v0
      v_and_b32 v{b2}, 3, v0
      v_lshlrev_b32 v{b2}, 6, v{b2}
      v_lshl_add_u32 v{a}, v{a}, 13, v{b2}""") + touch(SRD_UV, S_T1, dup=False)
    EC = os.environ.get("EC", "m1")
    t0 = L(*[x.text for x in t1[:-1]]) + touch(SRD_UK, S_T1, dup=False)
    if "k" in NTS: t0[-1].text += NTM
    if EC[0] == "m":
        t0 += L(f"""s_lshl_b32 s{S_T1}, s2, 2
          s_add_u32 s{S_T1}, s{S_T1}, s{S_W}
          s_lshl_b32 s{S_T1}, s{S_T1}, 11
          v_lshlrev_b32 v{a}, 5, v0""") + touch(SRD_C, S_T1, dup=False)
    elif EC[0] == "l":
        t0 += L(f"""s_lshr_b32 s{S_T1}, s{S_H}, 3
          s_lshl_b32 s{S_T1}, s{S_T1}, 14
          s_add_u32 s{S_T1}, s{S_T1}, s{S_CB}
          v_lshlrev_b32 v{a}, 7, v0""") + touch(SRD_C, S_T1, dup=False) + L(f"s_add_u32 s{S_T1}, s{S_T1}, 8192") + touch(SRD_C, S_T1, dup=False)
    else: t0 = []
    t3 = L(f"""s_lshr_b32 s{S_T2}, s{S_H}, 3
      s_lshl_b32 s{S_T2}, s{S_T2}, 5
      s_add_u32 s{S_T2}, s{S_T2}, s{S_T0}
      s_mul_i32 s{S_T2}, s{S_T2}, 9
      s_lshr_b32 s{S_T2}, s{S_T2}, 1
      s_mul_i32 s{S_T2}, s{S_T2}, 9216
      s_and_b32 s{S_T1}, s{S_H}, 7
      s_mul_i32 s{S_T1}, s{S_T1}, 1152
      s_add_u32 s{S_T1}, s{S_T1}, s{S_T2}
      v_min_u32 v{a}, 44, v0
      v_mul_u32_u24 v{b2}, 57, v{a}
      v_lshrrev_b32 v{b2}, 9, v{b2}
      v_mul_u32_u24 v{b2}, 8064, v{b2}
      v_lshl_add_u32 v{a}, v{a}, 7, v{b2}""") + touch(SRD_W1, S_T1)
    t4 = L(f"""s_mul_i32 s{S_T1}, s{S_T0}, {18 * 8192}
      s_add_u32 s{S_T1}, s{S_T1}, s{S_WB}
      v_min_u32 v{a}, 35, v0
      v_and_b32 v{b2}, 1, v{a}
      v_lshrrev_b32 v{a}, 1, v{a}
      v_lshlrev_b32 v{b2}, 7, v{b2}
      v_lshl_add_u32 v{a}, v{a}, 13, v{b2}""") + touch(SRD_WQ, S_T1)
    pf = []
    for t, e in ((t1, S[PT[0]]), (t3, S[PT[1]]), (t4, S[PT[2]])):
        for x in t: x.earliest = e
        pf += t
    PS = os.environ.get("PS", "uuuuwwwwwqqqqq,240,540")
    if PS:
        pf = L(f"""s_lshl_b32 s{S_T0}, s{S_J}, 2
          s_add_u32 s{S_T0}, s{S_T0}, s{S_W}
          s_lshl_b32 s{S_T1}, s{S_T0}, 15
          s_add_u32 s{S_T1}, s{S_T1}, s{S_WB}
          v_min_u32 v{a}, 7, v0
          v_and_b32 v{b2}, 1, v{a}
          v_lshrrev_b32 v{a}, 1, v{a}
          v_lshlrev_b32 v{b2}, 7, v{b2}
          v_lshl_add_u32 v{a}, v{a}, 13, v{b2}
          s_lshr_b32 s{S_T2}, s{S_H}, 3
          s_lshl_b32 s{S_T2}, s{S_T2}, 5
          s_add_u32 s{S_T2}, s{S_T2}, s{S_T0}
          s_mul_i32 s{S_T2}, s{S_T2}, 9216
          s_and_b32 s{S_T3}, s{S_H}, 7
          s_mul_i32 s{S_T3}, s{S_T3}, 1152
          s_add_u32 s{S_T2}, s{S_T2}, s{S_T3}
          s_mov_b32 s{S_T0}, s{S_T1}
          v_min_u32 v{b2}, 8, v0
          v_lshlrev_b32 v{b2}, 7, v{b2}""")
        order, p0, p1 = PS.split(","); p0 = int(p0); p1 = int(p1)
        for k, m in enumerate(order):
            if m == "-": continue
            sr, so, v, st = {"u": (SRD_UV, S_T1, a, 128 * 8192), "q": (SRD_WQ, S_T0, a, 128 * 8192), "w": (SRD_W1, S_T2, b2, 128 * 9216)}[m]
            o = L(f"buffer_load_dword v{VPF}, v{v}, s[{sr}:{sr+3}], s{so} offen" + (NTM if m in NTS else ""), f"s_add_u32 s{so}, s{so}, {st}")
            o[0].wr = []; o[0].earliest = p0 + (p1 - p0) * k // len(order); o[0].maxlag = 4
            pf += o
    if "p" in os.environ.get("X", ""): pf = []
    pc = []
    if "f" in CT:
        ca = caddr(46, None, 'Lend1')
        for x in ca: x.earliest = S[18]
        pc = ca + [ctouch(46, f"v{VPF}", earliest=S[t], deadline=S[t + 2]) for t in [int(v) for v in os.environ.get("CTF", "24,40,56,72,88,104").split(",")]]
    ctx = dict(nbar=nbar, S=S, bars=bars, barpos=barpos, steps=steps, misc=misc, vm=vm, cur=cur, qepi=qepi, h_last=h_last, spine=spine)
    extra = tail_streams(ctx) if tail_streams else []
    for x in vm + sts + xl: x.maxlag = 6
    streams = [ds, areads, vm, xl, pf, pc, misc, sts, epi, hD, hB, hE, hC, hA, qepi] + extra
    main = schedule(spine, streams, verbose="front", nprio=2)
    last = max(i for i, x in enumerate(main) if x.kind == "mfma")
    body, tl = main[:last + 1], main[last + 1:]
    fixed = fix_hazards(body[-14:] + tl)
    assert fixed[:14] == body[-14:]
    main = body + fixed[14:]
    X = os.environ.get("X", "")
    if "s" in X: main = [x for x in main if not x.mn.startswith("buffer_store_dwordx4")]
    if "f" in X: main = [x for x in main if not (x.mn.startswith("buffer_atomic") or x.mn == "buffer_load_dword" or "Lpoll" in x.text)]
    if "x" in X: main = [x for x in main if not (x.tag == "dma" and f"s[{SRD_X}:" in x.text)]
    if PROF:
        mf = [i for i, x in enumerate(main) if x.kind == "mfma"]
        cut = [0] + [mf[S[t]] for t in (16, 32, 48, 64, 82, 100, 118)] + [len(main)]
        print("front est:", [est_cycles(main[a:b]) for a, b in zip(cut, cut[1:])])
        for q, t in reversed(list(enumerate((16, 32, 48, 64, 82, 100, 118)))): main[mf[S[t]]:mf[S[t]]] = stamp(3 + q)
    sig = L(f"s_cmp_lg_u32 s{S_W}, 0", f"s_cselect_b32 s{S_SIG}, 256, 0", f"s_add_u32 s{S_SIG}, s{S_SIG}, s{S_SLOW}")
    dm = [i for i, x in enumerate(pro_vm) if x.tag == "dma"]
    e0 = 0 if EC[1] == "0" else dm[9] + 1
    pro = fix_hazards(setup()) + pro_vm[:e0] + fix_hazards(t0) + pro_vm[e0:45] + stamp(1) + fix_hazards(gl) + pro_vm[45:] + fix_hazards(setup2() + sig + (t1 if os.environ.get("PU") else [])) + pro_ar + pro_ds + stamp(2)
    return pro, main

def entry(exit_label):
    return fix_hazards(L(f"""
      s_cmp_ge_u32 s2, 256
      s_cbranch_scc1 {exit_label}
      v_lshrrev_b32 v1, 6, v0
      v_and_b32 v0, 63, v0
      v_readfirstlane_b32 s{S_W}, v1
      s_mov_b32 s{S_SLOW}, 0
    """) + (L(f"""
      s_getpc_b64 s[{S_T2}:{S_T3}]
      Lpc0:
      s_lshr_b32 s{S_T0}, s2, 1
      s_and_b32 s{S_T0}, s{S_T0}, 60
      s_add_u32 s{S_T0}, s{S_T0}, s{S_W}
      s_lshl_b32 s{S_T0}, s{S_T0}, 13
      v_lshl_add_u32 v1, v0, 7, s{S_T0}
      v_min_u32 v1, Lend-Lpc0-4, v1
      global_load_dword v{VPF}, v1, s[{S_T2}:{S_T3}]
      s_lshr_b32 s{S_T0}, s2, 1
      s_and_b32 s{S_T0}, s{S_T0}, 0x7c
      s_add_u32 s{S_T0}, s{S_T0}, s{S_W}
      s_lshl_b32 s{S_T0}, s{S_T0}, 7
      s_add_u32 s{S_PC}, s{S_T2}, s{S_T0}
      s_addc_u32 s{S_PC+1}, s{S_T3}, 0
    """) if "c" not in os.environ.get("X", "") else []) + L("Lstart:"))

def k1():
    K = Kernel("k1_kernel", 256, 163840)
    pro, main = front()
    K.add("pro", stamp(0) + entry("Lexit1") + pro)
    K.add("main", main + stamp(10) + prof_out(0, 11) + L("Lexit1:", "s_endpgm"))
    K.paths = [["pro", "main"]]
    K.add("slow", [i for b in slow_blocks for i in b])
    K.finish()
    return K
```

```python
from front import *

SRD_OUT, SRD_PZ = 16, 8
VPZ, A_Z = 15, 244
PZ = []
S_WS, S_AB, S_AT, S_M0 = 44, 45, 46, 47
S_P0 = 50
S_IB = 54
S_RB, S_OB, S_MASK = 55, 56, 57
VZ = 232
ACC, WF, VD, VA = 64, 208, 1, 32
VF = 245
VHP = 38
NF = 6
S_AC, S_WO, S_N, S_PL, S_T64, S_CAND, S_PLO, S_PL2 = 24, 25, 26, 28, 30, 32, 33, 34
DBG_PL = 224
NLO, NHI = int(os.environ.get("NLO", "5")), int(os.environ.get("NHI", "12"))
SLOT = 36864
PSLOT = [16384, 16384 + 3 * SLOT, 16384 + SLOT, 16384 + 2 * SLOT]
ARING = [212, 228, 176, 192, 144, 160] + [16 * i for i in range(8)]
def acc(mt, a): return ACC + 16 * mt + 4 * a
def bact(ks, a): return r4("a", ARING[ks % len(ARING)] + 4 * a)

def flag_addr(v, lane_shift, nl, word_ops):
    return L(f"""v_cmp_gt_u32 vcc, {nl}, v0
      v_lshlrev_b32 v{v}, {lane_shift}, v0
      v_mov_b32 v{v+1}, 1
      v_cndmask_b32 v{v}, -1, v{v}, vcc""")

def sig_group(word):
    o = L(f"""s_and_b32 s{S_PO}, s2, 0xe7
      s_lshl_b32 s{S_PO}, s{S_PO}, 6
      s_lshr_b32 s{S_PT}, s{S_H}, 3
      s_add_u32 s{S_PO}, s{S_PO}, s{S_PT}
      s_lshl_b32 s{S_PO}, s{S_PO}, 2
      s_add_u32 s{S_PO}, s{S_PO}, {hex(INBOX + 4 * word)}
      s_lshl_b32 s{S_PT}, s{S_SIG}, 20
      s_add_u32 s{S_PO}, s{S_PO}, s{S_PT}""")
    return o
def sig_store(v): return I(f"buffer_store_dword v{v+1}, v{v}, s[{SRD_WS}:{SRD_WS+3}], s{S_PO} offen sc1")

def poll2(tag, v, word, nw, t_issue=0, t_check=0):
    ld = f"buffer_load_dword v{v+1}, v{v}, s[{SRD_WS}:{SRD_WS+3}], s{S_IB} offen offset:{4 * word} sc1"
    a = L(f"v_and_b32 v{v}, {nw - 1}, v0", f"v_lshlrev_b32 v{v}, 2, v{v}", ld)
    for x in a: x.earliest = t_issue
    a[-1].deadline = t_issue + 8
    b = Bundle(L(f"v_cmp_ne_u32 vcc, 1, v{v+1}", "s_nop 4", f"s_cbranch_vccnz Lpoll_{tag}", f"Lback_{tag}:"), earliest=t_check)
    slow_blocks.append(L(f"""Lpoll_{tag}:
      {ld}
      s_waitcnt vmcnt(0)
      v_cmp_ne_u32 vcc, 1, v{v+1}
      s_nop 4
      s_cbranch_vccz Lback_{tag}
      s_branch Lpoll_{tag}"""))
    return a, b

def p4_setup():
    t = VHP
    o = L(f"""s_lshl_b32 s{S_IB}, s2, 8
      s_add_u32 s{S_IB}, s{S_IB}, {hex(INBOX)}
      s_mul_i32 s{S_M0}, s{S_W}, 9216
      s_lshr_b32 s{S_AT}, s{S_H}, 3
      s_lshl_b32 s{S_AB}, s{S_AT}, 15
      s_sub_u32 s{S_AC}, s{S_ACT}, s{S_AB}
      s_mul_i32 s{S_AT}, s{S_AT}, 288
      s_mul_i32 s{S_WS}, s{S_W}, {32 * 1152}
      s_add_u32 s{S_WS}, s{S_WS}, s{S_AT}
      s_and_b32 s{S_AT}, s{S_H}, 7
      s_mul_i32 s{S_WO}, s{S_AT}, {128 * 1152}
      s_add_u32 s{S_WO}, s{S_WO}, s{S_WS}
      s_mul_i32 s{S_AB}, s{S_AT}, {(16 - 2 * NLO) * 8192}
      s_sub_u32 s{S_AB}, s{S_AC}, s{S_AB}
      s_sub_u32 s{S_AB}, s{S_AB}, {144 * 8192}
      s_mul_i32 s{S_AT}, s{S_AT}, {NLO * 64 * 1152}
      s_add_u32 s{S_WS}, s{S_WS}, s{S_AT}""")
    o += L(*[f"v_accvgpr_write_b32 a{A_Z+r}, -1" for r in range(4)])
    o += L(f"s_movk_i32 s{S_AT}, 864", f"v_mul_u32_u24 v{t+1}, 3641, v0")
    for n in range(9):
        if n: o += L(f"v_add_u32 v{t+1}, {64 * 3641}, v{t+1}")
        o += L(f"v_lshrrev_b32 v{t}, 16, v{t+1}", f"v_mad_u32_u24 v{VD+n}, v{t}, s{S_AT}, v{VST2 if n >= 4 else VST}")
    o += L(f"v_add_u32 v{VD+8}, 4096, v{VD+8}")
    o += L(f"""v_lshrrev_b32 v{t}, 2, v0
      v_mul_u32_u24 v{t}, 288, v{t}
      v_and_b32 v{t+1}, 3, v0
      v_lshl_add_u32 v{t}, v{t+1}, 3, v{t}""")
    for s in range(4): o += L(f"v_add_u32 v{VA+s}, {PSLOT[s]}, v{t}")
    return o

def plan_poll(tag, t_issue, t_check):
    v = VHP
    ld = f"buffer_load_dwordx2 {r2('v', v)}, off, s[{SRD_DBG}:{SRD_DBG+3}], 0 offset:{DBG_PL} sc1"
    rd = [f"v_readfirstlane_b32 s{S_PL}, v{v}", f"v_readfirstlane_b32 s{S_PL+1}, v{v+1}"]
    a = L(ld); a[0].earliest = t_issue; a[0].deadline = t_issue + 8
    r = L(*rd); r[0].earliest = t_check
    b = Bundle(L(f"s_cmp_eq_u64 s[{S_PL}:{S_PL+1}], 0", f"s_cbranch_scc1 Lpoll_{tag}", f"Lback_{tag}:"), deps=[(r[1], 1)])
    slow_blocks.append(L(f"Lpoll_{tag}:", ld, "s_waitcnt vmcnt(0)", *rd, "s_nop 1", f"s_cmp_eq_u64 s[{S_PL}:{S_PL+1}], 0",
                         f"s_cbranch_scc0 Lback_{tag}", f"s_branch Lpoll_{tag}"))
    if os.environ.get("FIX"):
        m = sum(((1 << (int(c) - NLO)) - 1) << (8 * g) for g, c in enumerate(os.environ["FIX"].split(",")))
        a = []; r = L(f"s_mov_b32 s{S_PL}, {hex(m & 0xffffffff)}", f"s_mov_b32 s{S_PL+1}, {hex(m >> 32)}"); r[0].earliest = t_check; b.deps = [(r[1], 1)]
    return a + r + [b] + L(f"""s_lshl_b32 s{S_N}, s{S_H}, 3
      s_bfm_b64 s[{S_T64}:{S_T64+1}], s{S_N}, 0
      s_and_b64 s[{S_T64}:{S_T64+1}], s[{S_T64}:{S_T64+1}], s[{S_PL}:{S_PL+1}]
      s_bcnt1_i32_b64 s{S_T64}, s[{S_T64}:{S_T64+1}]
      s_lshl_b32 s{S_T64+1}, s{S_T64}, 14
      s_add_u32 s{S_AB}, s{S_AB}, s{S_T64+1}
      s_mul_i32 s{S_T64}, s{S_T64}, {64 * 1152}
      s_add_u32 s{S_WS}, s{S_WS}, s{S_T64}
      s_lshr_b64 s[{S_PL}:{S_PL+1}], s[{S_PL}:{S_PL+1}], s{S_N}
      s_and_b32 s{S_N}, s{S_PL}, 255
      s_bcnt1_i32_b32 s{S_N}, s{S_N}""")

def wdma(s, sh=99):
    o = []
    if s == sh: o += L(f"s_mov_b32 s{S_WS}, s{S_WO}")
    elif s: o += L(f"s_add_u32 s{S_WS}, s{S_WS}, {(128 if s < sh else 1024) * 1152}")
    sr = SRD_W2 if s < sh else SRD_WO
    for n in range(9):
        if n % 4 == 0: o += L(f"s_add_u32 m0, s{S_M0}, {PSLOT[s % 4] + 1024 * n}")
        x = I(f"buffer_load_dwordx4 v{VD+n}, s[{sr}:{sr+3}], s{S_WS} offen" + (f" offset:{1024 * (n & 3)}" if n & 3 else "") + " lds"); x.grp = ("w", s)
        if n % 4 == 0: x.deps = [(o[-1], 1)]
        o.append(x)
    return o
def aload(ks, kh=99):
    o = L(f"s_add_u32 s{S_AT}, s{S_AB if ks < kh else S_AC}, {(ks if ks < kh else ks - kh) * 8192}")
    for a in range(4):
        o += L(f"buffer_load_dwordx4 {bact(ks, a)}, v{VST2 if a >= 2 else VST}, s[{SRD_WS}:{SRD_WS+3}], s{S_AT} offen offset:{(a & 1) * 2048} sc1"); o[-1].grp = ("a", ks)
    return o

def pz_setup():
    o = []
    o += L(f"""s_lshr_b32 s{SRD_PZ+2}, s2, 3
      s_lshl_b32 s{SRD_PZ+2}, s{SRD_PZ+2}, 2
      s_add_u32 s{SRD_PZ+2}, s{SRD_PZ+2}, s{S_W}
      s_lshl_b32 s{SRD_PZ+2}, s{SRD_PZ+2}, 3
      s_and_b32 s{SRD_PZ}, s{S_H}, 7
      s_add_u32 s{SRD_PZ+2}, s{SRD_PZ+2}, s{SRD_PZ}
      s_mul_i32 s{SRD_PZ+2}, s{SRD_PZ+2}, 18432
      s_add_u32 s{SRD_PZ+2}, s{SRD_PZ+2}, {hex(PART_BASE)}""")
    o += [Bundle(L(f"s_add_u32 s{SRD_PZ}, s{SRD_WS}, s{SRD_PZ+2}", f"s_addc_u32 s{SRD_PZ+1}, s{SRD_WS+1}, 0"))]
    o += L(f"s_movk_i32 s{SRD_PZ+2}, 18432", f"v_mov_b32 v{VPZ}, v{VST}")
    return o
```
